```python
import torch

def _softmax(x, axis=-1):
    return torch.softmax(x, dim=axis)
def _gelu(x):
    return torch.nn.functional.gelu(x, approximate="tanh")
def _silu(x):
    return torch.nn.functional.silu(x)
def _sigmoid(x):
    return torch.sigmoid(x)
def _layernorm(x, axis=-1, eps=1e-5):
    m = x.mean(dim=axis, keepdim=True)
    v = x.var(dim=axis, keepdim=True, unbiased=False)
    return (x - m) / torch.sqrt(v + eps)
def _scatter_add(tgt, idx, src, axis=0):
    return tgt.clone().index_add_(axis, idx, src)
def _segment_sum(src, seg, n):
    out = torch.zeros((n,) + src.shape[1:], dtype=src.dtype)
    return out.index_add_(0, seg, src)
def _pad(x, pw):
    flat = tuple(v for pair in reversed(pw) for v in pair)
    return torch.nn.functional.pad(x, flat)

kernel_name = 'interleave_layers__sliding_block__glu_gated_glu__prompt'

def setup_inputs():

    _w = (lambda a: (lambda t: t.to(torch.bfloat16) if t.is_floating_point() else t)(torch.as_tensor(a)))
    def _A_setup():
        B, S, D = 1, 2048, 640
        return {
            "x": _w((lambda *s: torch.randn(*s, dtype=torch.bfloat16) * 0.05)(B, S, D)),
            "wqkv": _w((lambda *s: torch.randn(*s, dtype=torch.bfloat16) * 0.05)(D, 3 * D)),
            "wo": _w((lambda *s: torch.randn(*s, dtype=torch.bfloat16) * 0.05)(D, D)),
        }
    _A_in = _A_setup()

    def _B_setup():
        B, S, D, F = 1, 2048, 640, 1536
        return {
            "x": _w((lambda *s: torch.randn(*s, dtype=torch.bfloat16) * 0.05)(B, S, D)),
            "w_gate": _w((lambda *s: torch.randn(*s, dtype=torch.bfloat16) * 0.05)(D, F)),
            "w_up": _w((lambda *s: torch.randn(*s, dtype=torch.bfloat16) * 0.05)(D, F)),
            "w_down": _w((lambda *s: torch.randn(*s, dtype=torch.bfloat16) * 0.05)(F, D)),
        }
    _B_in = _B_setup()

    return {
        "A_x": _A_in["x"],
        "A_wqkv": _A_in["wqkv"],
        "A_wo": _A_in["wo"],
        "B_x": _B_in["x"],
        "B_w_gate": _B_in["w_gate"],
        "B_w_up": _B_in["w_up"],
        "B_w_down": _B_in["w_down"],
    }

def reference(A_x, A_wqkv, A_wo, B_x, B_w_gate, B_w_up, B_w_down):
    def _A_ref(x, wqkv, wo):
        B, S, D = x.shape
        H = 32; Dh = D // H; W = 256
        qkv = (lambda x, *d: x.permute(*d))((x @ wqkv).reshape(B, S, 3, H, Dh), 2, 0, 3, 1, 4)
        q, k, v = qkv[0], qkv[1], qkv[2]
        scores = torch.einsum("bhqd,bhkd->bhqk", q, k) * (Dh ** -0.5)
        idx = torch.arange(S)
        mask = (idx[:, None] - idx[None, :] >= 0) & (idx[:, None] - idx[None, :] < W)
        scores = torch.where(mask[None, None], scores, -1e9)
        p = _softmax(scores, axis=-1)
        o = torch.einsum("bhqk,bhkd->bhqd", p, v)
        return (lambda x, *d: x.permute(*d))(o, 0, 2, 1, 3).reshape(B, S, D) @ wo

    def _B_ref(x, w_gate, w_up, w_down):
        g = torch.einsum("bsd,df->bsf", x, w_gate)
        u = torch.einsum("bsd,df->bsf", x, w_up)
        h = _sigmoid(g) * u
        return torch.einsum("bsf,fd->bsd", h, w_down)

    x = A_x
    x = x + _A_ref(_layernorm(x, axis=-1), A_wqkv, A_wo)
    x = x + _B_ref(_layernorm(x, axis=-1), B_w_gate, B_w_up, B_w_down)
    x = x + _A_ref(_layernorm(x, axis=-1), A_wqkv, A_wo)
    x = x + _B_ref(_layernorm(x, axis=-1), B_w_gate, B_w_up, B_w_down)
    return x
```

```python
import json, sys

WS = dict(QKV=0x0, O=0x800000, XA=0xB00000, XB=0xE00000, H=0x1100000, STX=0x1800000, STA=0x1840000, STB=0x1880000, CS=0x18C0000)
SZ = dict(QKV=2048*1920*2, O=2048*640*2, XA=2048*640*2, XB=2048*640*2, H=2048*1536*2, STX=2048*64, STA=2048*64, STB=2048*64, CS=4992*4)
KA = dict(x=0, wqkv=8, wo=16, bx=24, wg=32, wu=40, wd=48, out=56, dbg=64, ws=72)
INSZ = dict(x=2048*640*2, wqkv=640*1920*2, wo=640*640*2, wg=640*1536*2, wu=640*1536*2, wd=1536*640*2, out=2048*640*2)

class K:
    def __init__(s, name, grid, block, lds, vgpr=256, sgpr=96):
        s.name = name; s.L = []; s.grid = grid; s.block = block; s.lds = lds; s.vgpr = vgpr; s.sgpr = sgpr
        s.lc = 0
    def __call__(s, *ts):
        for t in ts: s.L.append("    " + t)
    def lab(s, l): s.L.append(l + ":")
    def newlab(s, p="L"):
        s.lc += 1; return f"{p}_{s.name}_{s.lc}"
    def text(s):
        out = [f".globl {s.name}", ".p2align 8", f".type {s.name},@function", f"{s.name}:"]
        out += s.L
        return "\n".join(out)
    def desc(s):
        acc = (s.vgpr + 3) // 4 * 4
        return "\n".join([".p2align 6", f".amdhsa_kernel {s.name}", f"  .amdhsa_next_free_vgpr {s.vgpr}",
            f"  .amdhsa_next_free_sgpr {s.sgpr}", f"  .amdhsa_accum_offset {acc}", "  .amdhsa_group_segment_fixed_size 0",
            "  .amdhsa_kernarg_size 80", "  .amdhsa_user_sgpr_count 2", "  .amdhsa_user_sgpr_kernarg_segment_ptr 1",
            "  .amdhsa_system_sgpr_workgroup_id_x 1", ".end_amdhsa_kernel"])

PT = 72
def ptr_loads(k, specs):
    for i, (sreg, name) in enumerate(specs):
        off = KA['ws'] if name in WS else KA[name]
        k(f"s_load_dwordx2 s[{PT+2*i}:{PT+2*i+1}], s[0:1], {off}")
def ptr_srds(k, specs):
    k("s_waitcnt lgkmcnt(0)")
    for i, (sreg, name) in enumerate(specs):
        t = PT + 2*i
        if name in WS:
            k(f"s_add_u32 s{sreg}, s{t}, {WS[name]:#x}", f"s_addc_u32 s{sreg+1}, s{t+1}, 0", f"s_mov_b32 s{sreg+2}, {SZ[name]}")
        else:
            k(f"s_mov_b32 s{sreg}, s{t}", f"s_mov_b32 s{sreg+1}, s{t+1}", f"s_mov_b32 s{sreg+2}, {INSZ[name]}")
        k(f"s_and_b32 s{sreg+1}, s{sreg+1}, 0xffff", f"s_mov_b32 s{sreg+3}, 0x00020000")
def load_ptrs(k, specs):
    ptr_loads(k, specs); ptr_srds(k, specs)

def stamp(k, i):
    k(f"s_memtime s[{40+2*i}:{41+2*i}]")
def stamps_out(k, n, wg=0):
    lab = k.newlab("nost")
    k("s_waitcnt lgkmcnt(0)")
    k(f"s_cmp_lg_u32 s2, {wg}", f"s_cbranch_scc1 {lab}")
    k("s_cmp_lg_u32 s29, 0", f"s_cbranch_scc1 {lab}")
    k("s_load_dwordx2 s[64:65], s[0:1], 64", "s_waitcnt lgkmcnt(0)")
    k("s_and_b32 s65, s65, 0xffff", "s_mov_b32 s66, 256", "s_mov_b32 s67, 0x00020000")
    k("v_mov_b32 v1, 0")
    for i in range(n):
        k(f"s_sub_u32 s{41+2*i}, s{40+2*i}, s40")
        k(f"v_mov_b32 v2, s{41+2*i}")
        k(f"buffer_store_dword v2, v1, s[64:67], 0 offen offset:{4*i}")
    k.lab(lab)

def rne_bf16(k, dst, src):
    k(f"v_cvt_pk_bf16_f32 v{dst}, v{src}, v{src}")
    k(f"v_lshlrev_b32 v{dst}, 16, v{dst}")

def finish_stats(k, vmean, vvar, vm_out, vrs_out):
    rne_bf16(k, vm_out, vmean)
    rne_bf16(k, vrs_out, vvar)
    k(f"v_add_f32 v{vrs_out}, 0x3727c5ac, v{vrs_out}")
    rne_bf16(k, vrs_out, vrs_out)
    k(f"v_sqrt_f32 v{vrs_out}, v{vrs_out}", "s_nop 0")
    rne_bf16(k, vrs_out, vrs_out)
    k(f"v_rcp_f32 v{vrs_out}, v{vrs_out}", "s_nop 0")

def merge_stats(k, base, t0, vm_out, vrs_out):
    a, b, c, d = t0, t0+1, t0+2, t0+3
    k(f"v_add_f32 v{a}, v{base}, v{base+2}")
    for i in range(2, 8): k(f"v_add_f32 v{a}, v{a}, v{base+2*i}")
    k(f"v_mul_f32 v{a}, 0x3acccccd, v{a}")
    k(f"v_add_f32 v{b}, v{base+1}, v{base+3}")
    for i in range(2, 8): k(f"v_add_f32 v{b}, v{b}, v{base+1+2*i}")
    k(f"v_mov_b32 v{c}, 0")
    for i in range(8):
        k(f"v_mul_f32 v{d}, 0x3c4ccccd, v{base+2*i}", f"v_sub_f32 v{d}, v{d}, v{a}", f"v_fmac_f32 v{c}, v{d}, v{d}")
    k(f"v_mov_b32 v{d}, 0x42a00000", f"v_fmac_f32 v{b}, v{c}, v{d}", f"v_mul_f32 v{b}, 0x3acccccd, v{b}")
    finish_stats(k, a, b, vm_out, vrs_out)

def interleave(k, mf, fill, per):
    fi = 0
    for i, m in enumerate(mf):
        k(m)
        for _ in range(per[i]):
            if fi < len(fill): k(fill[fi]); fi += 1
    while fi < len(fill): k(fill[fi]); fi += 1

def xcd_map16(k, nnt):
    k("s_and_b32 s24, s2, 7", "s_lshr_b32 s25, s2, 3")
    k("s_lshr_b32 s26, s24, 1", "s_lshl_b32 s26, s26, 2", "s_and_b32 s27, s25, 3", "s_add_u32 s26, s26, s27")
    k("s_and_b32 s27, s24, 1", "s_lshl_b32 s27, s27, 3", "s_lshr_b32 s28, s25, 2", "s_add_u32 s27, s27, s28")

def gen_prep(name):
    k = K(name, 256, 256, 4096, vgpr=128)
    done = k.newlab("done"); lcs = k.newlab("cs"); lpf = k.newlab("pf")
    k("s_cmp_ge_u32 s2, 256", f"s_cbranch_scc1 {done}")
    specs = [(4, 'x'), (8, 'wqkv'), (12, 'wg'), (16, 'wu'), (20, 'STX'), (24, 'CS'), (28, 'wo'), (32, 'wd')]
    load_ptrs(k, specs)
    k("s_cmp_ge_u32 s2, 142", f"s_cbranch_scc1 {lpf}")
    k("s_cmp_ge_u32 s2, 64", f"s_cbranch_scc1 {lcs}")
    k("s_lshl_b32 s36, s2, 8", "v_add_u32 v1, s36, v0", "v_mul_u32_u24 v2, 160, v1")
    for i in range(10): k(f"buffer_load_dwordx4 v[{16+4*i}:{19+4*i}], v2, s[4:7], 0 offen offset:{16*i}")
    k("s_waitcnt vmcnt(0)")
    for i in range(40):
        k(f"v_lshlrev_b32 v{64+2*i}, 16, v{16+i}") if False else None
    for i in range(40):
        k(f"v_lshlrev_b32 v{48+2*i}, 16, v{16+i}") if i < 8 else None
    k.L = k.L[:-8]
    k("v_mov_b32 v4, 0", "v_mov_b32 v5, 0")
    for i in range(40):
        k(f"v_lshlrev_b32 v6, 16, v{16+i}", f"v_and_b32 v7, 0xffff0000, v{16+i}", "v_add_f32 v4, v4, v6", "v_add_f32 v5, v5, v7")
    k("v_add_f32 v4, v4, v5", "v_mul_f32 v8, 0x3c4ccccd, v4", "v_mov_b32 v5, 0", "v_mov_b32 v9, 0")
    for i in range(40):
        k(f"v_lshlrev_b32 v6, 16, v{16+i}", f"v_and_b32 v7, 0xffff0000, v{16+i}", "v_sub_f32 v6, v6, v8", "v_sub_f32 v7, v7, v8",
          "v_fmac_f32 v5, v6, v6", "v_fmac_f32 v9, v7, v7")
    k("v_add_f32 v5, v5, v9", "v_lshlrev_b32 v1, 3, v1")
    k("buffer_store_dwordx2 v[4:5], v1, s[20:23], 0 offen")
    k(f"s_branch {done}")
    k.lab(lcs)
    k("s_sub_u32 s36, s2, 64")
    k("s_mov_b32 s37, 3840", "s_mov_b32 s38, 0", "s_mov_b64 s[40:41], s[8:9]", "s_mov_b32 s42, s10", "s_mov_b32 s39, s36")
    l1 = k.newlab("m");
    k("s_cmp_lt_u32 s36, 30", f"s_cbranch_scc1 {l1}")
    k("s_mov_b32 s37, 3072", "s_mov_b32 s38, 1920", "s_mov_b64 s[40:41], s[12:13]", "s_mov_b32 s42, s14", "s_sub_u32 s39, s36, 30")
    k("s_cmp_lt_u32 s36, 54", f"s_cbranch_scc1 {l1}")
    k("s_mov_b32 s38, 3456", "s_mov_b64 s[40:41], s[16:17]", "s_sub_u32 s39, s36, 54")
    k.lab(l1)
    k("s_mov_b32 s43, 0x00020000")
    k("v_lshrrev_b32 v1, 4, v0", "v_mul_u32_u24 v1, 40, v1", "v_mul_lo_u32 v1, v1, s37", "v_and_b32 v2, 15, v0", "v_lshl_add_u32 v1, v2, 3, v1")
    k("s_lshl_b32 s44, s39, 7", "v_add_u32 v1, s44, v1", "s_mov_b32 s45, 0")
    for r in range(40):
        k(f"buffer_load_dwordx2 v[{16+2*r}:{17+2*r}], v1, s[40:43], s45 offen", "s_add_u32 s45, s45, s37")
    for a in range(4): k(f"v_mov_b32 v{4+a}, 0")
    k("s_waitcnt vmcnt(0)")
    for r in range(40):
        k(f"v_lshlrev_b32 v8, 16, v{16+2*r}", f"v_and_b32 v9, 0xffff0000, v{16+2*r}", f"v_lshlrev_b32 v10, 16, v{17+2*r}", f"v_and_b32 v11, 0xffff0000, v{17+2*r}",
          "v_add_f32 v4, v4, v8", "v_add_f32 v5, v5, v9", "v_add_f32 v6, v6, v10", "v_add_f32 v7, v7, v11")
    k("v_lshlrev_b32 v2, 4, v0", "ds_write_b128 v2, v[4:7]", "s_waitcnt lgkmcnt(0)", "s_barrier")
    k("v_and_b32 v2, 63, v0", "v_lshlrev_b32 v2, 2, v2")
    for g in range(16): k(f"ds_read_b32 v{16+g}, v2 offset:{g*256}")
    k("s_waitcnt lgkmcnt(0)")
    for g in range(1, 16): k(f"v_add_f32 v16, v16, v{16+g}")
    k("s_lshl_b32 s44, s39, 6", "s_add_u32 s44, s44, s38", "s_lshl_b32 s44, s44, 2", "v_add_u32 v2, s44, v2")
    k("v_cmp_gt_u32 vcc, 64, v0", "s_and_saveexec_b64 s[46:47], vcc", f"s_cbranch_execz {done}")
    k("buffer_store_dword v16, v2, s[24:27], 0 offen")
    k(f"s_branch {done}")
    k.lab(lpf)
    k("s_sub_u32 s36, s2, 142", "s_lshl_b32 s36, s36, 12", "v_lshlrev_b32 v1, 4, v0", "v_add_u32 v1, s36, v1")
    for p in range(2): k(f"s_mov_b32 s37, {p*114*4096}", f"buffer_load_dwordx4 v[{16+4*p}:{19+4*p}], v1, s[28:31], s37 offen")
    for p in range(5): k(f"s_mov_b32 s37, {p*114*4096}", f"buffer_load_dwordx4 v[{32+4*p}:{35+4*p}], v1, s[32:35], s37 offen")
    k.lab(done)
    k("s_endpgm")
    return k

def loader_loop(k, NK, NST, dma_list, per):
    issued = -1
    def issue(upto):
        nonlocal issued
        while issued < min(upto, NK - 1):
            issued += 1; k(*dma_list(issued))
    issue(1)
    for kt in range(NK):
        k(f"s_waitcnt vmcnt({per*(issued-kt)})", "s_barrier")
        issue(kt + NST - 1)
    k("s_endpgm")

def act_dma_voffs(k, rows_per_wave=32):
    k("s_lshl_b32 s32, s26, 7", "s_lshl_b32 s33, s29, 5", "s_add_u32 s32, s32, s33")
    k("v_lshrrev_b32 v25, 3, v1", "v_add_u32 v25, s32, v25", "v_mul_u32_u24 v25, 1280, v25")
    k("v_and_b32 v26, 7, v1", "v_lshrrev_b32 v27, 4, v1", "v_xor_b32 v26, v26, v27", "v_lshlrev_b32 v26, 4, v26")
    k("v_xor_b32 v27, 64, v26")
    for j in range(4):
        k(f"v_add_u32 v{2+j}, v25, v{26 + (j&1)}")
        if j: k(f"v_add_u32 v{2+j}, {j*(8*1280-1024)}, v{2+j}")

def gen_qkv(name, xsrc, statsrc, opt=''):
    NK = 10; NST = 4; STB = 32768
    k = K(name, 256, 512, NST*STB)
    done = k.newlab("done"); lload = k.newlab("loader")
    k("s_cmp_ge_u32 s2, 256", f"s_cbranch_scc1 {done}")
    xcd_map16(k, 15)
    k("s_cmp_ge_u32 s27, 15", f"s_cbranch_scc1 {done}")
    if 'stamp' in opt: stamp(k, 0)
    specs = [(4, xsrc), (8, 'wqkv'), (16, 'QKV'), (20, statsrc), (12, 'CS')]
    ptr_loads(k, specs)
    k("v_and_b32 v1, 63, v0", "v_lshrrev_b32 v25, 6, v0", "s_nop 0", "v_readfirstlane_b32 s29, v25")
    k("s_nop 3", "s_cmp_ge_u32 s29, 4", f"s_cbranch_scc1 {lload}")
    k("s_and_b32 s30, s29, 1", "s_lshr_b32 s31, s29, 1")
    k("v_and_b32 v25, 31, v1", "s_lshl_b32 s32, s26, 7", "s_lshl_b32 s33, s31, 6", "s_add_u32 s32, s32, s33", "v_add_u32 v28, s32, v25")
    k("v_lshlrev_b32 v29, 6, v28")
    k("v_lshrrev_b32 v30, 5, v1", "v_lshlrev_b32 v30, 4, v30", "s_lshl_b32 s32, s27, 9", "s_lshl_b32 s33, s30, 8", "s_add_u32 s32, s32, s33", "v_add_u32 v30, s32, v30")
    k("v_and_b32 v25, 31, v1", "s_lshl_b32 s32, s31, 6", "v_add_u32 v26, s32, v25", "v_lshlrev_b32 v26, 7, v26")
    k("v_lshrrev_b32 v25, 1, v25", "v_and_b32 v25, 7, v25", "v_lshrrev_b32 v27, 5, v1", "v_xor_b32 v25, v25, v27")
    for s in range(4):
        k(f"v_xor_b32 v27, {2*s}, v25", f"v_lshl_add_u32 v{10+s}, v27, 4, v26")
    k("v_lshrrev_b32 v25, 5, v1", "v_lshlrev_b32 v25, 3, v25", "v_bfe_u32 v26, v1, 2, 2", "v_add_u32 v25, v25, v26", "v_lshlrev_b32 v25, 8, v25")
    k("v_bfe_u32 v27, v1, 4, 1", "v_lshl_add_u32 v25, v27, 5, v25", "v_and_b32 v27, 3, v1", "v_lshl_add_u32 v25, v27, 3, v25", "v_add_u32 v25, 16384, v25")
    k("s_lshl_b32 s32, s30, 1")
    for ft in range(2):
        k(f"s_add_u32 s33, s32, {ft}", "v_xor_b32 v27, s33, v26", f"v_lshl_add_u32 v{14+ft}, v27, 6, v25")
    for i in range(64, 128): k(f"v_mov_b32 v{i}, 0")
    ptr_srds(k, specs)
    for tt in range(2):
        for i in range(4): k(f"buffer_load_dwordx4 v[{160+16*tt+4*i}:{163+16*tt+4*i}], v29, s[20:23], 0 offen offset:{tt*2048+16*i}")
    for ft in range(2):
        for g in range(4): k(f"buffer_load_dwordx4 v[{128+16*ft+4*g}:{131+16*ft+4*g}], v30, s[12:15], 0 offen offset:{ft*128+g*32}")
    if 'stamp' in opt: stamp(k, 1)
    def reads(s):
        fb = 32 + 16 * (s & 1); L = []
        for tt in range(2): L.append(f"ds_read_b128 v[{fb+4*tt}:{fb+4*tt+3}], v{10+s} offset:{tt*4096}")
        for ft in range(2):
            for r in range(2):
                L.append(f"ds_read_b64_tr_b16 v[{fb+8+4*ft+2*r}:{fb+8+4*ft+2*r+1}], v{14+ft} offset:{(16*s+4*r)*256}")
        return L
    def mfmas(s):
        fb = 32 + 16 * (s & 1); L = []
        for ft in range(2):
            for tt in range(2):
                a = 64 + (ft*2+tt)*16
                L.append(f"v_mfma_f32_32x32x16_bf16 v[{a}:{a+15}], v[{fb+8+4*ft}:{fb+8+4*ft+3}], v[{fb+4*tt}:{fb+4*tt+3}], v[{a}:{a+15}]")
        return L
    k("s_barrier")
    if 'stamp' in opt: stamp(k, 2)
    k(*reads(0))
    for kt in range(NK):
        for s in range(4):
            k("s_waitcnt lgkmcnt(0)")
            M = mfmas(s)
            if s < 3:
                interleave(k, M, reads(s+1), [2, 2, 2, 0])
            elif kt + 1 < NK:
                k(M[0], "s_barrier")
                d = STB if (kt + 1) % NST else -(NST-1)*STB
                for r in range(10, 16): k(f"v_add_u32 v{r}, {d & 0xffffffff:#x}, v{r}")
                interleave(k, M[1:], reads(0), [2, 2, 2])
            else:
                k(*M)
        if kt == 3:
            k("s_waitcnt vmcnt(8)")
            for tt in range(2):
                merge_stats(k, 160+16*tt, 16, 192+4*tt, 194+4*tt)
                k(f"v_mov_b32 v{193+4*tt}, v{192+4*tt}", f"v_mov_b32 v{195+4*tt}, v{194+4*tt}")
    if 'stamp' in opt: stamp(k, 3)
    k("s_barrier")
    k("s_mul_i32 s32, s29, 9216")
    k("v_and_b32 v25, 31, v1", "v_mul_u32_u24 v25, 144, v25", "v_lshrrev_b32 v26, 5, v1", "v_lshl_add_u32 v25, v26, 3, v25", "v_add_u32 v25, s32, v25")
    k("v_lshrrev_b32 v26, 3, v1", "v_mul_u32_u24 v26, 144, v26", "v_and_b32 v27, 7, v1", "v_lshl_add_u32 v26, v27, 4, v26", "v_add_u32 v26, s32, v26")
    k("v_lshrrev_b32 v28, 3, v1", "s_lshl_b32 s32, s26, 7", "s_lshl_b32 s33, s31, 6", "s_add_u32 s32, s32, s33", "v_add_u32 v28, s32, v28", "v_mul_u32_u24 v28, 3840, v28")
    k("v_lshl_add_u32 v28, v27, 4, v28", "s_lshl_b32 s32, s27, 8", "s_lshl_b32 s33, s30, 7", "s_add_u32 s32, s32, s33", "v_add_u32 v28, s32, v28")
    k("s_waitcnt vmcnt(0)", "s_nop 4")
    for tt in range(2):
        for ft in range(2):
            a = 64 + (ft*2+tt)*16; vm = 192 + 4*tt; vr = 194 + 4*tt
            for r in range(0, 16, 2):
                k(f"v_pk_fma_f32 v[{a+r}:{a+r+1}], v[{vm}:{vm+1}], v[{128+ft*16+r}:{129+ft*16+r}], v[{a+r}:{a+r+1}] neg_lo:[1,0,0] neg_hi:[1,0,0]")
                k(f"v_pk_mul_f32 v[{a+r}:{a+r+1}], v[{a+r}:{a+r+1}], v[{vr}:{vr+1}]")
            for g in range(4):
                d = 32 + 2*((ft*4+g) % 8)
                k(f"v_cvt_pk_bf16_f32 v{d}, v{a+4*g}, v{a+4*g+1}", f"v_cvt_pk_bf16_f32 v{d+1}, v{a+4*g+2}, v{a+4*g+3}")
                k(f"ds_write_b64 v25, v[{d}:{d+1}] offset:{tt*32*144 + ft*64 + g*16}")
    k("s_waitcnt lgkmcnt(0)")
    for i in range(8): k(f"ds_read_b128 v[{64+4*i}:{67+4*i}], v26 offset:{i*8*144}")
    for i in range(8):
        k(f"s_waitcnt lgkmcnt({7-i})", f"s_mov_b32 s32, {i*8*3840}", f"buffer_store_dwordx4 v[{64+4*i}:{67+4*i}], v28, s[16:19], s32 offen")
    if 'stamp' in opt:
        stamp(k, 4); k("s_waitcnt vmcnt(0)"); stamp(k, 5); stamps_out(k, 6, 17)
    k.lab(done)
    k("s_endpgm")
    k.lab(lload)
    k("s_sub_u32 s29, s29, 4")
    act_dma_voffs(k)
    k("s_lshl_b32 s32, s29, 4")
    k("v_lshrrev_b32 v25, 4, v1", "v_add_u32 v26, s32, v25", "v_mul_u32_u24 v26, 3840, v26")
    k("v_lshlrev_b32 v25, 2, v25", "v_and_b32 v27, 15, v1", "v_xor_b32 v27, v27, v25", "v_lshlrev_b32 v27, 4, v27")
    k("v_add_u32 v26, v26, v27", "s_lshl_b32 s32, s27, 8", "v_add_u32 v6, s32, v26")
    for j in range(1, 4): k(f"v_add_u32 v{6+j}, {j*(4*3840-1024)}, v6")
    k("s_lshl_b32 s34, s29, 12")
    ptr_srds(k, specs)
    def dma_list(kt):
        st = kt % NST
        L = [f"s_add_u32 m0, s34, {st*STB}", f"s_mov_b32 s35, {kt*128}"]
        L += [f"buffer_load_dwordx4 v{2+j}, s[4:7], s35 offen offset:{j*1024} lds" for j in range(4)]
        L += [f"s_add_u32 m0, s34, {st*STB + 16384}", f"s_mov_b32 s36, {kt*64*3840}"]
        L += [f"buffer_load_dwordx4 v{6+j}, s[8:11], s36 offen offset:{j*1024} lds" for j in range(4)]
        return L
    loader_loop(k, NK, NST, dma_list, 8)
    return k

def gen_glu(name, xsrc, statsrc, opt=''):
    NK = 10; NST = 4; STB = 40960
    k = K(name, 256, 512, NST*STB)
    done = k.newlab("done"); lload = k.newlab("loader")
    k("s_cmp_ge_u32 s2, 256", f"s_cbranch_scc1 {done}")
    xcd_map16(k, 16)
    specs = [(4, xsrc), (8, 'wg'), (12, 'wu'), (16, 'H'), (20, statsrc), (36, 'CS')]
    ptr_loads(k, specs)
    k("v_and_b32 v1, 63, v0", "v_lshrrev_b32 v25, 6, v0", "s_nop 0", "v_readfirstlane_b32 s29, v25")
    k("s_nop 3", "s_cmp_ge_u32 s29, 4", f"s_cbranch_scc1 {lload}")
    FB = 32; AC = 88; STV = 184; CSV = 188
    k("v_and_b32 v25, 31, v1", "s_lshl_b32 s32, s26, 7", "s_lshl_b32 s33, s29, 5", "s_add_u32 s32, s32, s33", "v_add_u32 v28, s32, v25", "v_lshlrev_b32 v29, 6, v28")
    k("v_lshrrev_b32 v30, 5, v1", "v_lshlrev_b32 v30, 4, v30", "s_mul_i32 s32, s27, 384", "s_add_u32 s32, s32, 7680", "v_add_u32 v30, s32, v30")
    k("s_lshl_b32 s32, s29, 5", "v_add_u32 v26, s32, v25", "v_lshlrev_b32 v26, 7, v26")
    k("v_lshrrev_b32 v25, 1, v25", "v_and_b32 v25, 7, v25", "v_lshrrev_b32 v27, 5, v1", "v_xor_b32 v25, v25, v27")
    for s in range(4):
        k(f"v_xor_b32 v27, {2*s}, v25", f"v_lshl_add_u32 v{10+s}, v27, 4, v26")
    k("v_lshrrev_b32 v25, 5, v1", "v_lshlrev_b32 v25, 3, v25", "v_bfe_u32 v26, v1, 2, 2", "v_add_u32 v25, v25, v26", "v_mul_u32_u24 v25, 192, v25")
    k("v_bfe_u32 v27, v1, 4, 1", "v_lshl_add_u32 v25, v27, 5, v25", "v_and_b32 v27, 3, v1", "v_lshl_add_u32 v25, v27, 3, v25", "v_add_u32 v14, 16384, v25")
    for i in range(AC, AC+96): k(f"v_mov_b32 v{i}, 0")
    ptr_srds(k, specs)
    def cs_load(t, dst):
        mtx, ft = divmod(t, 3)
        for g in range(4): k(f"buffer_load_dwordx4 v[{dst+4*g}:{dst+4*g+3}], v30, s[36:39], 0 offen offset:{ft*128+g*32}" if mtx == 0 else
                             f"buffer_load_dwordx4 v[{dst+4*g}:{dst+4*g+3}], v31, s[36:39], 0 offen offset:{ft*128+g*32}")
    k("v_add_u32 v31, 6144, v30")
    for i in range(4): k(f"buffer_load_dwordx4 v[{FB+28+4*i}:{FB+31+4*i}], v29, s[20:23], 0 offen offset:{16*i}") if False else None
    for i in range(4): k(f"buffer_load_dwordx4 v[{CSV+48+4*i}:{CSV+51+4*i}], v29, s[20:23], 0 offen offset:{16*i}")
    cs_load(0, CSV); cs_load(3, CSV+16); cs_load(1, CSV+32)
    def reads(s):
        fb = FB + 28 * (s & 1); L = [f"ds_read_b128 v[{fb}:{fb+3}], v{10+s}"]
        for t in range(6):
            mtx, ft = divmod(t, 3)
            for r in range(2):
                L.append(f"ds_read_b64_tr_b16 v[{fb+4+4*t+2*r}:{fb+5+4*t+2*r}], v14 offset:{mtx*12288 + (16*s+4*r)*192 + ft*64}")
        return L
    def mfmas(s):
        fb = FB + 28 * (s & 1)
        return [f"v_mfma_f32_32x32x16_bf16 v[{AC+16*t}:{AC+16*t+15}], v[{fb+4+4*t}:{fb+7+4*t}], v[{fb}:{fb+3}], v[{AC+16*t}:{AC+16*t+15}]" for t in range(6)]
    k("s_barrier")
    k(*reads(0))
    for kt in range(NK):
        for s in range(4):
            k("s_waitcnt lgkmcnt(0)")
            M = mfmas(s)
            if s < 3:
                interleave(k, M, reads(s+1), [3, 3, 3, 2, 2, 0])
            elif kt + 1 < NK:
                k(M[0], "s_barrier")
                d = STB if (kt + 1) % NST else -(NST-1)*STB
                for r in range(10, 15): k(f"v_add_u32 v{r}, {d & 0xffffffff:#x}, v{r}")
                interleave(k, M[1:], reads(0), [3, 3, 3, 2, 2])
            else:
                k(*M)
        if kt == 3:
            k("s_waitcnt vmcnt(0)")
            merge_stats(k, CSV+48, 16, STV, STV+2)
            k(f"v_mov_b32 v{STV+1}, v{STV}", f"v_mov_b32 v{STV+3}, v{STV+2}")
            cs_load(4, CSV+48)
    cs_load(2, FB); cs_load(5, FB+16) if False else None
    k.L.pop() if False else None
    k("s_barrier")
    cs_load(5, FB+28)
    k("s_mul_i32 s32, s29, 6656")
    k("v_and_b32 v25, 31, v1", "v_mul_u32_u24 v25, 208, v25", "v_lshrrev_b32 v26, 5, v1", "v_lshl_add_u32 v25, v26, 3, v25", "v_add_u32 v25, s32, v25")
    k("v_lshrrev_b32 v26, 2, v1", "v_mul_u32_u24 v26, 208, v26", "v_and_b32 v27, 3, v1", "v_lshl_add_u32 v26, v27, 4, v26", "v_add_u32 v26, s32, v26")
    k("v_lshrrev_b32 v28, 2, v1", "s_lshl_b32 s32, s26, 7", "s_lshl_b32 s33, s29, 5", "s_add_u32 s32, s32, s33", "v_add_u32 v28, s32, v28", "v_mul_u32_u24 v28, 3072, v28")
    k("v_lshl_add_u32 v28, v27, 4, v28", "s_mul_i32 s32, s27, 192", "v_add_u32 v28, s32, v28")
    k("v_mov_b32 v16, 0xbfb8aa3b", "v_mov_b32 v17, 0xbfb8aa3b", "v_mov_b32 v18, 1.0", "v_mov_b32 v19, 1.0")
    csreg = {0: CSV, 3: CSV+16, 1: CSV+32, 4: CSV+48, 2: FB, 5: FB+28}
    for ft in range(3):
        if ft == 0: k("s_waitcnt vmcnt(8)")
        if ft == 2: k("s_waitcnt vmcnt(0)")
        ag = AC + 16*ft; au = AC + 16*(3+ft); cg = csreg[ft]; cu = csreg[3+ft]
        for r in range(0, 16, 2):
            k(f"v_pk_fma_f32 v[{ag+r}:{ag+r+1}], v[{STV}:{STV+1}], v[{cg+r}:{cg+r+1}], v[{ag+r}:{ag+r+1}] neg_lo:[1,0,0] neg_hi:[1,0,0]")
            k(f"v_pk_fma_f32 v[{au+r}:{au+r+1}], v[{STV}:{STV+1}], v[{cu+r}:{cu+r+1}], v[{au+r}:{au+r+1}] neg_lo:[1,0,0] neg_hi:[1,0,0]")
            k(f"v_pk_mul_f32 v[{ag+r}:{ag+r+1}], v[{ag+r}:{ag+r+1}], v[{STV+2}:{STV+3}]")
            k(f"v_pk_mul_f32 v[{au+r}:{au+r+1}], v[{au+r}:{au+r+1}], v[{STV+2}:{STV+3}]")
            k(f"v_cvt_pk_bf16_f32 v20, v{ag+r}, v{ag+r+1}", f"v_cvt_pk_bf16_f32 v21, v{au+r}, v{au+r+1}")
            k(f"v_lshlrev_b32 v{ag+r}, 16, v20", f"v_and_b32 v{ag+r+1}, 0xffff0000, v20", f"v_lshlrev_b32 v{au+r}, 16, v21", f"v_and_b32 v{au+r+1}, 0xffff0000, v21")
            k(f"v_pk_mul_f32 v[{ag+r}:{ag+r+1}], v[{ag+r}:{ag+r+1}], v[16:17]")
            k(f"v_exp_f32 v{ag+r}, v{ag+r}", f"v_exp_f32 v{ag+r+1}, v{ag+r+1}", "s_nop 0")
            k(f"v_pk_add_f32 v[{ag+r}:{ag+r+1}], v[{ag+r}:{ag+r+1}], v[18:19]")
            k(f"v_rcp_f32 v{ag+r}, v{ag+r}", f"v_rcp_f32 v{ag+r+1}, v{ag+r+1}", "s_nop 0")
            k(f"v_cvt_pk_bf16_f32 v20, v{ag+r}, v{ag+r+1}")
            k(f"v_lshlrev_b32 v{ag+r}, 16, v20", f"v_and_b32 v{ag+r+1}, 0xffff0000, v20")
            k(f"v_pk_mul_f32 v[{ag+r}:{ag+r+1}], v[{ag+r}:{ag+r+1}], v[{au+r}:{au+r+1}]")
        for g in range(4):
            d = 2 + 2*(g & 3)
            k(f"v_cvt_pk_bf16_f32 v{d}, v{ag+4*g}, v{ag+4*g+1}", f"v_cvt_pk_bf16_f32 v{d+1}, v{ag+4*g+2}, v{ag+4*g+3}")
            k(f"ds_write_b64 v25, v[{d}:{d+1}] offset:{ft*64 + g*16}")
    k("s_waitcnt lgkmcnt(0)")
    n = 0
    for hh in range(2):
        for seg in range(3):
            k(f"ds_read_b128 v[{AC+4*n}:{AC+4*n+3}], v26 offset:{hh*16*208 + seg*64}"); n += 1
    n = 0
    for hh in range(2):
        for seg in range(3):
            k(f"s_waitcnt lgkmcnt({5-n})", f"s_mov_b32 s32, {hh*16*3072}", f"buffer_store_dwordx4 v[{AC+4*n}:{AC+4*n+3}], v28, s[16:19], s32 offen offset:{seg*64}"); n += 1
    k.lab(done)
    k("s_endpgm")
    k.lab(lload)
    k("s_sub_u32 s29, s29, 4")
    act_dma_voffs(k)
    k("s_mul_i32 s32, s29, 192", "s_mov_b32 s33, 43691", "s_mul_i32 s35, s27, 192")
    for j in range(3):
        k(f"v_add_u32 v25, s32, v1", f"v_add_u32 v25, {64*j}, v25" , "v_mul_lo_u32 v26, v25, s33", "v_lshrrev_b32 v26, 19, v26",
          "v_mul_u32_u24 v27, 12, v26", "v_sub_u32 v27, v25, v27", "v_mul_u32_u24 v26, 3072, v26", "v_lshl_add_u32 v26, v27, 4, v26", "v_add_u32 v26, s35, v26",
          f"v_subrev_u32 v{6+j}, {j*1024}, v26")
    k("s_lshl_b32 s34, s29, 12", "s_mul_i32 s31, s29, 3072")
    ptr_srds(k, specs)
    def dma_list(kt):
        st = kt % NST
        L = [f"s_add_u32 m0, s34, {st*STB}", f"s_mov_b32 s35, {kt*128}"]
        L += [f"buffer_load_dwordx4 v{2+j}, s[4:7], s35 offen offset:{j*1024} lds" for j in range(4)]
        L += [f"s_add_u32 m0, s31, {st*STB + 16384}", f"s_mov_b32 s30, {kt*64*3072}"]
        L += [f"buffer_load_dwordx4 v{6+j}, s[8:11], s30 offen offset:{j*1024} lds" for j in range(3)]
        L += [f"s_add_u32 m0, s31, {st*STB + 16384 + 12288}", "s_nop 0"]
        L += [f"buffer_load_dwordx4 v{6+j}, s[12:15], s30 offen offset:{j*1024} lds" for j in range(3)]
        return L
    loader_loop(k, NK, NST, dma_list, 10)
    return k

def gen_out(name, asrc, KK, wsrc, rsrc, dst, stdst, opt=''):
    NK = KK // 128; NST = 4; STB = 36864; AP = KK * 2
    k = K(name, 256, 512, NST*STB)
    done = k.newlab("done"); lload = k.newlab("loader")
    k("s_cmp_ge_u32 s2, 256", f"s_cbranch_scc1 {done}")
    k("s_and_b32 s24, s2, 7", "s_lshr_b32 s25, s2, 3", "s_lshl_b32 s26, s24, 2", "s_and_b32 s27, s25, 3", "s_add_u32 s26, s26, s27", "s_lshr_b32 s27, s25, 2")
    specs = [(4, asrc), (8, wsrc), (12, rsrc), (16, dst)] + ([(20, stdst)] if stdst else [])
    ptr_loads(k, specs)
    k("v_and_b32 v1, 63, v0", "v_lshrrev_b32 v25, 6, v0", "s_nop 0", "v_readfirstlane_b32 s29, v25")
    k("s_nop 3", "s_cmp_ge_u32 s29, 4", f"s_cbranch_scc1 {lload}")
    FB = 32; AC = 104; RS = 184
    k("v_and_b32 v25, 15, v1", "v_lshrrev_b32 v26, 4, v1", "s_lshl_b32 s32, s29, 2", "v_add_u32 v26, s32, v26", "v_xor_b32 v26, v26, v25", "v_lshlrev_b32 v26, 4, v26", "v_lshl_add_u32 v10, v25, 8, v26")
    k("v_lshrrev_b32 v26, 4, v1", "v_lshlrev_b32 v26, 3, v26", "v_bfe_u32 v27, v1, 2, 2", "v_add_u32 v26, v26, v27", "s_lshl_b32 s32, s29, 5", "v_add_u32 v26, s32, v26", "v_mul_u32_u24 v26, 160, v26")
    k("v_and_b32 v27, 3, v1", "v_lshl_add_u32 v26, v27, 3, v26", "v_add_u32 v11, 16384, v26")
    k("s_lshl_b32 s32, s26, 6", "s_lshl_b32 s33, s29, 4", "s_add_u32 s32, s32, s33", "v_add_u32 v28, s32, v25", "v_mul_u32_u24 v29, 1280, v28")
    k("v_lshrrev_b32 v26, 4, v1", "v_lshl_add_u32 v29, v26, 3, v29", "s_mul_i32 s32, s27, 160", "v_add_u32 v29, s32, v29")
    for i in range(AC, AC+80): k(f"v_mov_b32 v{i}, 0")
    ptr_srds(k, specs)
    for ft in range(5): k(f"buffer_load_dwordx2 v[{RS+2*ft}:{RS+2*ft+1}], v29, s[12:15], 0 offen offset:{ft*32}")
    def reads(p):
        fb = FB + 36 * p; L = []
        for tt in range(4): L.append(f"ds_read_b128 v[{fb+4*tt}:{fb+4*tt+3}], v10 offset:{tt*4096}")
        for ft in range(5):
            for r in range(2): L.append(f"ds_read_b64_tr_b16 v[{fb+16+4*ft+2*r}:{fb+17+4*ft+2*r}], v11 offset:{4*r*160 + ft*32}")
        return L
    def mfmas(p):
        fb = FB + 36 * p; L = []
        for ft in range(5):
            for tt in range(4):
                a = AC + (ft*4+tt)*4
                L.append(f"v_mfma_f32_16x16x32_bf16 v[{a}:{a+3}], v[{fb+16+4*ft}:{fb+19+4*ft}], v[{fb+4*tt}:{fb+4*tt+3}], v[{a}:{a+3}]")
        return L
    k("s_barrier")
    k(*reads(0))
    for kt in range(NK):
        k("s_waitcnt lgkmcnt(0)")
        M = mfmas(kt & 1)
        if kt + 1 < NK:
            k(M[0], "s_barrier")
            d = STB if (kt + 1) % NST else -(NST-1)*STB
            for r in (10, 11): k(f"v_add_u32 v{r}, {d & 0xffffffff:#x}, v{r}")
            interleave(k, M[1:], reads((kt+1) & 1), [1]*14 + [0]*5)
        else:
            k(*M)
    k("s_barrier")
    k("v_lshlrev_b32 v25, 4, v1", "s_mul_i32 s32, s29, 20480", "v_add_u32 v26, s32, v25")
    k("s_mul_i32 s32, s29, 5120", "v_add_u32 v27, s32, v25", "v_add_u32 v24, 40960, v27")
    k("s_nop 7")
    lw = [k.newlab("rw") for _ in range(4)]
    for tt in range(4):
        k(f"s_cmp_eq_u32 s29, {tt}", f"s_cbranch_scc1 {lw[tt]}")
        for ft in range(5):
            a = AC + (ft*4+tt)*4
            k(f"ds_write_b128 v26, v[{a}:{a+3}] offset:{(tt*5+ft)*1024}")
        k.lab(lw[tt])
    k("s_waitcnt lgkmcnt(0)", "s_barrier")
    le = k.newlab("e");
    labs = [k.newlab("own") for _ in range(4)]
    for tt in range(4):
        k(f"s_cmp_eq_u32 s29, {tt}", f"s_cbranch_scc1 {labs[tt]}")
    for tt in range(4):
        k.lab(labs[tt])
        for ft in range(5):
            for r in range(4): k(f"v_mov_b32 v{FB+4*ft+r}, v{AC+(ft*4+tt)*4+r}")
        n = 0
        for src in range(4):
            if src == tt: continue
            for ft in range(5):
                k(f"ds_read_b128 v[{AC+4*n}:{AC+4*n+3}], v{27 if src < 2 else 24} offset:{(src&1)*20480 + ft*1024}"); n += 1
        k(f"s_branch {le}")
    k.lab(le)
    k("s_waitcnt lgkmcnt(0) vmcnt(0)")
    for sidx in range(3):
        for ft in range(5):
            for r in range(0, 4, 2):
                k(f"v_pk_add_f32 v[{FB+4*ft+r}:{FB+4*ft+r+1}], v[{FB+4*ft+r}:{FB+4*ft+r+1}], v[{AC+4*(sidx*5+ft)+r}:{AC+4*(sidx*5+ft)+r+1}]")
    for ft in range(5):
        for p in range(2):
            a = FB + 4*ft + 2*p; x = RS + 2*ft + p
            k(f"v_cvt_pk_bf16_f32 v20, v{a}, v{a+1}", f"v_lshlrev_b32 v{a}, 16, v20", f"v_and_b32 v{a+1}, 0xffff0000, v20")
            k(f"v_lshlrev_b32 v21, 16, v{x}", f"v_and_b32 v22, 0xffff0000, v{x}", f"v_add_f32 v{a}, v{a}, v21", f"v_add_f32 v{a+1}, v{a+1}, v22")
            k(f"v_cvt_pk_bf16_f32 v{x}, v{a}, v{a+1}")
            if stdst: k(f"v_lshlrev_b32 v{a}, 16, v{x}", f"v_and_b32 v{a+1}, 0xffff0000, v{x}")
        k(f"buffer_store_dwordx2 v[{RS+2*ft}:{RS+2*ft+1}], v29, s[16:19], 0 offen offset:{ft*32}")
    if stdst:
        def xsum(v, t):
            k(f"v_mov_b32 v{t}, v{v}", "s_nop 1", f"v_permlane16_swap_b32 v{v}, v{t}", f"v_add_f32 v{v}, v{v}, v{t}")
            k(f"v_mov_b32 v{t}, v{v}", "s_nop 1", f"v_permlane32_swap_b32 v{v}, v{t}", f"v_add_f32 v{v}, v{v}, v{t}")
        k(f"v_add_f32 v20, v{FB}, v{FB+1}")
        for i in range(2, 20): k(f"v_add_f32 v20, v20, v{FB+i}")
        xsum(20, 22)
        k("v_mul_f32 v23, 0x3c4ccccd, v20", "v_mov_b32 v21, 0")
        for i in range(20): k(f"v_sub_f32 v22, v{FB+i}, v23", "v_fmac_f32 v21, v22, v22")
        xsum(21, 22)
        k("v_lshlrev_b32 v28, 6, v28", "s_lshl_b32 s32, s27, 3", "v_add_u32 v28, s32, v28")
        k("v_cmp_gt_u32 vcc, 16, v1", "s_and_saveexec_b64 s[46:47], vcc", f"s_cbranch_execz {done}")
        k("buffer_store_dwordx2 v[20:21], v28, s[20:23], 0 offen")
    k.lab(done)
    k("s_endpgm")
    k.lab(lload)
    k("s_sub_u32 s29, s29, 4")
    k("s_lshl_b32 s32, s26, 6", "s_lshl_b32 s33, s29, 4", "s_add_u32 s32, s32, s33", "v_lshrrev_b32 v25, 4, v1", "v_and_b32 v26, 15, v1", f"s_mov_b32 s33, {AP}")
    for jj in range(4):
        k(f"v_add_u32 v27, {4*jj}, v25", "v_xor_b32 v28, v26, v27", "v_add_u32 v27, s32, v27", "v_mul_lo_u32 v27, v27, s33", "v_lshl_add_u32 v27, v28, 4, v27", f"v_subrev_u32 v{2+jj}, {jj*1024}, v27")
    k("s_mul_i32 s32, s29, 320", "s_mov_b32 s33, 52429", "s_mul_i32 s35, s27, 160")
    for j in range(5):
        k("v_add_u32 v25, s32, v1", f"v_add_u32 v25, {64*j}, v25", "v_mul_lo_u32 v26, v25, s33", "v_lshrrev_b32 v26, 19, v26",
          "v_mul_u32_u24 v27, 10, v26", "v_sub_u32 v27, v25, v27", "v_mul_u32_u24 v26, 1280, v26", "v_lshl_add_u32 v26, v27, 4, v26", "v_add_u32 v26, s35, v26",
          f"v_subrev_u32 v{6+j}, {(j if j < 4 else 0)*1024}, v26")
    k("s_lshl_b32 s34, s29, 12", "s_mul_i32 s31, s29, 5120")
    ptr_srds(k, specs)
    def dma_list(kt):
        st = kt % NST
        L = [f"s_add_u32 m0, s34, {st*STB}", f"s_mov_b32 s35, {kt*256}"]
        L += [f"buffer_load_dwordx4 v{2+j}, s[4:7], s35 offen offset:{j*1024} lds" for j in range(4)]
        L += [f"s_add_u32 m0, s31, {st*STB + 16384}", f"s_mov_b32 s30, {kt*128*1280}"]
        L += [f"buffer_load_dwordx4 v{6+j}, s[8:11], s30 offen offset:{j*1024} lds" for j in range(4)]
        L += [f"s_add_u32 m0, s31, {st*STB + 16384 + 4096}", "s_nop 0", "buffer_load_dwordx4 v10, s[8:11], s30 offen lds"]
        return L
    loader_loop(k, NK, NST, dma_list, 9)
    return k

def gen_attn(name, opt=''):
    KB = 0; VB = 512*48
    k = K(name, 256, 512, VB + 512*40 + 128)
    done = k.newlab("done")
    k("s_cmp_ge_u32 s2, 256", f"s_cbranch_scc1 {done}")
    k("s_and_b32 s26, s2, 7", "s_lshr_b32 s27, s2, 3")
    specs = [(4, 'QKV'), (16, 'O')]
    ptr_loads(k, specs)
    k("v_and_b32 v1, 63, v0", "v_lshrrev_b32 v25, 6, v0", "s_nop 0", "v_readfirstlane_b32 s29, v25")
    k("s_lshl_b32 s32, s26, 8", "s_sub_u32 s32, s32, 256", "v_add_u32 v2, s32, v0", "s_mov_b32 s33, 3840", "v_mul_lo_u32 v2, v2, s33")
    k("s_mul_i32 s33, s27, 40", "s_add_u32 s34, s33, 1280", "v_add_u32 v2, s34, v2")
    k("v_and_b32 v3, 31, v1", "s_lshl_b32 s32, s26, 8", "s_lshl_b32 s35, s29, 5", "s_add_u32 s32, s32, s35", "v_add_u32 v4, s32, v3")
    k("v_mul_u32_u24 v5, 3840, v4", "v_add_u32 v5, s33, v5", "v_lshrrev_b32 v6, 5, v1", "v_lshl_add_u32 v7, v6, 4, v5")
    ptr_srds(k, specs)
    k("buffer_load_dwordx4 v[16:19], v2, s[4:7], 0 offen", "buffer_load_dwordx4 v[20:23], v2, s[4:7], 0 offen offset:16", "buffer_load_dwordx2 v[24:25], v2, s[4:7], 0 offen offset:32")
    k("buffer_load_dwordx4 v[28:31], v2, s[4:7], 0 offen offset:1280", "buffer_load_dwordx4 v[32:35], v2, s[4:7], 0 offen offset:1296", "buffer_load_dwordx2 v[36:37], v2, s[4:7], 0 offen offset:1312")
    k("buffer_load_dwordx4 v[8:11], v7, s[4:7], 0 offen", "buffer_load_dwordx2 v[12:13], v5, s[4:7], 0 offen offset:32")
    k("v_mov_b32 v26, 0", "v_mov_b32 v27, 0", "v_mov_b32 v14, 0", "v_mov_b32 v15, 0")
    k("v_mul_u32_u24 v38, 48, v0", "v_mul_u32_u24 v39, 40, v0", f"v_add_u32 v39, {VB}, v39")
    k("s_waitcnt vmcnt(5)")
    k("ds_write_b128 v38, v[16:19]", "ds_write_b128 v38, v[20:23] offset:16", "ds_write_b128 v38, v[24:27] offset:32")
    k("s_waitcnt vmcnt(2)")
    for p in range(5): k(f"ds_write_b64 v39, v[{28+2*p}:{29+2*p}] offset:{8*p}")
    k("s_waitcnt vmcnt(0)")
    k("v_cmp_gt_u32 vcc, 32, v1", "s_nop 1", "v_cndmask_b32 v12, 0, v12, vcc", "v_cndmask_b32 v13, 0, v13, vcc")
    k("v_add_u32 v16, s35, v3", "v_mul_u32_u24 v16, 48, v16", "v_lshl_add_u32 v16, v6, 4, v16")
    k("v_lshlrev_b32 v17, 2, v6", "v_bfe_u32 v18, v1, 2, 2", "v_add_u32 v17, v17, v18", "v_add_u32 v17, s35, v17", "v_mul_u32_u24 v17, 40, v17")
    k("v_bfe_u32 v18, v1, 4, 1", "v_lshl_add_u32 v17, v18, 5, v17", "v_and_b32 v18, 3, v1", "v_lshl_add_u32 v17, v18, 3, v17", f"v_add_u32 v17, {VB}, v17")
    k("v_lshlrev_b32 v18, 2, v6", "v_sub_u32 v18, v3, v18")
    k("s_waitcnt lgkmcnt(0)", "s_barrier")
    S = 64
    KF = 24
    def kread(i):
        b = KF + 8*(i & 1)
        k(f"ds_read_b128 v[{b}:{b+3}], v16 offset:{i*1536}", f"ds_read_b128 v[{b+4}:{b+7}], v16 offset:{i*1536+32}")
    kread(0)
    for i in range(9):
        if i < 8: kread(i+1); k("s_waitcnt lgkmcnt(2)")
        else: k("s_waitcnt lgkmcnt(0)")
        b = KF + 8*(i & 1); a = S + 16*i
        k(f"v_mfma_f32_32x32x16_bf16 v[{a}:{a+15}], v[{b}:{b+3}], v[8:11], 0")
        k(f"v_mfma_f32_32x32x16_bf16 v[{a}:{a+15}], v[{b+4}:{b+7}], v[12:15], v[{a}:{a+15}]")
    k("s_nop 7", "s_nop 7")
    k("v_mov_b32 v40, 0x3e64f92e", "v_mov_b32 v41, 0x3e64f92e")
    for r in range(S, S+144, 2):
        k(f"v_cvt_pk_bf16_f32 v42, v{r}, v{r+1}", f"v_lshlrev_b32 v{r}, 16, v42", f"v_and_b32 v{r+1}, 0xffff0000, v42")
        k(f"v_pk_mul_f32 v[{r}:{r+1}], v[{r}:{r+1}], v[40:41]")
        k(f"v_cvt_pk_bf16_f32 v42, v{r}, v{r+1}", f"v_lshlrev_b32 v{r}, 16, v42", f"v_and_b32 v{r+1}, 0xffff0000, v42")
    k("v_mov_b32 v43, 0xce6e6b28")
    for g in range(4):
        for r in range(4):
            c = 8*g + r
            k(f"v_cmp_le_i32 vcc, {c}, v18", "s_nop 1")
            k(f"v_cndmask_b32 v{S+128+4*g+r}, v43, v{S+128+4*g+r}, vcc", f"v_cndmask_b32 v{S+4*g+r}, v{S+4*g+r}, v43, vcc")
    lq = k.newlab("q0")
    k("s_cmp_lg_u32 s26, 0", f"s_cbranch_scc1 {lq}")
    for i in range(8):
        ls = k.newlab("sk")
        k(f"s_add_u32 s32, s29, {i}", "s_cmp_ge_u32 s32, 8", f"s_cbranch_scc1 {ls}")
        for r in range(16): k(f"v_mov_b32 v{S+16*i+r}, v43")
        k.lab(ls)
    k.lab(lq)
    k(f"v_max3_f32 v44, v{S}, v{S+1}, v{S+2}")
    for r in range(S+3, S+143, 2): k(f"v_max3_f32 v44, v44, v{r}, v{r+1}")
    k(f"v_max_f32 v44, v44, v{S+143}")
    k("v_mov_b32 v45, v44", "s_nop 1", "v_permlane32_swap_b32 v44, v45", "v_max_f32 v44, v44, v45")
    k("v_mov_b32 v40, 0x3fb8aa3b", "v_mov_b32 v41, 0x3fb8aa3b", "v_mul_f32 v44, 0xbfb8aa3b, v44", "v_mov_b32 v45, v44", "v_mov_b32 v46, 0", "v_mov_b32 v47, 0")
    for r in range(S, S+144, 2):
        k(f"v_pk_fma_f32 v[{r}:{r+1}], v[{r}:{r+1}], v[40:41], v[44:45]")
        k(f"v_exp_f32 v{r}, v{r}", f"v_exp_f32 v{r+1}, v{r+1}")
        if r > S: k(f"v_pk_add_f32 v[46:47], v[46:47], v[{r-2}:{r-1}]")
    k("s_nop 0", f"v_pk_add_f32 v[46:47], v[46:47], v[{S+142}:{S+143}]")
    k("v_add_f32 v46, v46, v47", "v_mov_b32 v47, v46", "s_nop 1", "v_permlane32_swap_b32 v46, v47", "v_add_f32 v46, v46, v47")
    k("v_rcp_f32 v46, v46", "s_nop 0", "v_mov_b32 v47, v46")
    for i in range(9):
        for q in range(8):
            r = S + 16*i + 2*q
            k(f"v_pk_mul_f32 v[{r}:{r+1}], v[{r}:{r+1}], v[46:47]", f"v_cvt_pk_bf16_f32 v{S+16*i+q}, v{r}, v{r+1}")
    OA = 208; VF = 24
    def vread(i):
        b = VF + 8*(i & 1)
        for m in range(2):
            for r in range(2):
                k(f"ds_read_b64_tr_b16 v[{b+4*m+2*r}:{b+4*m+2*r+1}], v17 offset:{(32*i+16*m+8*r)*40}")
    vread(0)
    for i in range(9):
        if i < 8: vread(i+1); k("s_waitcnt lgkmcnt(4)")
        else: k("s_waitcnt lgkmcnt(0)")
        b = VF + 8*(i & 1); p = S + 16*i
        for m in range(2):
            c = "0" if (i == 0 and m == 0) else f"v[{OA}:{OA+15}]"
            k(f"v_mfma_f32_32x32x16_bf16 v[{OA}:{OA+15}], v[{b+4*m}:{b+4*m+3}], v[{p+4*m}:{p+4*m+3}], {c}")
    k("v_mul_u32_u24 v5, 1280, v4", "v_add_u32 v5, s33, v5", "v_lshl_add_u32 v5, v6, 3, v5")
    k("s_nop 7", "s_nop 7")
    for g in range(3):
        k(f"v_cvt_pk_bf16_f32 v{40+2*g}, v{OA+4*g}, v{OA+4*g+1}", f"v_cvt_pk_bf16_f32 v{41+2*g}, v{OA+4*g+2}, v{OA+4*g+3}")
    k("buffer_store_dwordx2 v[40:41], v5, s[16:19], 0 offen", "buffer_store_dwordx2 v[42:43], v5, s[16:19], 0 offen offset:16")
    k("v_cmp_gt_u32 vcc, 32, v1", "s_and_saveexec_b64 s[46:47], vcc", f"s_cbranch_execz {done}")
    k("buffer_store_dwordx2 v[44:45], v5, s[16:19], 0 offen offset:32")
    k.lab(done)
    k("s_endpgm")
    return k

def build(kernels, launches, path):
    hdr = []
    for kn in launches:
        hdr.append(f"; @launch kernel={kn.name} grid=({kn.grid},1,1) block=({kn.block},1,1) lds={kn.lds}")
    out = "\n".join(hdr) + "\n.amdgcn_target \"amdgcn-amd-amdhsa--gfx950\"\n.text\n"
    out += "\n".join(kn.text() for kn in kernels)
    out += "\n.section .rodata,\"a\"\n" + "\n".join(kn.desc() for kn in kernels) + "\n"
    open(path, "w").write(out)
    json.dump(WS, open("layout.json", "w"))

if __name__ == "__main__":
    prep = gen_prep("prep_kernel"); attn = gen_attn("attn_kernel")
    q1 = gen_qkv("qkv1_kernel", 'x', 'STX'); q2 = gen_qkv("qkv2_kernel", 'XB', 'STB')
    w1 = gen_out("wo1_kernel", 'O', 640, 'wo', 'x', 'XA', 'STA'); w2 = gen_out("wo2_kernel", 'O', 640, 'wo', 'XB', 'XA', 'STA')
    glu = gen_glu("glu_kernel", 'XA', 'STA')
    d1 = gen_out("dn1_kernel", 'H', 1536, 'wd', 'XA', 'XB', 'STB'); d2 = gen_out("dn2_kernel", 'H', 1536, 'wd', 'XA', 'out', None)
    ks = [prep, q1, attn, w1, glu, d1, q2, w2, d2]
    build(ks, [prep, q1, attn, w1, glu, d1, q2, attn, w2, glu, d2], "interleave_layers__sliding_block__glu_gated_glu__prompt.s")
```

```python
import json, sys

WS = dict(QKV=0x0, O=0x800000, XA=0xB00000, XB=0xE00000, H=0x1100000, STX=0x1800000, STA=0x1840000, STB=0x1880000, CS=0x18C0000,
          WQ=0x1A00000, WGU=0x1D00000, WO=0x2100000, WD=0x2200000)
SZ = dict(QKV=2048*1920*2, O=2048*640*2, XA=2048*640*2, XB=2048*640*2, H=2048*1536*2, STX=2048*64, STA=2048*64, STB=2048*64, CS=5120*4,
          WQ=16*640*256, WGU=16*640*384, WO=8*640*160, WD=8*1536*160)
KA = dict(x=0, wqkv=8, wo=16, bx=24, wg=32, wu=40, wd=48, out=56, dbg=64, ws=72)
INSZ = dict(x=2048*640*2, wqkv=640*1920*2, wo=640*640*2, wg=640*1536*2, wu=640*1536*2, wd=1536*640*2, out=2048*640*2)

class K:
    def __init__(s, name, grid, block, lds, vgpr=256, sgpr=96):
        s.name = name; s.L = []; s.grid = grid; s.block = block; s.lds = lds; s.vgpr = vgpr; s.sgpr = sgpr
        s.lc = 0
    def __call__(s, *ts):
        for t in ts: s.L.append("    " + t)
    def lab(s, l): s.L.append(l + ":")
    def newlab(s, p="L"):
        s.lc += 1; return f"{p}_{s.name}_{s.lc}"
    def text(s):
        out = [f".globl {s.name}", ".p2align 8", f".type {s.name},@function", f"{s.name}:"]
        out += s.L
        return "\n".join(out)
    def desc(s):
        acc = (s.vgpr + 3) // 4 * 4
        return "\n".join([".p2align 6", f".amdhsa_kernel {s.name}", f"  .amdhsa_next_free_vgpr {s.vgpr}",
            f"  .amdhsa_next_free_sgpr {s.sgpr}", f"  .amdhsa_accum_offset {acc}", "  .amdhsa_group_segment_fixed_size 0",
            "  .amdhsa_kernarg_size 80", "  .amdhsa_user_sgpr_count 2", "  .amdhsa_user_sgpr_kernarg_segment_ptr 1",
            "  .amdhsa_system_sgpr_workgroup_id_x 1", ".end_amdhsa_kernel"])

PT = 72
def ptr_loads(k, specs):
    for i, (sreg, name) in enumerate(specs):
        off = KA['ws'] if name in WS else KA[name]
        k(f"s_load_dwordx2 s[{PT+2*i}:{PT+2*i+1}], s[0:1], {off}")
def ptr_srds(k, specs):
    k("s_waitcnt lgkmcnt(0)")
    for i, (sreg, name) in enumerate(specs):
        t = PT + 2*i
        if name in WS:
            k(f"s_add_u32 s{sreg}, s{t}, {WS[name]:#x}", f"s_addc_u32 s{sreg+1}, s{t+1}, 0", f"s_mov_b32 s{sreg+2}, {SZ[name]}")
        else:
            k(f"s_mov_b32 s{sreg}, s{t}", f"s_mov_b32 s{sreg+1}, s{t+1}", f"s_mov_b32 s{sreg+2}, {INSZ[name]}")
        k(f"s_and_b32 s{sreg+1}, s{sreg+1}, 0xffff", f"s_mov_b32 s{sreg+3}, 0x00020000")
def load_ptrs(k, specs):
    ptr_loads(k, specs); ptr_srds(k, specs)

def stamp(k, i):
    k(f"s_memtime s[{40+2*i}:{41+2*i}]")
def stamps_out(k, n, wg=0):
    lab = k.newlab("nost")
    k("s_waitcnt lgkmcnt(0)")
    k(f"s_cmp_lg_u32 s2, {wg}", f"s_cbranch_scc1 {lab}")
    k("s_cmp_lg_u32 s29, 0", f"s_cbranch_scc1 {lab}")
    k("s_load_dwordx2 s[64:65], s[0:1], 64", "s_waitcnt lgkmcnt(0)")
    k("s_and_b32 s65, s65, 0xffff", "s_mov_b32 s66, 256", "s_mov_b32 s67, 0x00020000")
    k("v_mov_b32 v1, 0")
    for i in range(n):
        k(f"s_sub_u32 s{41+2*i}, s{40+2*i}, s40")
        k(f"v_mov_b32 v2, s{41+2*i}")
        k(f"buffer_store_dword v2, v1, s[64:67], 0 offen offset:{4*i}")
    k.lab(lab)

def rne_bf16(k, dst, src):
    k(f"v_cvt_pk_bf16_f32 v{dst}, v{src}, v{src}")
    k(f"v_lshlrev_b32 v{dst}, 16, v{dst}")

def finish_stats(k, vmean, vvar, vm_out, vrs_out):
    rne_bf16(k, vm_out, vmean)
    rne_bf16(k, vrs_out, vvar)
    k(f"v_add_f32 v{vrs_out}, 0x3727c5ac, v{vrs_out}")
    rne_bf16(k, vrs_out, vrs_out)
    k(f"v_sqrt_f32 v{vrs_out}, v{vrs_out}", "s_nop 0")
    rne_bf16(k, vrs_out, vrs_out)
    k(f"v_rcp_f32 v{vrs_out}, v{vrs_out}", "s_nop 0")

def merge_stats(k, base, t0, vm_out, vrs_out):
    a, b, c, d = t0, t0+1, t0+2, t0+3
    k(f"v_add_f32 v{a}, v{base}, v{base+2}")
    for i in range(2, 8): k(f"v_add_f32 v{a}, v{a}, v{base+2*i}")
    k(f"v_mul_f32 v{a}, 0x3acccccd, v{a}")
    k(f"v_add_f32 v{b}, v{base+1}, v{base+3}")
    for i in range(2, 8): k(f"v_add_f32 v{b}, v{b}, v{base+1+2*i}")
    k(f"v_mov_b32 v{c}, 0")
    for i in range(8):
        k(f"v_mul_f32 v{d}, 0x3c4ccccd, v{base+2*i}", f"v_sub_f32 v{d}, v{d}, v{a}", f"v_fmac_f32 v{c}, v{d}, v{d}")
    k(f"v_mov_b32 v{d}, 0x42a00000", f"v_fmac_f32 v{b}, v{c}, v{d}", f"v_mul_f32 v{b}, 0x3acccccd, v{b}")
    finish_stats(k, a, b, vm_out, vrs_out)

def interleave(k, mf, fill, per):
    fi = 0
    for i, m in enumerate(mf):
        k(m)
        for _ in range(per[i]):
            if fi < len(fill): k(fill[fi]); fi += 1
    while fi < len(fill): k(fill[fi]); fi += 1

def xcd_map16(k, nnt):
    k("s_and_b32 s24, s2, 7", "s_lshr_b32 s25, s2, 3")
    k("s_lshr_b32 s26, s24, 1", "s_lshl_b32 s26, s26, 2", "s_and_b32 s27, s25, 3", "s_add_u32 s26, s26, s27")
    k("s_and_b32 s27, s24, 1", "s_lshl_b32 s27, s27, 3", "s_lshr_b32 s28, s25, 2", "s_add_u32 s27, s27, s28")

def gen_prep(name):
    NWG = 64 + 78 + 160 + 160 + 40 + 96
    k = K(name, NWG, 256, 4096, vgpr=128)
    done = k.newlab("done"); lcs = k.newlab("cs"); lwq = k.newlab("wq"); lgu = k.newlab("gu"); lod = k.newlab("od")
    specs = [(4, 'x'), (8, 'wqkv'), (12, 'wg'), (16, 'wu'), (20, 'STX'), (24, 'CS'), (28, 'wo'), (32, 'wd'), (48, 'WQ'), (52, 'WGU'), (56, 'WO'), (60, 'WD')]
    global PT
    PT = 68
    ptr_loads(k, specs)
    k(f"s_cmp_ge_u32 s2, {NWG}", f"s_cbranch_scc1 {done}")
    ptr_srds(k, specs)
    PT = 72
    k("s_cmp_ge_u32 s2, 462", f"s_cbranch_scc1 {lod}")
    k("s_cmp_ge_u32 s2, 302", f"s_cbranch_scc1 {lgu}")
    k("s_cmp_ge_u32 s2, 142", f"s_cbranch_scc1 {lwq}")
    k("s_cmp_ge_u32 s2, 64", f"s_cbranch_scc1 {lcs}")
    k("s_lshl_b32 s36, s2, 8", "v_add_u32 v1, s36, v0", "v_mul_u32_u24 v2, 160, v1")
    for i in range(10): k(f"buffer_load_dwordx4 v[{16+4*i}:{19+4*i}], v2, s[4:7], 0 offen offset:{16*i}")
    k("s_waitcnt vmcnt(0)")
    k("v_mov_b32 v4, 0", "v_mov_b32 v5, 0")
    for i in range(40):
        k(f"v_lshlrev_b32 v6, 16, v{16+i}", f"v_and_b32 v7, 0xffff0000, v{16+i}", "v_add_f32 v4, v4, v6", "v_add_f32 v5, v5, v7")
    k("v_add_f32 v4, v4, v5", "v_mul_f32 v8, 0x3c4ccccd, v4", "v_mov_b32 v5, 0", "v_mov_b32 v9, 0")
    for i in range(40):
        k(f"v_lshlrev_b32 v6, 16, v{16+i}", f"v_and_b32 v7, 0xffff0000, v{16+i}", "v_sub_f32 v6, v6, v8", "v_sub_f32 v7, v7, v8",
          "v_fmac_f32 v5, v6, v6", "v_fmac_f32 v9, v7, v7")
    k("v_add_f32 v5, v5, v9", "v_lshlrev_b32 v1, 3, v1")
    k("buffer_store_dwordx2 v[4:5], v1, s[20:23], 0 offen")
    k(f"s_branch {done}")
    k.lab(lcs)
    k("s_sub_u32 s36, s2, 64")
    k("s_mov_b32 s37, 3840", "s_mov_b32 s38, 0", "s_mov_b64 s[40:41], s[8:9]", "s_mov_b32 s42, s10", "s_mov_b32 s39, s36")
    l1 = k.newlab("m")
    k("s_cmp_lt_u32 s36, 30", f"s_cbranch_scc1 {l1}")
    k("s_mov_b32 s37, 3072", "s_mov_b32 s38, 2048", "s_mov_b64 s[40:41], s[12:13]", "s_mov_b32 s42, s14", "s_sub_u32 s39, s36, 30")
    k("s_cmp_lt_u32 s36, 54", f"s_cbranch_scc1 {l1}")
    k("s_mov_b32 s38, 3584", "s_mov_b64 s[40:41], s[16:17]", "s_sub_u32 s39, s36, 54")
    k.lab(l1)
    k("s_mov_b32 s43, 0x00020000")
    k("v_lshrrev_b32 v1, 4, v0", "v_mul_u32_u24 v1, 40, v1", "v_mul_lo_u32 v1, v1, s37", "v_and_b32 v2, 15, v0", "v_lshl_add_u32 v1, v2, 3, v1")
    k("s_lshl_b32 s44, s39, 7", "v_add_u32 v1, s44, v1", "s_mov_b32 s45, 0")
    for r in range(40):
        k(f"buffer_load_dwordx2 v[{16+2*r}:{17+2*r}], v1, s[40:43], s45 offen", "s_add_u32 s45, s45, s37")
    for a in range(4): k(f"v_mov_b32 v{4+a}, 0")
    k("s_waitcnt vmcnt(0)")
    for r in range(40):
        k(f"v_lshlrev_b32 v8, 16, v{16+2*r}", f"v_and_b32 v9, 0xffff0000, v{16+2*r}", f"v_lshlrev_b32 v10, 16, v{17+2*r}", f"v_and_b32 v11, 0xffff0000, v{17+2*r}",
          "v_add_f32 v4, v4, v8", "v_add_f32 v5, v5, v9", "v_add_f32 v6, v6, v10", "v_add_f32 v7, v7, v11")
    k("v_lshlrev_b32 v2, 4, v0", "ds_write_b128 v2, v[4:7]", "s_waitcnt lgkmcnt(0)", "s_barrier")
    k("v_and_b32 v3, 63, v0", "v_lshlrev_b32 v2, 2, v3")
    for g in range(16): k(f"ds_read_b32 v{16+g}, v2 offset:{g*256}")
    k("s_waitcnt lgkmcnt(0)")
    for g in range(1, 16): k(f"v_add_f32 v16, v16, v{16+g}")
    k("s_lshl_b32 s44, s39, 6", "v_add_u32 v3, s44, v3", "v_add_u32 v2, s38, v3")
    l2 = k.newlab("nq")
    k("s_cmp_lg_u32 s38, 0", f"s_cbranch_scc1 {l2}")
    k("s_mov_b32 s44, 52429", "v_mul_lo_u32 v4, v3, s44", "v_lshrrev_b32 v4, 20, v4")
    k("v_mul_u32_u24 v5, 20, v4", "v_sub_u32 v5, v3, v5")
    k("v_lshrrev_b32 v6, 5, v4", "v_and_b32 v4, 31, v4")
    k("v_mul_u32_u24 v6, 20, v6", "v_add_u32 v5, v5, v6", "v_lshl_add_u32 v2, v4, 6, v5")
    k.lab(l2)
    k("v_lshlrev_b32 v2, 2, v2")
    k("v_cmp_gt_u32 vcc, 64, v0", "s_and_saveexec_b64 s[46:47], vcc", f"s_cbranch_execz {done}")
    k("buffer_store_dword v16, v2, s[24:27], 0 offen")
    k(f"s_branch {done}")
    k.lab(lwq)
    k("s_sub_u32 s36, s2, 142", "s_mul_hi_u32 s37, s36, 0x1999999a", "s_mul_i32 s38, s37, 10", "s_sub_u32 s38, s36, s38")
    k("v_lshrrev_b32 v1, 5, v0", "v_and_b32 v2, 31, v0", "v_lshrrev_b32 v3, 1, v2", "v_and_b32 v4, 3, v1", "v_lshlrev_b32 v4, 2, v4", "v_xor_b32 v3, v3, v4")
    k("v_and_b32 v4, 1, v2", "v_lshl_add_u32 v3, v3, 1, v4")
    k("v_lshrrev_b32 v4, 4, v3", "v_and_b32 v3, 15, v3")
    k("v_mul_u32_u24 v5, 52, v3", "v_lshrrev_b32 v5, 8, v5")
    k("v_mul_u32_u24 v6, 5, v5", "v_sub_u32 v6, v3, v6")
    k("s_lshl_b32 s39, s37, 1", "v_add_u32 v4, s39, v4", "v_mul_u32_u24 v4, 40, v4", "v_mul_u32_u24 v5, 1280, v5", "v_add_u32 v4, v4, v5", "v_lshl_add_u32 v4, v6, 3, v4")
    k("s_lshl_b32 s39, s38, 6", "v_add_u32 v1, s39, v1", "v_mul_u32_u24 v1, 3840, v1", "v_add_u32 v1, v1, v4")
    k("v_cmp_eq_u32 vcc, 15, v3", "v_mov_b32 v5, 0x7ffffff0", "s_nop 0", "v_cndmask_b32 v1, v1, v5, vcc")
    for i in range(8): k(f"s_mov_b32 s39, {i*8*3840}", f"buffer_load_dwordx2 v[{16+2*i}:{17+2*i}], v1, s[8:11], s39 offen")
    k("s_lshl_b32 s39, s36, 14", "v_lshlrev_b32 v2, 3, v0")
    for i in range(8): k(f"s_waitcnt vmcnt({7-i})", f"buffer_store_dwordx2 v[{16+2*i}:{17+2*i}], v2, s[48:51], s39 offen offset:{i*2048}" if i < 2 else None) if False else None
    for i in range(8):
        k(f"s_waitcnt vmcnt({7-i})", f"s_add_u32 s40, s39, {i*2048}", f"buffer_store_dwordx2 v[{16+2*i}:{17+2*i}], v2, s[48:51], s40 offen")
    k(f"s_branch {done}")
    k.lab(lgu)
    k("s_sub_u32 s36, s2, 302", "s_mul_hi_u32 s37, s36, 0x1999999a", "s_mul_i32 s38, s37, 10", "s_sub_u32 s38, s36, s38")
    k("s_mov_b32 s40, 43691", "s_mul_i32 s41, s37, 192", "s_mul_i32 s42, s38, 196608", "s_add_u32 s41, s41, s42")
    for j in range(3):
        k(f"v_add_u32 v1, {256*j}, v0", "v_mul_lo_u32 v2, v1, s40", "v_lshrrev_b32 v2, 19, v2", "v_mul_u32_u24 v3, 12, v2", "v_sub_u32 v3, v1, v3",
          "v_mul_u32_u24 v2, 3072, v2", "v_lshl_add_u32 v2, v3, 4, v2")
        k(f"buffer_load_dwordx4 v[{16+4*j}:{19+4*j}], v2, s[12:15], s41 offen", f"buffer_load_dwordx4 v[{32+4*j}:{35+4*j}], v2, s[16:19], s41 offen")
    k("s_mul_i32 s39, s36, 24576", "v_lshlrev_b32 v2, 4, v0", "s_waitcnt vmcnt(0)")
    for j in range(3):
        k(f"s_add_u32 s40, s39, {j*4096}", f"buffer_store_dwordx4 v[{16+4*j}:{19+4*j}], v2, s[52:55], s40 offen")
        k(f"s_add_u32 s40, s39, {12288+j*4096}", f"buffer_store_dwordx4 v[{32+4*j}:{35+4*j}], v2, s[52:55], s40 offen")
    k(f"s_branch {done}")
    k.lab(lod)
    k("s_sub_u32 s36, s2, 462")
    k("s_mul_hi_u32 s37, s36, 0x33333334", "s_mul_i32 s38, s37, 5", "s_sub_u32 s38, s36, s38")
    k("s_mov_b64 s[40:41], s[28:29]", "s_mov_b32 s42, s30", "s_mov_b64 s[44:45], s[56:57]", "s_mov_b32 s46, s58", "s_mov_b32 s39, s36")
    l3 = k.newlab("isd")
    k("s_cmp_lt_u32 s36, 40", f"s_cbranch_scc1 {l3}")
    k("s_sub_u32 s39, s36, 40", "s_mul_hi_u32 s37, s39, 0x15555556", "s_mul_i32 s38, s37, 12", "s_sub_u32 s38, s39, s38")
    k("s_mov_b64 s[40:41], s[32:33]", "s_mov_b32 s42, s34", "s_mov_b64 s[44:45], s[60:61]", "s_mov_b32 s46, s62")
    k.lab(l3)
    k("s_mov_b32 s43, 0x00020000", "s_mov_b32 s47, 0x00020000")
    k("s_mov_b32 s64, 52429", "s_mul_i32 s65, s37, 160", "s_mul_i32 s66, s38, 163840", "s_add_u32 s65, s65, s66")
    for j in range(5):
        k(f"v_add_u32 v1, {256*j}, v0", "v_mul_lo_u32 v2, v1, s64", "v_lshrrev_b32 v2, 19, v2", "v_mul_u32_u24 v3, 10, v2", "v_sub_u32 v3, v1, v3",
          "v_mul_u32_u24 v2, 1280, v2", "v_lshl_add_u32 v2, v3, 4, v2")
        k(f"buffer_load_dwordx4 v[{16+4*j}:{19+4*j}], v2, s[40:43], s65 offen")
    k("s_mul_i32 s39, s39, 20480", "v_lshlrev_b32 v2, 4, v0", "s_waitcnt vmcnt(0)")
    for j in range(5):
        k(f"s_add_u32 s64, s39, {j*4096}", f"buffer_store_dwordx4 v[{16+4*j}:{19+4*j}], v2, s[44:47], s64 offen")
    k.lab(done)
    k("s_endpgm")
    return k

def loader_loop(k, NK, NST, dma_list, per):
    issued = -1
    def issue(upto):
        nonlocal issued
        while issued < min(upto, NK - 1):
            issued += 1; k(*dma_list(issued))
    issue(1)
    for kt in range(NK):
        k(f"s_waitcnt vmcnt({per*(issued-kt)})", "s_barrier")
        issue(kt + NST - 1)
    k("s_endpgm")

def act_dma_voffs(k, rows_per_wave=32):
    k("s_lshl_b32 s32, s26, 7", "s_lshl_b32 s33, s29, 5", "s_add_u32 s32, s32, s33")
    k("v_lshrrev_b32 v25, 3, v1", "v_add_u32 v25, s32, v25", "v_mul_u32_u24 v25, 1280, v25")
    k("v_and_b32 v26, 7, v1", "v_lshrrev_b32 v27, 4, v1", "v_xor_b32 v26, v26, v27", "v_lshlrev_b32 v26, 4, v26")
    k("v_xor_b32 v27, 64, v26")
    for j in range(4):
        k(f"v_add_u32 v{2+j}, v25, v{26 + (j&1)}")
        if j: k(f"v_add_u32 v{2+j}, {j*(8*1280-1024)}, v{2+j}")

def gen_qkv(name, xsrc, statsrc, opt=''):
    NK = 10; NST = 4; STB = 32768
    k = K(name, 256, 512, NST*STB)
    done = k.newlab("done"); lload = k.newlab("loader")
    k("s_cmp_ge_u32 s2, 256", f"s_cbranch_scc1 {done}")
    xcd_map16(k, 15)
    if 'stamp' in opt: stamp(k, 0)
    specs = [(4, xsrc), (8, 'WQ'), (16, 'QKV'), (20, statsrc), (12, 'CS')]
    ptr_loads(k, specs)
    k("v_and_b32 v1, 63, v0", "v_lshrrev_b32 v25, 6, v0", "s_nop 0", "v_readfirstlane_b32 s29, v25")
    k("s_nop 3", "s_cmp_ge_u32 s29, 4", f"s_cbranch_scc1 {lload}")
    k("s_and_b32 s30, s29, 1", "s_lshr_b32 s31, s29, 1")
    k("v_and_b32 v25, 31, v1", "s_lshl_b32 s32, s26, 7", "s_lshl_b32 s33, s31, 6", "s_add_u32 s32, s32, s33", "v_add_u32 v28, s32, v25")
    k("v_lshlrev_b32 v29, 6, v28")
    k("v_lshrrev_b32 v30, 5, v1", "v_lshlrev_b32 v30, 4, v30", "s_lshl_b32 s32, s27, 9", "s_lshl_b32 s33, s30, 8", "s_add_u32 s32, s32, s33", "v_add_u32 v30, s32, v30")
    k("v_and_b32 v25, 31, v1", "s_lshl_b32 s32, s31, 6", "v_add_u32 v26, s32, v25", "v_lshlrev_b32 v26, 7, v26")
    k("v_lshrrev_b32 v25, 1, v25", "v_and_b32 v25, 7, v25", "v_lshrrev_b32 v27, 5, v1", "v_xor_b32 v25, v25, v27")
    for s in range(4):
        k(f"v_xor_b32 v27, {2*s}, v25", f"v_lshl_add_u32 v{10+s}, v27, 4, v26")
    k("v_lshrrev_b32 v25, 5, v1", "v_lshlrev_b32 v25, 3, v25", "v_bfe_u32 v26, v1, 2, 2", "v_add_u32 v25, v25, v26", "v_lshlrev_b32 v25, 8, v25")
    k("v_bfe_u32 v27, v1, 4, 1", "v_lshl_add_u32 v25, v27, 5, v25", "v_and_b32 v27, 3, v1", "v_lshl_add_u32 v25, v27, 3, v25", "v_add_u32 v25, 16384, v25")
    k("s_lshl_b32 s32, s30, 1")
    for ft in range(2):
        k(f"s_add_u32 s33, s32, {ft}", "v_xor_b32 v27, s33, v26", f"v_lshl_add_u32 v{14+ft}, v27, 6, v25")
    for i in range(64, 128): k(f"v_mov_b32 v{i}, 0")
    ptr_srds(k, specs)
    for tt in range(2):
        for i in range(4): k(f"buffer_load_dwordx4 v[{160+16*tt+4*i}:{163+16*tt+4*i}], v29, s[20:23], 0 offen offset:{tt*2048+16*i}")
    for ft in range(2):
        for g in range(4): k(f"buffer_load_dwordx4 v[{128+16*ft+4*g}:{131+16*ft+4*g}], v30, s[12:15], 0 offen offset:{ft*128+g*32}")
    if 'stamp' in opt: stamp(k, 1)
    def reads(s):
        fb = 32 + 16 * (s & 1); L = []
        for tt in range(2): L.append(f"ds_read_b128 v[{fb+4*tt}:{fb+4*tt+3}], v{10+s} offset:{tt*4096}")
        for ft in range(2):
            for r in range(2):
                L.append(f"ds_read_b64_tr_b16 v[{fb+8+4*ft+2*r}:{fb+8+4*ft+2*r+1}], v{14+ft} offset:{(16*s+4*r)*256}")
        return L
    def mfmas(s):
        fb = 32 + 16 * (s & 1); L = []
        for ft in range(2):
            for tt in range(2):
                a = 64 + (ft*2+tt)*16
                L.append(f"v_mfma_f32_32x32x16_bf16 v[{a}:{a+15}], v[{fb+8+4*ft}:{fb+8+4*ft+3}], v[{fb+4*tt}:{fb+4*tt+3}], v[{a}:{a+15}]")
        return L
    k("s_barrier")
    if 'stamp' in opt: stamp(k, 2)
    k(*reads(0))
    for kt in range(NK):
        for s in range(4):
            k("s_waitcnt lgkmcnt(0)")
            M = mfmas(s)
            if s < 3:
                interleave(k, M, reads(s+1), [2, 2, 2, 0])
            elif kt + 1 < NK:
                k(M[0], "s_barrier")
                d = STB if (kt + 1) % NST else -(NST-1)*STB
                for r in range(10, 16): k(f"v_add_u32 v{r}, {d & 0xffffffff:#x}, v{r}")
                interleave(k, M[1:], reads(0), [2, 2, 2])
            else:
                k(*M)
        if kt == 3:
            k("s_waitcnt vmcnt(8)")
            for tt in range(2):
                merge_stats(k, 160+16*tt, 16, 192+4*tt, 194+4*tt)
                k(f"v_mov_b32 v{193+4*tt}, v{192+4*tt}", f"v_mov_b32 v{195+4*tt}, v{194+4*tt}")
    if 'stamp' in opt: stamp(k, 3)
    k("s_barrier")
    k("s_mul_i32 s32, s29, 9216")
    k("v_and_b32 v25, 31, v1", "v_mul_u32_u24 v25, 144, v25", "v_lshrrev_b32 v26, 5, v1", "v_lshl_add_u32 v25, v26, 3, v25", "v_add_u32 v25, s32, v25")
    k("s_mov_b32 s33, 52429")
    for n in range(5):
        k(f"v_add_u32 v26, {64*n}, v1", "v_mul_lo_u32 v27, v26, s33", "v_lshrrev_b32 v27, 18, v27", "v_mul_u32_u24 v28, 5, v27", "v_sub_u32 v28, v26, v28",
          "v_mul_u32_u24 v27, 144, v27", "v_lshl_add_u32 v27, v28, 3, v27", f"v_add_u32 v{2+n}, s32, v27")
    k("v_lshlrev_b32 v28, 3, v1", "s_lshl_b32 s32, s27, 1", "s_add_u32 s32, s32, s30", "s_mul_i32 s32, s32, 81920", "s_lshl_b32 s33, s26, 1", "s_add_u32 s33, s33, s31", "s_mul_i32 s33, s33, 2560", "s_add_u32 s32, s32, s33")
    k("s_waitcnt vmcnt(0)", "s_nop 4")
    for tt in range(2):
        for ft in range(2):
            a = 64 + (ft*2+tt)*16; vm = 192 + 4*tt; vr = 194 + 4*tt
            for r in range(0, 16, 2):
                k(f"v_pk_fma_f32 v[{a+r}:{a+r+1}], v[{vm}:{vm+1}], v[{128+ft*16+r}:{129+ft*16+r}], v[{a+r}:{a+r+1}] neg_lo:[1,0,0] neg_hi:[1,0,0]")
                k(f"v_pk_mul_f32 v[{a+r}:{a+r+1}], v[{a+r}:{a+r+1}], v[{vr}:{vr+1}]")
            for g in range(4):
                d = 32 + 2*((ft*4+g) % 8)
                k(f"v_cvt_pk_bf16_f32 v{d}, v{a+4*g}, v{a+4*g+1}", f"v_cvt_pk_bf16_f32 v{d+1}, v{a+4*g+2}, v{a+4*g+3}")
                k(f"ds_write_b64 v25, v[{d}:{d+1}] offset:{tt*32*144 + ft*64 + g*16}")
    k("s_waitcnt lgkmcnt(0)")
    for wh in range(3):
        for n in range(5): k(f"ds_read_b64 v[{64+2*(wh*5+n)}:{65+2*(wh*5+n)}], v{2+n} offset:{wh*40}")
    for wh in range(3):
        k(f"s_add_u32 s33, s32, {wh*32*81920}")
        for n in range(5):
            i = wh*5+n
            k(f"s_waitcnt lgkmcnt({14-i})", f"buffer_store_dwordx2 v[{64+2*i}:{65+2*i}], v28, s[16:19], s33 offen offset:{n*512}")
    if 'stamp' in opt:
        stamp(k, 4); k("s_waitcnt vmcnt(0)"); stamp(k, 5); stamps_out(k, 6, 17)
    k.lab(done)
    k("s_endpgm")
    k.lab(lload)
    k("s_sub_u32 s29, s29, 4")
    act_dma_voffs(k)
    k("s_mul_i32 s32, s27, 163840", "s_lshl_b32 s33, s29, 12", "s_add_u32 s32, s32, s33", "v_lshlrev_b32 v6, 4, v1", "v_add_u32 v6, s32, v6")
    k("s_lshl_b32 s34, s29, 12")
    ptr_srds(k, specs)
    def dma_list(kt):
        st = kt % NST
        L = [f"s_add_u32 m0, s34, {st*STB}", f"s_mov_b32 s35, {kt*128}"]
        L += [f"buffer_load_dwordx4 v{2+j}, s[4:7], s35 offen offset:{j*1024} lds" for j in range(4)]
        L += [f"s_add_u32 m0, s34, {st*STB + 16384}", f"s_mov_b32 s36, {kt*16384}"]
        L += [f"buffer_load_dwordx4 v6, s[8:11], s36 offen offset:{j*1024} lds" for j in range(4)]
        return L
    loader_loop(k, NK, NST, dma_list, 8)
    return k

def gen_glu(name, xsrc, statsrc, opt=''):
    NK = 10; NST = 4; STB = 40960
    k = K(name, 256, 512, NST*STB)
    done = k.newlab("done"); lload = k.newlab("loader")
    k("s_cmp_ge_u32 s2, 256", f"s_cbranch_scc1 {done}")
    xcd_map16(k, 16)
    if 'stamp' in opt: stamp(k, 0)
    specs = [(4, xsrc), (8, 'WGU'), (16, 'H'), (20, statsrc), (68, 'CS')]
    ptr_loads(k, specs)
    k("v_and_b32 v1, 63, v0", "v_lshrrev_b32 v25, 6, v0", "s_nop 0", "v_readfirstlane_b32 s29, v25")
    k("s_nop 3", "s_cmp_ge_u32 s29, 4", f"s_cbranch_scc1 {lload}")
    FB = 32; AC = 88; STV = 184; CSV = 188
    k("v_and_b32 v25, 31, v1", "s_lshl_b32 s32, s26, 7", "s_lshl_b32 s33, s29, 5", "s_add_u32 s32, s32, s33", "v_add_u32 v28, s32, v25", "v_lshlrev_b32 v29, 6, v28")
    k("v_lshrrev_b32 v30, 5, v1", "v_lshlrev_b32 v30, 4, v30", "s_mul_i32 s32, s27, 384", "s_add_u32 s32, s32, 8192", "v_add_u32 v30, s32, v30")
    k("s_lshl_b32 s32, s29, 5", "v_add_u32 v26, s32, v25", "v_lshlrev_b32 v26, 7, v26")
    k("v_lshrrev_b32 v25, 1, v25", "v_and_b32 v25, 7, v25", "v_lshrrev_b32 v27, 5, v1", "v_xor_b32 v25, v25, v27")
    for s in range(4):
        k(f"v_xor_b32 v27, {2*s}, v25", f"v_lshl_add_u32 v{10+s}, v27, 4, v26")
    k("v_lshrrev_b32 v25, 5, v1", "v_lshlrev_b32 v25, 3, v25", "v_bfe_u32 v26, v1, 2, 2", "v_add_u32 v25, v25, v26", "v_mul_u32_u24 v25, 192, v25")
    k("v_bfe_u32 v27, v1, 4, 1", "v_lshl_add_u32 v25, v27, 5, v25", "v_and_b32 v27, 3, v1", "v_lshl_add_u32 v25, v27, 3, v25", "v_add_u32 v14, 16384, v25")
    for i in range(AC, AC+96): k(f"v_mov_b32 v{i}, 0")
    ptr_srds(k, specs)
    def cs_load(t, dst):
        mtx, ft = divmod(t, 3)
        for g in range(4): k(f"buffer_load_dwordx4 v[{dst+4*g}:{dst+4*g+3}], v30, s[68:71], 0 offen offset:{ft*128+g*32}" if mtx == 0 else
                             f"buffer_load_dwordx4 v[{dst+4*g}:{dst+4*g+3}], v31, s[68:71], 0 offen offset:{ft*128+g*32}")
    k("v_add_u32 v31, 6144, v30")
    for i in range(4): k(f"buffer_load_dwordx4 v[{FB+28+4*i}:{FB+31+4*i}], v29, s[20:23], 0 offen offset:{16*i}") if False else None
    for i in range(4): k(f"buffer_load_dwordx4 v[{CSV+48+4*i}:{CSV+51+4*i}], v29, s[20:23], 0 offen offset:{16*i}")
    cs_load(0, CSV); cs_load(3, CSV+16); cs_load(1, CSV+32)
    def reads(s):
        fb = FB + 28 * (s & 1); L = [f"ds_read_b128 v[{fb}:{fb+3}], v{10+s}"]
        for t in range(6):
            mtx, ft = divmod(t, 3)
            for r in range(2):
                L.append(f"ds_read_b64_tr_b16 v[{fb+4+4*t+2*r}:{fb+5+4*t+2*r}], v14 offset:{mtx*12288 + (16*s+4*r)*192 + ft*64}")
        return L
    def mfmas(s):
        fb = FB + 28 * (s & 1)
        return [f"v_mfma_f32_32x32x16_bf16 v[{AC+16*t}:{AC+16*t+15}], v[{fb+4+4*t}:{fb+7+4*t}], v[{fb}:{fb+3}], v[{AC+16*t}:{AC+16*t+15}]" for t in range(6)]
    k("s_barrier")
    if 'stamp' in opt: stamp(k, 1)
    k(*reads(0))
    for kt in range(NK):
        for s in range(4):
            k("s_waitcnt lgkmcnt(0)")
            M = mfmas(s)
            if s < 3:
                interleave(k, M, reads(s+1), [3, 3, 3, 2, 2, 0])
            elif kt + 1 < NK:
                k(M[0], "s_barrier")
                d = STB if (kt + 1) % NST else -(NST-1)*STB
                for r in range(10, 15): k(f"v_add_u32 v{r}, {d & 0xffffffff:#x}, v{r}")
                interleave(k, M[1:], reads(0), [3, 3, 3, 2, 2])
            else:
                k(*M)
        if kt == 3:
            k("s_waitcnt vmcnt(0)")
            merge_stats(k, CSV+48, 16, STV, STV+2)
            k(f"v_mov_b32 v{STV+1}, v{STV}", f"v_mov_b32 v{STV+3}, v{STV+2}")
            cs_load(4, CSV+48)
    if 'stamp' in opt: stamp(k, 2)
    cs_load(2, FB); cs_load(5, FB+16) if False else None
    k.L.pop() if False else None
    k("s_barrier")
    cs_load(5, FB+28)
    k("s_mul_i32 s32, s29, 6656")
    k("v_and_b32 v25, 31, v1", "v_mul_u32_u24 v25, 208, v25", "v_lshrrev_b32 v26, 5, v1", "v_lshl_add_u32 v25, v26, 3, v25", "v_add_u32 v25, s32, v25")
    k("v_lshrrev_b32 v26, 2, v1", "v_mul_u32_u24 v26, 208, v26", "v_and_b32 v27, 3, v1", "v_lshl_add_u32 v26, v27, 4, v26", "v_add_u32 v26, s32, v26")
    k("v_lshrrev_b32 v28, 2, v1", "s_lshl_b32 s32, s26, 7", "s_lshl_b32 s33, s29, 5", "s_add_u32 s32, s32, s33", "v_add_u32 v28, s32, v28", "v_mul_u32_u24 v28, 3072, v28")
    k("v_lshl_add_u32 v28, v27, 4, v28", "s_mul_i32 s32, s27, 192", "v_add_u32 v28, s32, v28")
    k("v_mov_b32 v16, 0xbfb8aa3b", "v_mov_b32 v17, 0xbfb8aa3b", "v_mov_b32 v18, 1.0", "v_mov_b32 v19, 1.0")
    csreg = {0: CSV, 3: CSV+16, 1: CSV+32, 4: CSV+48, 2: FB, 5: FB+28}
    for ft in range(3):
        if ft == 0: k("s_waitcnt vmcnt(8)")
        if ft == 2: k("s_waitcnt vmcnt(0)")
        ag = AC + 16*ft; au = AC + 16*(3+ft); cg = csreg[ft]; cu = csreg[3+ft]
        for r in range(0, 16, 2):
            k(f"v_pk_fma_f32 v[{ag+r}:{ag+r+1}], v[{STV}:{STV+1}], v[{cg+r}:{cg+r+1}], v[{ag+r}:{ag+r+1}] neg_lo:[1,0,0] neg_hi:[1,0,0]")
            k(f"v_pk_fma_f32 v[{au+r}:{au+r+1}], v[{STV}:{STV+1}], v[{cu+r}:{cu+r+1}], v[{au+r}:{au+r+1}] neg_lo:[1,0,0] neg_hi:[1,0,0]")
            k(f"v_pk_mul_f32 v[{ag+r}:{ag+r+1}], v[{ag+r}:{ag+r+1}], v[{STV+2}:{STV+3}]")
            k(f"v_pk_mul_f32 v[{au+r}:{au+r+1}], v[{au+r}:{au+r+1}], v[{STV+2}:{STV+3}]")
            k(f"v_cvt_pk_bf16_f32 v20, v{ag+r}, v{ag+r+1}", f"v_cvt_pk_bf16_f32 v21, v{au+r}, v{au+r+1}")
            k(f"v_lshlrev_b32 v{ag+r}, 16, v20", f"v_and_b32 v{ag+r+1}, 0xffff0000, v20", f"v_lshlrev_b32 v{au+r}, 16, v21", f"v_and_b32 v{au+r+1}, 0xffff0000, v21")
            k(f"v_pk_mul_f32 v[{ag+r}:{ag+r+1}], v[{ag+r}:{ag+r+1}], v[16:17]")
            k(f"v_exp_f32 v{ag+r}, v{ag+r}", f"v_exp_f32 v{ag+r+1}, v{ag+r+1}", "s_nop 0")
            k(f"v_pk_add_f32 v[{ag+r}:{ag+r+1}], v[{ag+r}:{ag+r+1}], v[18:19]")
            k(f"v_rcp_f32 v{ag+r}, v{ag+r}", f"v_rcp_f32 v{ag+r+1}, v{ag+r+1}", "s_nop 0")
            k(f"v_cvt_pk_bf16_f32 v20, v{ag+r}, v{ag+r+1}")
            k(f"v_lshlrev_b32 v{ag+r}, 16, v20", f"v_and_b32 v{ag+r+1}, 0xffff0000, v20")
            k(f"v_pk_mul_f32 v[{ag+r}:{ag+r+1}], v[{ag+r}:{ag+r+1}], v[{au+r}:{au+r+1}]")
        for g in range(4):
            d = 2 + 2*(g & 3)
            k(f"v_cvt_pk_bf16_f32 v{d}, v{ag+4*g}, v{ag+4*g+1}", f"v_cvt_pk_bf16_f32 v{d+1}, v{ag+4*g+2}, v{ag+4*g+3}")
            k(f"ds_write_b64 v25, v[{d}:{d+1}] offset:{ft*64 + g*16}")
    k("s_waitcnt lgkmcnt(0)")
    n = 0
    for hh in range(2):
        for seg in range(3):
            k(f"ds_read_b128 v[{AC+4*n}:{AC+4*n+3}], v26 offset:{hh*16*208 + seg*64}"); n += 1
    n = 0
    for hh in range(2):
        for seg in range(3):
            k(f"s_waitcnt lgkmcnt({5-n})", f"s_mov_b32 s32, {hh*16*3072}", f"buffer_store_dwordx4 v[{AC+4*n}:{AC+4*n+3}], v28, s[16:19], s32 offen offset:{seg*64}"); n += 1
    if 'stamp' in opt:
        stamp(k, 3); k("s_waitcnt vmcnt(0)"); stamp(k, 4); stamps_out(k, 5, 17)
    k.lab(done)
    k("s_endpgm")
    k.lab(lload)
    k("s_sub_u32 s29, s29, 4")
    act_dma_voffs(k)
    k("s_mul_i32 s32, s27, 245760", "s_mul_i32 s31, s29, 6144", "s_add_u32 s32, s32, s31", "v_lshlrev_b32 v6, 4, v1", "v_add_u32 v6, s32, v6", "v_add_u32 v7, 4096, v6")
    k("s_lshl_b32 s34, s29, 12")
    ptr_srds(k, specs)
    def dma_list(kt):
        st = kt % NST
        L = [f"s_add_u32 m0, s34, {st*STB}", f"s_mov_b32 s35, {kt*128}"]
        L += [f"buffer_load_dwordx4 v{2+j}, s[4:7], s35 offen offset:{j*1024} lds" for j in range(4)]
        L += [f"s_add_u32 m0, s31, {st*STB + 16384}", f"s_mov_b32 s30, {kt*24576}"]
        L += [f"buffer_load_dwordx4 v6, s[8:11], s30 offen offset:{j*1024} lds" for j in range(4)]
        L += [f"s_add_u32 m0, s31, {st*STB + 16384 + 4096}", "s_nop 0"]
        L += [f"buffer_load_dwordx4 v7, s[8:11], s30 offen offset:{j*1024} lds" for j in range(2)]
        return L
    loader_loop(k, NK, NST, dma_list, 10)
    return k

def gen_out(name, asrc, KK, wsrc, rsrc, dst, stdst, opt=''):
    NK = KK // 128; NST = 4; STB = 36864; AP = KK * 2
    k = K(name, 256, 512, NST*STB)
    done = k.newlab("done"); lload = k.newlab("loader")
    k("s_cmp_ge_u32 s2, 256", f"s_cbranch_scc1 {done}")
    k("s_and_b32 s24, s2, 7", "s_lshr_b32 s25, s2, 3", "s_lshl_b32 s26, s24, 2", "s_and_b32 s27, s25, 3", "s_add_u32 s26, s26, s27", "s_lshr_b32 s27, s25, 2")
    if 'stamp' in opt: stamp(k, 0)
    specs = [(4, asrc), (8, wsrc), (12, rsrc), (16, dst)] + ([(20, stdst)] if stdst else [])
    ptr_loads(k, specs)
    k("v_and_b32 v1, 63, v0", "v_lshrrev_b32 v25, 6, v0", "s_nop 0", "v_readfirstlane_b32 s29, v25")
    k("s_nop 3", "s_cmp_ge_u32 s29, 4", f"s_cbranch_scc1 {lload}")
    FB = 32; AC = 104; RS = 184
    k("v_and_b32 v25, 15, v1", "v_lshrrev_b32 v26, 4, v1", "s_lshl_b32 s32, s29, 2", "v_add_u32 v26, s32, v26", "v_xor_b32 v26, v26, v25", "v_lshlrev_b32 v26, 4, v26", "v_lshl_add_u32 v10, v25, 8, v26")
    k("v_lshrrev_b32 v26, 4, v1", "v_lshlrev_b32 v26, 3, v26", "v_bfe_u32 v27, v1, 2, 2", "v_add_u32 v26, v26, v27", "s_lshl_b32 s32, s29, 5", "v_add_u32 v26, s32, v26", "v_mul_u32_u24 v26, 160, v26")
    k("v_and_b32 v27, 3, v1", "v_lshl_add_u32 v26, v27, 3, v26", "v_add_u32 v11, 16384, v26")
    k("s_lshl_b32 s32, s26, 6", "s_lshl_b32 s33, s29, 4", "s_add_u32 s32, s32, s33", "v_add_u32 v28, s32, v25", "v_mul_u32_u24 v29, 1280, v28")
    k("v_lshrrev_b32 v26, 4, v1", "v_lshl_add_u32 v29, v26, 3, v29", "s_mul_i32 s32, s27, 160", "v_add_u32 v29, s32, v29")
    for i in range(AC, AC+80): k(f"v_mov_b32 v{i}, 0")
    ptr_srds(k, specs)
    for ft in range(5): k(f"buffer_load_dwordx2 v[{RS+2*ft}:{RS+2*ft+1}], v29, s[12:15], 0 offen offset:{ft*32}")
    def reads(p):
        fb = FB + 36 * p; L = []
        for tt in range(4): L.append(f"ds_read_b128 v[{fb+4*tt}:{fb+4*tt+3}], v10 offset:{tt*4096}")
        for ft in range(5):
            for r in range(2): L.append(f"ds_read_b64_tr_b16 v[{fb+16+4*ft+2*r}:{fb+17+4*ft+2*r}], v11 offset:{4*r*160 + ft*32}")
        return L
    def mfmas(p):
        fb = FB + 36 * p; L = []
        for ft in range(5):
            for tt in range(4):
                a = AC + (ft*4+tt)*4
                L.append(f"v_mfma_f32_16x16x32_bf16 v[{a}:{a+3}], v[{fb+16+4*ft}:{fb+19+4*ft}], v[{fb+4*tt}:{fb+4*tt+3}], v[{a}:{a+3}]")
        return L
    k("s_barrier")
    if 'stamp' in opt: stamp(k, 1)
    k(*reads(0))
    for kt in range(NK):
        k("s_waitcnt lgkmcnt(0)")
        M = mfmas(kt & 1)
        if kt + 1 < NK:
            k(M[0], "s_barrier")
            d = STB if (kt + 1) % NST else -(NST-1)*STB
            for r in (10, 11): k(f"v_add_u32 v{r}, {d & 0xffffffff:#x}, v{r}")
            interleave(k, M[1:], reads((kt+1) & 1), [1]*14 + [0]*5)
        else:
            k(*M)
    if 'stamp' in opt: stamp(k, 2)
    k("s_barrier")
    k("v_lshlrev_b32 v25, 4, v1", "s_mul_i32 s32, s29, 20480", "v_add_u32 v26, s32, v25")
    k("s_mul_i32 s32, s29, 5120", "v_add_u32 v27, s32, v25", "v_add_u32 v24, 40960, v27")
    k("s_nop 7")
    lw = [k.newlab("rw") for _ in range(4)]
    for tt in range(4):
        k(f"s_cmp_eq_u32 s29, {tt}", f"s_cbranch_scc1 {lw[tt]}")
        for ft in range(5):
            a = AC + (ft*4+tt)*4
            k(f"ds_write_b128 v26, v[{a}:{a+3}] offset:{(tt*5+ft)*1024}")
        k.lab(lw[tt])
    k("s_waitcnt lgkmcnt(0)", "s_barrier")
    le = k.newlab("e");
    labs = [k.newlab("own") for _ in range(4)]
    for tt in range(4):
        k(f"s_cmp_eq_u32 s29, {tt}", f"s_cbranch_scc1 {labs[tt]}")
    for tt in range(4):
        k.lab(labs[tt])
        for ft in range(5):
            for r in range(4): k(f"v_mov_b32 v{FB+4*ft+r}, v{AC+(ft*4+tt)*4+r}")
        n = 0
        for src in range(4):
            if src == tt: continue
            for ft in range(5):
                k(f"ds_read_b128 v[{AC+4*n}:{AC+4*n+3}], v{27 if src < 2 else 24} offset:{(src&1)*20480 + ft*1024}"); n += 1
        k(f"s_branch {le}")
    k.lab(le)
    k("s_waitcnt lgkmcnt(0) vmcnt(0)")
    for sidx in range(3):
        for ft in range(5):
            for r in range(0, 4, 2):
                k(f"v_pk_add_f32 v[{FB+4*ft+r}:{FB+4*ft+r+1}], v[{FB+4*ft+r}:{FB+4*ft+r+1}], v[{AC+4*(sidx*5+ft)+r}:{AC+4*(sidx*5+ft)+r+1}]")
    for ft in range(5):
        for p in range(2):
            a = FB + 4*ft + 2*p; x = RS + 2*ft + p
            k(f"v_cvt_pk_bf16_f32 v20, v{a}, v{a+1}", f"v_lshlrev_b32 v{a}, 16, v20", f"v_and_b32 v{a+1}, 0xffff0000, v20")
            k(f"v_lshlrev_b32 v21, 16, v{x}", f"v_and_b32 v22, 0xffff0000, v{x}", f"v_add_f32 v{a}, v{a}, v21", f"v_add_f32 v{a+1}, v{a+1}, v22")
            k(f"v_cvt_pk_bf16_f32 v{x}, v{a}, v{a+1}")
            if stdst: k(f"v_lshlrev_b32 v{a}, 16, v{x}", f"v_and_b32 v{a+1}, 0xffff0000, v{x}")
        k(f"buffer_store_dwordx2 v[{RS+2*ft}:{RS+2*ft+1}], v29, s[16:19], 0 offen offset:{ft*32}")
    if stdst:
        def xsum(v, t):
            k(f"v_mov_b32 v{t}, v{v}", "s_nop 1", f"v_permlane16_swap_b32 v{v}, v{t}", f"v_add_f32 v{v}, v{v}, v{t}")
            k(f"v_mov_b32 v{t}, v{v}", "s_nop 1", f"v_permlane32_swap_b32 v{v}, v{t}", f"v_add_f32 v{v}, v{v}, v{t}")
        k(f"v_add_f32 v20, v{FB}, v{FB+1}")
        for i in range(2, 20): k(f"v_add_f32 v20, v20, v{FB+i}")
        xsum(20, 22)
        k("v_mul_f32 v23, 0x3c4ccccd, v20", "v_mov_b32 v21, 0")
        for i in range(20): k(f"v_sub_f32 v22, v{FB+i}, v23", "v_fmac_f32 v21, v22, v22")
        xsum(21, 22)
        k("v_lshlrev_b32 v28, 6, v28", "s_lshl_b32 s32, s27, 3", "v_add_u32 v28, s32, v28")
        k("v_cmp_gt_u32 vcc, 16, v1", "s_and_saveexec_b64 s[36:37], vcc", f"s_cbranch_execz {done}")
        k("buffer_store_dwordx2 v[20:21], v28, s[20:23], 0 offen")
        if 'stamp' in opt:
            k("s_mov_b64 exec, s[36:37]"); stamp(k, 3); k("s_waitcnt vmcnt(0)"); stamp(k, 4); stamps_out(k, 5, 17)
    k.lab(done)
    k("s_endpgm")
    k.lab(lload)
    k("s_sub_u32 s29, s29, 4")
    k("s_lshl_b32 s32, s26, 6", "s_lshl_b32 s33, s29, 4", "s_add_u32 s32, s32, s33", "v_lshrrev_b32 v25, 4, v1", "v_and_b32 v26, 15, v1", f"s_mov_b32 s33, {AP}")
    for jj in range(4):
        k(f"v_add_u32 v27, {4*jj}, v25", "v_xor_b32 v28, v26, v27", "v_add_u32 v27, s32, v27", "v_mul_lo_u32 v27, v27, s33", "v_lshl_add_u32 v27, v28, 4, v27", f"v_subrev_u32 v{2+jj}, {jj*1024}, v27")
    k(f"s_mul_i32 s32, s27, {KK*160}", "s_mul_i32 s31, s29, 5120", "s_add_u32 s32, s32, s31", "v_lshlrev_b32 v6, 4, v1", "v_add_u32 v6, s32, v6", "v_add_u32 v7, 4096, v6")
    k("s_lshl_b32 s34, s29, 12")
    ptr_srds(k, specs)
    def dma_list(kt):
        st = kt % NST
        L = [f"s_add_u32 m0, s34, {st*STB}", f"s_mov_b32 s35, {kt*256}"]
        L += [f"buffer_load_dwordx4 v{2+j}, s[4:7], s35 offen offset:{j*1024} lds" for j in range(4)]
        L += [f"s_add_u32 m0, s31, {st*STB + 16384}", f"s_mov_b32 s30, {kt*20480}"]
        L += [f"buffer_load_dwordx4 v6, s[8:11], s30 offen offset:{j*1024} lds" for j in range(4)]
        L += [f"s_add_u32 m0, s31, {st*STB + 16384 + 4096}", "s_nop 0", "buffer_load_dwordx4 v7, s[8:11], s30 offen lds"]
        return L
    loader_loop(k, NK, NST, dma_list, 9)
    return k

def gen_attn(name, opt=''):
    VB = 20480
    k = K(name, 256, 512, 40960 + 128)
    done = k.newlab("done")
    specs = [(4, 'QKV'), (16, 'O')]
    ptr_loads(k, specs)
    k("s_cmp_ge_u32 s2, 256", f"s_cbranch_scc1 {done}")
    k("s_and_b32 s26, s2, 7", "s_lshr_b32 s27, s2, 3")
    if 'stamp' in opt: stamp(k, 0)
    k("v_and_b32 v1, 63, v0", "v_lshrrev_b32 v25, 6, v0", "s_nop 0", "v_readfirstlane_b32 s29, v25", "s_nop 3")
    k("s_lshr_b32 s32, s29, 2", "s_add_u32 s32, s32, 1", "s_lshl_b32 s32, s32, 5", "s_add_u32 s32, s32, s27", "s_mul_i32 s32, s32, 81920")
    k("s_mul_i32 s33, s26, 10240", "s_add_u32 s32, s32, s33", "s_sub_u32 s32, s32, 10240", "s_and_b32 s33, s29, 3", "s_mul_i32 s33, s33, 5120", "s_add_u32 s32, s32, s33")
    k("v_lshlrev_b32 v2, 4, v1", "v_add_u32 v2, s32, v2", "v_add_u32 v3, 4096, v2")
    k("s_mul_i32 s34, s29, 5120")
    k("v_and_b32 v20, 31, v1", "s_lshl_b32 s32, s26, 8", "s_lshl_b32 s35, s29, 5", "s_add_u32 s32, s32, s35", "v_add_u32 v4, s32, v20")
    k("v_mul_u32_u24 v5, 40, v4", "s_mul_i32 s33, s27, 81920", "v_add_u32 v5, s33, v5", "v_lshrrev_b32 v6, 5, v1", "v_lshl_add_u32 v7, v6, 4, v5")
    ptr_srds(k, specs)
    k("s_mov_b32 m0, s34", "s_nop 0")
    for j in range(4): k(f"buffer_load_dwordx4 v2, s[4:7], 0 offen offset:{j*1024} lds")
    k("s_add_u32 m0, s34, 4096", "s_nop 0", "buffer_load_dwordx4 v3, s[4:7], 0 offen lds")
    k("buffer_load_dwordx2 v[8:9], v7, s[4:7], 0 offen", "buffer_load_dwordx2 v[10:11], v7, s[4:7], 0 offen offset:8", "buffer_load_dwordx2 v[12:13], v5, s[4:7], 0 offen offset:32")
    k("v_mov_b32 v14, 0", "v_mov_b32 v15, 0")
    k("v_add_u32 v16, s35, v20", "v_mul_u32_u24 v16, 40, v16", "v_lshl_add_u32 v16, v6, 4, v16")
    k("v_lshlrev_b32 v17, 2, v6", "v_bfe_u32 v18, v1, 2, 2", "v_add_u32 v17, v17, v18", "v_add_u32 v17, s35, v17", "v_mul_u32_u24 v17, 40, v17")
    k("v_bfe_u32 v18, v1, 4, 1", "v_lshl_add_u32 v17, v18, 5, v17", "v_and_b32 v18, 3, v1", "v_lshl_add_u32 v17, v18, 3, v17", f"v_add_u32 v17, {VB}, v17")
    k("v_lshlrev_b32 v18, 2, v6", "v_sub_u32 v18, v20, v18")
    k("v_cmp_gt_u32 vcc, 32, v1")
    k("s_waitcnt vmcnt(0)")
    k("v_cndmask_b32 v12, 0, v12, vcc", "v_cndmask_b32 v13, 0, v13, vcc")
    k("s_barrier")
    if 'stamp' in opt: stamp(k, 1)
    S = 64; KF = 24
    def kread(i):
        b = KF + 8*(i & 1)
        k(f"ds_read2_b64 v[{b}:{b+3}], v16 offset0:{i*160} offset1:{i*160+1}") if False else None
        for p, o in enumerate((0, 8, 32, 40)):
            k(f"ds_read_b64 v[{b+2*p}:{b+2*p+1}], v16 offset:{i*1280+o}")
    kread(0)
    for i in range(9):
        if i < 8: kread(i+1); k("s_waitcnt lgkmcnt(4)")
        else: k("s_waitcnt lgkmcnt(0)")
        b = KF + 8*(i & 1); a = S + 16*i
        k(f"v_mfma_f32_32x32x16_bf16 v[{a}:{a+15}], v[{b}:{b+3}], v[8:11], 0")
        k(f"v_mfma_f32_32x32x16_bf16 v[{a}:{a+15}], v[{b+4}:{b+7}], v[12:15], v[{a}:{a+15}]")
    k("s_nop 7", "s_nop 7")
    if 'stamp' in opt: stamp(k, 2)
    emu = 'emu' in opt
    if emu:
        k("v_mov_b32 v40, 0x3e64f92e", "v_mov_b32 v41, 0x3e64f92e")
        for r in range(S, S+144, 2):
            k(f"v_cvt_pk_bf16_f32 v42, v{r}, v{r+1}", f"v_lshlrev_b32 v{r}, 16, v42", f"v_and_b32 v{r+1}, 0xffff0000, v42")
            k(f"v_pk_mul_f32 v[{r}:{r+1}], v[{r}:{r+1}], v[40:41]")
            k(f"v_cvt_pk_bf16_f32 v42, v{r}, v{r+1}", f"v_lshlrev_b32 v{r}, 16, v42", f"v_and_b32 v{r+1}, 0xffff0000, v42")
    k("v_mov_b32 v43, 0xce6e6b28")
    for g in range(4):
        for r in range(4):
            c = 8*g + r
            k(f"v_cmp_le_i32 vcc, {c}, v18", "s_nop 1")
            k(f"v_cndmask_b32 v{S+128+4*g+r}, v43, v{S+128+4*g+r}, vcc", f"v_cndmask_b32 v{S+4*g+r}, v{S+4*g+r}, v43, vcc")
    lq = k.newlab("q0")
    k("s_cmp_lg_u32 s26, 0", f"s_cbranch_scc1 {lq}")
    for i in range(8):
        ls = k.newlab("sk")
        k(f"s_add_u32 s32, s29, {i}", "s_cmp_ge_u32 s32, 8", f"s_cbranch_scc1 {ls}")
        for r in range(16): k(f"v_mov_b32 v{S+16*i+r}, v43")
        k.lab(ls)
    k.lab(lq)
    if 'stamp' in opt: stamp(k, 3)
    k(f"v_max3_f32 v44, v{S}, v{S+1}, v{S+2}", f"v_max3_f32 v45, v{S+3}, v{S+4}, v{S+5}")
    rr = list(range(S+6, S+144, 2))
    for n, r in enumerate(rr): k(f"v_max3_f32 v{44+(n&1)}, v{44+(n&1)}, v{r}, v{r+1}")
    k("v_max_f32 v44, v44, v45")
    k("v_mov_b32 v45, v44", "s_nop 1", "v_permlane32_swap_b32 v44, v45", "v_max_f32 v44, v44, v45")
    cc = 0x3fb8aa3b if emu else 0x3ea52a0b
    import struct
    if not emu:
        cc = struct.unpack('<I', struct.pack('<f', 1.4426950408889634 * struct.unpack('<f', struct.pack('<I', 0x3e64f92e))[0]))[0]
    k(f"v_mov_b32 v40, {cc:#x}", f"v_mov_b32 v41, {cc:#x}", "v_mul_f32 v44, v44, v40", "v_sub_f32 v44, 0, v44", "v_mov_b32 v45, v44", "v_mov_b32 v46, 0", "v_mov_b32 v47, 0")
    for i in range(9):
        for q in range(8):
            r = S + 16*i + 2*q
            k(f"v_pk_fma_f32 v[{r}:{r+1}], v[{r}:{r+1}], v[40:41], v[44:45]")
            k(f"v_exp_f32 v{r}, v{r}", f"v_exp_f32 v{r+1}, v{r+1}")
            if (i, q) != (0, 0):
                pr = r - 2 if q else S + 16*(i-1) + 14; pq = (S + 16*i + q - 1) if q else (S + 16*(i-1) + 7)
                k(f"v_pk_add_f32 v[46:47], v[46:47], v[{pr}:{pr+1}]", f"v_cvt_pk_bf16_f32 v{pq}, v{pr}, v{pr+1}")
    k("s_nop 0", f"v_pk_add_f32 v[46:47], v[46:47], v[{S+142}:{S+143}]", f"v_cvt_pk_bf16_f32 v{S+128+7}, v{S+142}, v{S+143}")
    k("v_add_f32 v46, v46, v47", "v_mov_b32 v47, v46", "s_nop 1", "v_permlane32_swap_b32 v46, v47", "v_add_f32 v46, v46, v47")
    k("v_rcp_f32 v46, v46", "s_nop 0", "v_mov_b32 v47, v46")
    if 'stamp' in opt: stamp(k, 4)
    OA = 208; VF = 24
    def vread(i):
        b = VF + 8*(i & 1)
        for m in range(2):
            for r in range(2):
                k(f"ds_read_b64_tr_b16 v[{b+4*m+2*r}:{b+4*m+2*r+1}], v17 offset:{(32*i+16*m+8*r)*40}")
    vread(0)
    for i in range(9):
        if i < 8: vread(i+1); k("s_waitcnt lgkmcnt(4)")
        else: k("s_waitcnt lgkmcnt(0)")
        b = VF + 8*(i & 1); p = S + 16*i
        for m in range(2):
            c = "0" if (i == 0 and m == 0) else f"v[{OA}:{OA+15}]"
            k(f"v_mfma_f32_32x32x16_bf16 v[{OA}:{OA+15}], v[{b+4*m}:{b+4*m+3}], v[{p+4*m}:{p+4*m+3}], {c}")
    if 'stamp' in opt: stamp(k, 5)
    k("v_mul_u32_u24 v5, 1280, v4", "s_mul_i32 s33, s27, 40", "v_add_u32 v5, s33, v5", "v_lshl_add_u32 v5, v6, 3, v5")
    k("s_nop 7", "s_nop 7")
    for g in range(3):
        k(f"v_pk_mul_f32 v[{OA+4*g}:{OA+4*g+1}], v[{OA+4*g}:{OA+4*g+1}], v[46:47]", f"v_pk_mul_f32 v[{OA+4*g+2}:{OA+4*g+3}], v[{OA+4*g+2}:{OA+4*g+3}], v[46:47]")
        k(f"v_cvt_pk_bf16_f32 v{40+2*g}, v{OA+4*g}, v{OA+4*g+1}", f"v_cvt_pk_bf16_f32 v{41+2*g}, v{OA+4*g+2}, v{OA+4*g+3}")
    k("buffer_store_dwordx2 v[40:41], v5, s[16:19], 0 offen", "buffer_store_dwordx2 v[42:43], v5, s[16:19], 0 offen offset:16")
    k("v_cmp_gt_u32 vcc, 32, v1", "s_and_saveexec_b64 s[36:37], vcc", f"s_cbranch_execz {done}")
    k("buffer_store_dwordx2 v[44:45], v5, s[16:19], 0 offen offset:32")
    if 'stamp' in opt:
        k("s_mov_b64 exec, s[36:37]", "s_waitcnt vmcnt(0)"); stamp(k, 6); stamps_out(k, 7, 17)
    k.lab(done)
    k("s_endpgm")
    return k

def build(kernels, launches, path):
    hdr = []
    for kn in launches:
        hdr.append(f"; @launch kernel={kn.name} grid=({kn.grid},1,1) block=({kn.block},1,1) lds={kn.lds}")
    out = "\n".join(hdr) + "\n.amdgcn_target \"amdgcn-amd-amdhsa--gfx950\"\n.text\n"
    out += "\n".join(kn.text() for kn in kernels)
    out += "\n.section .rodata,\"a\"\n" + "\n".join(kn.desc() for kn in kernels) + "\n"
    open(path, "w").write(out)
    json.dump(WS, open("layout.json", "w"))

def main_stamp(which):
    prep = gen_prep("prep_kernel"); attn = gen_attn("attn_kernel", 'stamp')
    q1 = gen_qkv("qkv1_kernel", 'x', 'STX', 'stamp')
    w1 = gen_out("wo1_kernel", 'O', 640, 'WO', 'x', 'XA', 'STA', 'stamp')
    glu = gen_glu("glu_kernel", 'XA', 'STA', 'stamp')
    d1 = gen_out("dn1_kernel", 'H', 1536, 'WD', 'XA', 'XB', 'STB', 'stamp')
    ks = [prep, q1, attn, w1, glu, d1]
    build(ks, ks, "mb.s")

if __name__ == "__main__":
    if len(sys.argv) > 1:
        main_stamp(sys.argv[1]); sys.exit(0)
    prep = gen_prep("prep_kernel"); attn = gen_attn("attn_kernel")
    q1 = gen_qkv("qkv1_kernel", 'x', 'STX'); q2 = gen_qkv("qkv2_kernel", 'XB', 'STB')
    w1 = gen_out("wo1_kernel", 'O', 640, 'WO', 'x', 'XA', 'STA'); w2 = gen_out("wo2_kernel", 'O', 640, 'WO', 'XB', 'XA', 'STA')
    glu = gen_glu("glu_kernel", 'XA', 'STA')
    d1 = gen_out("dn1_kernel", 'H', 1536, 'WD', 'XA', 'XB', 'STB'); d2 = gen_out("dn2_kernel", 'H', 1536, 'WD', 'XA', 'out', None)
    ks = [prep, q1, attn, w1, glu, d1, q2, w2, d2]
    build(ks, [prep, q1, attn, w1, glu, d1, q2, attn, w2, glu, d2], "interleave_layers__sliding_block__glu_gated_glu__prompt.s")
```

```python
import json, sys

WS = dict(QKV=0x0, O=0x800000, XA=0xB00000, XB=0xE00000, H=0x1100000, STX=0x1800000, STA=0x1840000, STB=0x1880000, CS=0x18C0000,
          WQ=0x1A00000, WGU=0x1D00000, WO=0x2100000, WD=0x2200000)
SZ = dict(QKV=2048*1920*2, O=2048*640*2, XA=2048*640*2, XB=2048*640*2, H=2048*1536*2, STX=2048*64, STA=2048*64, STB=2048*64, CS=5120*4,
          WQ=16*640*256, WGU=16*640*384, WO=8*640*160, WD=8*1536*160)
KA = dict(x=0, wqkv=8, wo=16, bx=24, wg=32, wu=40, wd=48, out=56, dbg=64, ws=72)
INSZ = dict(x=2048*640*2, wqkv=640*1920*2, wo=640*640*2, wg=640*1536*2, wu=640*1536*2, wd=1536*640*2, out=2048*640*2)

class K:
    def __init__(s, name, grid, block, lds, vgpr=256, sgpr=96):
        s.name = name; s.L = []; s.grid = grid; s.block = block; s.lds = lds; s.vgpr = vgpr; s.sgpr = sgpr
        s.lc = 0
    def __call__(s, *ts):
        for t in ts: s.L.append("    " + t)
    def lab(s, l): s.L.append(l + ":")
    def newlab(s, p="L"):
        s.lc += 1; return f"{p}_{s.name}_{s.lc}"
    def text(s):
        out = [f".globl {s.name}", ".p2align 8", f".type {s.name},@function", f"{s.name}:"]
        out += s.L
        return "\n".join(out)
    def desc(s):
        acc = (s.vgpr + 3) // 4 * 4
        return "\n".join([".p2align 6", f".amdhsa_kernel {s.name}", f"  .amdhsa_next_free_vgpr {s.vgpr}",
            f"  .amdhsa_next_free_sgpr {s.sgpr}", f"  .amdhsa_accum_offset {acc}", "  .amdhsa_group_segment_fixed_size 0",
            "  .amdhsa_kernarg_size 80", "  .amdhsa_user_sgpr_count 2", "  .amdhsa_user_sgpr_kernarg_segment_ptr 1",
            "  .amdhsa_system_sgpr_workgroup_id_x 1", ".end_amdhsa_kernel"])

PT = 72
def ptr_loads(k, specs):
    for i, (sreg, name) in enumerate(specs):
        off = KA['ws'] if name in WS else KA[name]
        k(f"s_load_dwordx2 s[{PT+2*i}:{PT+2*i+1}], s[0:1], {off}")
def ptr_srds(k, specs):
    k("s_waitcnt lgkmcnt(0)")
    for i, (sreg, name) in enumerate(specs):
        t = PT + 2*i
        if name in WS:
            k(f"s_add_u32 s{sreg}, s{t}, {WS[name]:#x}", f"s_addc_u32 s{sreg+1}, s{t+1}, 0", f"s_mov_b32 s{sreg+2}, {SZ[name]}")
        else:
            k(f"s_mov_b32 s{sreg}, s{t}", f"s_mov_b32 s{sreg+1}, s{t+1}", f"s_mov_b32 s{sreg+2}, {INSZ[name]}")
        k(f"s_and_b32 s{sreg+1}, s{sreg+1}, 0xffff", f"s_mov_b32 s{sreg+3}, 0x00020000")
def load_ptrs(k, specs):
    ptr_loads(k, specs); ptr_srds(k, specs)

def stamp(k, i):
    k(f"s_memtime s[{40+2*i}:{41+2*i}]")
def rstamp(k, i):
    k(f"s_memrealtime s[{40+2*i}:{41+2*i}]")
def stamps_out(k, n, wg=0):
    lab = k.newlab("nost")
    k("s_waitcnt lgkmcnt(0)")
    k(f"s_cmp_lg_u32 s2, {wg}", f"s_cbranch_scc1 {lab}")
    k("s_cmp_lg_u32 s29, 0", f"s_cbranch_scc1 {lab}")
    k("s_load_dwordx2 s[64:65], s[0:1], 64", "s_waitcnt lgkmcnt(0)")
    k("s_and_b32 s65, s65, 0xffff", "s_mov_b32 s66, 256", "s_mov_b32 s67, 0x00020000")
    k("v_mov_b32 v1, 0")
    for i in range(n):
        k(f"s_sub_u32 s{41+2*i}, s{40+2*i}, s40")
        k(f"v_mov_b32 v2, s{41+2*i}")
        k(f"buffer_store_dword v2, v1, s[64:67], 0 offen offset:{4*i}")
    k.lab(lab)

def rne_bf16(k, dst, src):
    k(f"v_cvt_pk_bf16_f32 v{dst}, v{src}, v{src}")
    k(f"v_lshlrev_b32 v{dst}, 16, v{dst}")

def finish_stats(k, vmean, vvar, vm_out, vrs_out):
    rne_bf16(k, vm_out, vmean)
    rne_bf16(k, vrs_out, vvar)
    k(f"v_add_f32 v{vrs_out}, 0x3727c5ac, v{vrs_out}")
    rne_bf16(k, vrs_out, vrs_out)
    k(f"v_sqrt_f32 v{vrs_out}, v{vrs_out}", "s_nop 0")
    rne_bf16(k, vrs_out, vrs_out)
    k(f"v_rcp_f32 v{vrs_out}, v{vrs_out}", "s_nop 0")

def merge_stats(k, base, t0, vm_out, vrs_out):
    a, b, c, d = t0, t0+1, t0+2, t0+3
    k(f"v_add_f32 v{a}, v{base}, v{base+2}")
    for i in range(2, 8): k(f"v_add_f32 v{a}, v{a}, v{base+2*i}")
    k(f"v_mul_f32 v{a}, 0x3acccccd, v{a}")
    k(f"v_add_f32 v{b}, v{base+1}, v{base+3}")
    for i in range(2, 8): k(f"v_add_f32 v{b}, v{b}, v{base+1+2*i}")
    k(f"v_mov_b32 v{c}, 0")
    for i in range(8):
        k(f"v_mul_f32 v{d}, 0x3c4ccccd, v{base+2*i}", f"v_sub_f32 v{d}, v{d}, v{a}", f"v_fmac_f32 v{c}, v{d}, v{d}")
    k(f"v_mov_b32 v{d}, 0x42a00000", f"v_fmac_f32 v{b}, v{c}, v{d}", f"v_mul_f32 v{b}, 0x3acccccd, v{b}")
    finish_stats(k, a, b, vm_out, vrs_out)

def interleave(k, mf, fill, per):
    fi = 0
    for i, m in enumerate(mf):
        k(m)
        for _ in range(per[i]):
            if fi < len(fill): k(fill[fi]); fi += 1
    while fi < len(fill): k(fill[fi]); fi += 1

def xcd_map16(k, nnt):
    k("s_and_b32 s24, s2, 7", "s_lshr_b32 s25, s2, 3")
    k("s_lshr_b32 s26, s24, 1", "s_lshl_b32 s26, s26, 2", "s_and_b32 s27, s25, 3", "s_add_u32 s26, s26, s27")
    k("s_and_b32 s27, s24, 1", "s_lshl_b32 s27, s27, 3", "s_lshr_b32 s28, s25, 2", "s_add_u32 s27, s27, s28")

def gen_prep(name):
    NWG = 64 + 78 + 160 + 160 + 40 + 96
    k = K(name, NWG, 256, 4096, vgpr=128)
    done = k.newlab("done"); lcs = k.newlab("cs"); lwq = k.newlab("wq"); lgu = k.newlab("gu"); lod = k.newlab("od")
    specs = [(4, 'x'), (8, 'wqkv'), (12, 'wg'), (16, 'wu'), (20, 'STX'), (24, 'CS'), (28, 'wo'), (32, 'wd'), (48, 'WQ'), (52, 'WGU'), (56, 'WO'), (60, 'WD')]
    global PT
    PT = 68
    ptr_loads(k, specs)
    k(f"s_cmp_ge_u32 s2, {NWG}", f"s_cbranch_scc1 {done}")
    ptr_srds(k, specs)
    PT = 72
    k("s_cmp_ge_u32 s2, 462", f"s_cbranch_scc1 {lod}")
    k("s_cmp_ge_u32 s2, 302", f"s_cbranch_scc1 {lgu}")
    k("s_cmp_ge_u32 s2, 142", f"s_cbranch_scc1 {lwq}")
    k("s_cmp_ge_u32 s2, 64", f"s_cbranch_scc1 {lcs}")
    k("s_lshl_b32 s36, s2, 8", "v_add_u32 v1, s36, v0", "v_mul_u32_u24 v2, 160, v1")
    for i in range(10): k(f"buffer_load_dwordx4 v[{16+4*i}:{19+4*i}], v2, s[4:7], 0 offen offset:{16*i}")
    k("s_waitcnt vmcnt(0)")
    k("v_mov_b32 v4, 0", "v_mov_b32 v5, 0")
    for i in range(40):
        k(f"v_lshlrev_b32 v6, 16, v{16+i}", f"v_and_b32 v7, 0xffff0000, v{16+i}", "v_add_f32 v4, v4, v6", "v_add_f32 v5, v5, v7")
    k("v_add_f32 v4, v4, v5", "v_mul_f32 v8, 0x3c4ccccd, v4", "v_mov_b32 v5, 0", "v_mov_b32 v9, 0")
    for i in range(40):
        k(f"v_lshlrev_b32 v6, 16, v{16+i}", f"v_and_b32 v7, 0xffff0000, v{16+i}", "v_sub_f32 v6, v6, v8", "v_sub_f32 v7, v7, v8",
          "v_fmac_f32 v5, v6, v6", "v_fmac_f32 v9, v7, v7")
    k("v_add_f32 v5, v5, v9", "v_lshlrev_b32 v1, 3, v1")
    k("buffer_store_dwordx2 v[4:5], v1, s[20:23], 0 offen")
    k(f"s_branch {done}")
    k.lab(lcs)
    k("s_sub_u32 s36, s2, 64")
    k("s_mov_b32 s37, 3840", "s_mov_b32 s38, 0", "s_mov_b64 s[40:41], s[8:9]", "s_mov_b32 s42, s10", "s_mov_b32 s39, s36")
    l1 = k.newlab("m")
    k("s_cmp_lt_u32 s36, 30", f"s_cbranch_scc1 {l1}")
    k("s_mov_b32 s37, 3072", "s_mov_b32 s38, 2048", "s_mov_b64 s[40:41], s[12:13]", "s_mov_b32 s42, s14", "s_sub_u32 s39, s36, 30")
    k("s_cmp_lt_u32 s36, 54", f"s_cbranch_scc1 {l1}")
    k("s_mov_b32 s38, 3584", "s_mov_b64 s[40:41], s[16:17]", "s_sub_u32 s39, s36, 54")
    k.lab(l1)
    k("s_mov_b32 s43, 0x00020000")
    k("v_lshrrev_b32 v1, 4, v0", "v_mul_u32_u24 v1, 40, v1", "v_mul_lo_u32 v1, v1, s37", "v_and_b32 v2, 15, v0", "v_lshl_add_u32 v1, v2, 3, v1")
    k("s_lshl_b32 s44, s39, 7", "v_add_u32 v1, s44, v1", "s_mov_b32 s45, 0")
    for r in range(40):
        k(f"buffer_load_dwordx2 v[{16+2*r}:{17+2*r}], v1, s[40:43], s45 offen", "s_add_u32 s45, s45, s37")
    for a in range(4): k(f"v_mov_b32 v{4+a}, 0")
    k("s_waitcnt vmcnt(0)")
    for r in range(40):
        k(f"v_lshlrev_b32 v8, 16, v{16+2*r}", f"v_and_b32 v9, 0xffff0000, v{16+2*r}", f"v_lshlrev_b32 v10, 16, v{17+2*r}", f"v_and_b32 v11, 0xffff0000, v{17+2*r}",
          "v_add_f32 v4, v4, v8", "v_add_f32 v5, v5, v9", "v_add_f32 v6, v6, v10", "v_add_f32 v7, v7, v11")
    k("v_lshlrev_b32 v2, 4, v0", "ds_write_b128 v2, v[4:7]", "s_waitcnt lgkmcnt(0)", "s_barrier")
    k("v_and_b32 v3, 63, v0", "v_lshlrev_b32 v2, 2, v3")
    for g in range(16): k(f"ds_read_b32 v{16+g}, v2 offset:{g*256}")
    k("s_waitcnt lgkmcnt(0)")
    for g in range(1, 16): k(f"v_add_f32 v16, v16, v{16+g}")
    k("s_lshl_b32 s44, s39, 6", "v_add_u32 v3, s44, v3", "v_add_u32 v2, s38, v3")
    l2 = k.newlab("nq")
    k("s_cmp_lg_u32 s38, 0", f"s_cbranch_scc1 {l2}")
    k("s_mov_b32 s44, 52429", "v_mul_lo_u32 v4, v3, s44", "v_lshrrev_b32 v4, 20, v4")
    k("v_mul_u32_u24 v5, 20, v4", "v_sub_u32 v5, v3, v5")
    k("v_lshrrev_b32 v6, 5, v4", "v_and_b32 v4, 31, v4")
    k("v_mul_u32_u24 v6, 20, v6", "v_add_u32 v5, v5, v6", "v_lshl_add_u32 v2, v4, 6, v5")
    k.lab(l2)
    k("v_lshlrev_b32 v2, 2, v2")
    k("v_cmp_gt_u32 vcc, 64, v0", "s_and_saveexec_b64 s[46:47], vcc", f"s_cbranch_execz {done}")
    k("buffer_store_dword v16, v2, s[24:27], 0 offen")
    k(f"s_branch {done}")
    k.lab(lwq)
    k("s_sub_u32 s36, s2, 142", "s_mul_hi_u32 s37, s36, 0x1999999a", "s_mul_i32 s38, s37, 10", "s_sub_u32 s38, s36, s38")
    k("v_lshrrev_b32 v1, 5, v0", "v_and_b32 v2, 31, v0", "v_lshrrev_b32 v3, 1, v2", "v_and_b32 v4, 3, v1", "v_lshlrev_b32 v4, 2, v4", "v_xor_b32 v3, v3, v4")
    k("v_and_b32 v4, 1, v2", "v_lshl_add_u32 v3, v3, 1, v4")
    k("v_lshrrev_b32 v4, 4, v3", "v_and_b32 v3, 15, v3")
    k("v_mul_u32_u24 v5, 52, v3", "v_lshrrev_b32 v5, 8, v5")
    k("v_mul_u32_u24 v6, 5, v5", "v_sub_u32 v6, v3, v6")
    k("s_lshl_b32 s39, s37, 1", "v_add_u32 v4, s39, v4", "v_mul_u32_u24 v4, 40, v4", "v_mul_u32_u24 v5, 1280, v5", "v_add_u32 v4, v4, v5", "v_lshl_add_u32 v4, v6, 3, v4")
    k("s_lshl_b32 s39, s38, 6", "v_add_u32 v1, s39, v1", "v_mul_u32_u24 v1, 3840, v1", "v_add_u32 v1, v1, v4")
    k("v_cmp_eq_u32 vcc, 15, v3", "v_mov_b32 v5, 0x7ffffff0", "s_nop 0", "v_cndmask_b32 v1, v1, v5, vcc")
    for i in range(8): k(f"s_mov_b32 s39, {i*8*3840}", f"buffer_load_dwordx2 v[{16+2*i}:{17+2*i}], v1, s[8:11], s39 offen")
    k("s_lshl_b32 s39, s36, 14", "v_lshlrev_b32 v2, 3, v0")
    for i in range(8): k(f"s_waitcnt vmcnt({7-i})", f"buffer_store_dwordx2 v[{16+2*i}:{17+2*i}], v2, s[48:51], s39 offen offset:{i*2048}" if i < 2 else None) if False else None
    for i in range(8):
        k(f"s_waitcnt vmcnt({7-i})", f"s_add_u32 s40, s39, {i*2048}", f"buffer_store_dwordx2 v[{16+2*i}:{17+2*i}], v2, s[48:51], s40 offen")
    k(f"s_branch {done}")
    k.lab(lgu)
    k("s_sub_u32 s36, s2, 302", "s_mul_hi_u32 s37, s36, 0x1999999a", "s_mul_i32 s38, s37, 10", "s_sub_u32 s38, s36, s38")
    k("s_mov_b32 s40, 43691", "s_mul_i32 s41, s37, 192", "s_mul_i32 s42, s38, 196608", "s_add_u32 s41, s41, s42")
    for j in range(3):
        k(f"v_add_u32 v1, {256*j}, v0", "v_mul_lo_u32 v2, v1, s40", "v_lshrrev_b32 v2, 19, v2", "v_mul_u32_u24 v3, 12, v2", "v_sub_u32 v3, v1, v3",
          "v_mul_u32_u24 v2, 3072, v2", "v_lshl_add_u32 v2, v3, 4, v2")
        k(f"buffer_load_dwordx4 v[{16+4*j}:{19+4*j}], v2, s[12:15], s41 offen", f"buffer_load_dwordx4 v[{32+4*j}:{35+4*j}], v2, s[16:19], s41 offen")
    k("s_mul_i32 s39, s36, 24576", "v_lshlrev_b32 v2, 4, v0", "s_waitcnt vmcnt(0)")
    for j in range(3):
        k(f"s_add_u32 s40, s39, {j*4096}", f"buffer_store_dwordx4 v[{16+4*j}:{19+4*j}], v2, s[52:55], s40 offen")
        k(f"s_add_u32 s40, s39, {12288+j*4096}", f"buffer_store_dwordx4 v[{32+4*j}:{35+4*j}], v2, s[52:55], s40 offen")
    k(f"s_branch {done}")
    k.lab(lod)
    k("s_sub_u32 s36, s2, 462")
    k("s_mul_hi_u32 s37, s36, 0x33333334", "s_mul_i32 s38, s37, 5", "s_sub_u32 s38, s36, s38")
    k("s_mov_b64 s[40:41], s[28:29]", "s_mov_b32 s42, s30", "s_mov_b64 s[44:45], s[56:57]", "s_mov_b32 s46, s58", "s_mov_b32 s39, s36")
    l3 = k.newlab("isd")
    k("s_cmp_lt_u32 s36, 40", f"s_cbranch_scc1 {l3}")
    k("s_sub_u32 s39, s36, 40", "s_mul_hi_u32 s37, s39, 0x15555556", "s_mul_i32 s38, s37, 12", "s_sub_u32 s38, s39, s38")
    k("s_mov_b64 s[40:41], s[32:33]", "s_mov_b32 s42, s34", "s_mov_b64 s[44:45], s[60:61]", "s_mov_b32 s46, s62")
    k.lab(l3)
    k("s_mov_b32 s43, 0x00020000", "s_mov_b32 s47, 0x00020000")
    k("s_mov_b32 s64, 52429", "s_mul_i32 s65, s37, 160", "s_mul_i32 s66, s38, 163840", "s_add_u32 s65, s65, s66")
    for j in range(5):
        k(f"v_add_u32 v1, {256*j}, v0", "v_mul_lo_u32 v2, v1, s64", "v_lshrrev_b32 v2, 19, v2", "v_mul_u32_u24 v3, 10, v2", "v_sub_u32 v3, v1, v3",
          "v_mul_u32_u24 v2, 1280, v2", "v_lshl_add_u32 v2, v3, 4, v2")
        k(f"buffer_load_dwordx4 v[{16+4*j}:{19+4*j}], v2, s[40:43], s65 offen")
    k("s_mul_i32 s39, s39, 20480", "v_lshlrev_b32 v2, 4, v0", "s_waitcnt vmcnt(0)")
    for j in range(5):
        k(f"s_add_u32 s64, s39, {j*4096}", f"buffer_store_dwordx4 v[{16+4*j}:{19+4*j}], v2, s[44:47], s64 offen")
    k.lab(done)
    k("s_endpgm")
    return k

def loader_loop(k, NK, NST, dma_list, per):
    issued = -1
    def issue(upto):
        nonlocal issued
        while issued < min(upto, NK - 1):
            issued += 1; k(*dma_list(issued))
    issue(1)
    for kt in range(NK):
        k(f"s_waitcnt vmcnt({per*(issued-kt)})", "s_barrier")
        issue(kt + NST - 1)
    k("s_endpgm")

def act_dma_voffs(k, rows_per_wave=32):
    k("s_lshl_b32 s32, s26, 7", "s_lshl_b32 s33, s29, 5", "s_add_u32 s32, s32, s33")
    k("v_lshrrev_b32 v25, 3, v1", "v_add_u32 v25, s32, v25", "v_mul_u32_u24 v25, 1280, v25")
    k("v_and_b32 v26, 7, v1", "v_lshrrev_b32 v27, 4, v1", "v_xor_b32 v26, v26, v27", "v_lshlrev_b32 v26, 4, v26")
    k("v_xor_b32 v27, 64, v26")
    for j in range(4):
        k(f"v_add_u32 v{2+j}, v25, v{26 + (j&1)}")
        if j: k(f"v_add_u32 v{2+j}, {j*(8*1280-1024)}, v{2+j}")

def gen_qkv(name, xsrc, statsrc, opt=''):
    NK = 10; NST = 4; STB = 32768
    k = K(name, 256, 512, NST*STB)
    done = k.newlab("done"); lload = k.newlab("loader")
    k("s_cmp_ge_u32 s2, 256", f"s_cbranch_scc1 {done}")
    xcd_map16(k, 15)
    if 'stamp' in opt: stamp(k, 0); rstamp(k, 6)
    specs = [(4, xsrc), (8, 'WQ'), (16, 'QKV'), (20, statsrc), (12, 'CS')]
    ptr_loads(k, specs)
    k("v_and_b32 v1, 63, v0", "v_lshrrev_b32 v25, 6, v0", "s_nop 0", "v_readfirstlane_b32 s29, v25")
    k("s_nop 3", "s_cmp_ge_u32 s29, 4", f"s_cbranch_scc1 {lload}")
    k("s_and_b32 s30, s29, 1", "s_lshr_b32 s31, s29, 1")
    k("v_and_b32 v25, 31, v1", "s_lshl_b32 s32, s26, 7", "s_lshl_b32 s33, s31, 6", "s_add_u32 s32, s32, s33", "v_add_u32 v28, s32, v25")
    k("v_lshlrev_b32 v29, 6, v28")
    k("v_lshrrev_b32 v30, 5, v1", "v_lshlrev_b32 v30, 4, v30", "s_lshl_b32 s32, s27, 9", "s_lshl_b32 s33, s30, 8", "s_add_u32 s32, s32, s33", "v_add_u32 v30, s32, v30")
    k("v_and_b32 v25, 31, v1", "s_lshl_b32 s32, s31, 6", "v_add_u32 v26, s32, v25", "v_lshlrev_b32 v26, 7, v26")
    k("v_lshrrev_b32 v25, 1, v25", "v_and_b32 v25, 7, v25", "v_lshrrev_b32 v27, 5, v1", "v_xor_b32 v25, v25, v27")
    for s in range(4):
        k(f"v_xor_b32 v27, {2*s}, v25", f"v_lshl_add_u32 v{10+s}, v27, 4, v26")
    k("v_lshrrev_b32 v25, 5, v1", "v_lshlrev_b32 v25, 3, v25", "v_bfe_u32 v26, v1, 2, 2", "v_add_u32 v25, v25, v26", "v_lshlrev_b32 v25, 8, v25")
    k("v_bfe_u32 v27, v1, 4, 1", "v_lshl_add_u32 v25, v27, 5, v25", "v_and_b32 v27, 3, v1", "v_lshl_add_u32 v25, v27, 3, v25", "v_add_u32 v25, 16384, v25")
    k("s_lshl_b32 s32, s30, 1")
    for ft in range(2):
        k(f"s_add_u32 s33, s32, {ft}", "v_xor_b32 v27, s33, v26", f"v_lshl_add_u32 v{14+ft}, v27, 6, v25")
    for i in range(64, 128): k(f"v_mov_b32 v{i}, 0")
    ptr_srds(k, specs)
    for tt in range(2):
        for i in range(4): k(f"buffer_load_dwordx4 v[{160+16*tt+4*i}:{163+16*tt+4*i}], v29, s[20:23], 0 offen offset:{tt*2048+16*i}")
    for ft in range(2):
        for g in range(4): k(f"buffer_load_dwordx4 v[{128+16*ft+4*g}:{131+16*ft+4*g}], v30, s[12:15], 0 offen offset:{ft*128+g*32}")
    if 'stamp' in opt: stamp(k, 1)
    def reads(s):
        fb = 32 + 16 * (s & 1); L = []
        for tt in range(2): L.append(f"ds_read_b128 v[{fb+4*tt}:{fb+4*tt+3}], v{10+s} offset:{tt*4096}")
        for ft in range(2):
            for r in range(2):
                L.append(f"ds_read_b64_tr_b16 v[{fb+8+4*ft+2*r}:{fb+8+4*ft+2*r+1}], v{14+ft} offset:{(16*s+4*r)*256}")
        return L
    def mfmas(s):
        fb = 32 + 16 * (s & 1); L = []
        for ft in range(2):
            for tt in range(2):
                a = 64 + (ft*2+tt)*16
                L.append(f"v_mfma_f32_32x32x16_bf16 v[{a}:{a+15}], v[{fb+8+4*ft}:{fb+8+4*ft+3}], v[{fb+4*tt}:{fb+4*tt+3}], v[{a}:{a+15}]")
        return L
    k("s_barrier")
    if 'stamp' in opt: stamp(k, 2)
    k(*reads(0))
    for kt in range(NK):
        for s in range(4):
            k("s_waitcnt lgkmcnt(0)")
            M = mfmas(s)
            if s < 3:
                interleave(k, M, reads(s+1), [2, 2, 2, 0])
            elif kt + 1 < NK:
                k(M[0], "s_barrier")
                d = STB if (kt + 1) % NST else -(NST-1)*STB
                for r in range(10, 16): k(f"v_add_u32 v{r}, {d & 0xffffffff:#x}, v{r}")
                interleave(k, M[1:], reads(0), [2, 2, 2])
            else:
                k(*M)
        if kt == 3:
            k("s_waitcnt vmcnt(8)")
            for tt in range(2):
                merge_stats(k, 160+16*tt, 16, 192+4*tt, 194+4*tt)
                k(f"v_mov_b32 v{193+4*tt}, v{192+4*tt}", f"v_mov_b32 v{195+4*tt}, v{194+4*tt}")
    if 'stamp' in opt: stamp(k, 3)
    k("s_barrier")
    k("s_mul_i32 s32, s29, 9216")
    k("v_and_b32 v25, 31, v1", "v_mul_u32_u24 v25, 144, v25", "v_lshrrev_b32 v26, 5, v1", "v_lshl_add_u32 v25, v26, 3, v25", "v_add_u32 v25, s32, v25")
    k("s_mov_b32 s33, 52429")
    for n in range(5):
        k(f"v_add_u32 v26, {64*n}, v1", "v_mul_lo_u32 v27, v26, s33", "v_lshrrev_b32 v27, 18, v27", "v_mul_u32_u24 v28, 5, v27", "v_sub_u32 v28, v26, v28",
          "v_mul_u32_u24 v27, 144, v27", "v_lshl_add_u32 v27, v28, 3, v27", f"v_add_u32 v{2+n}, s32, v27")
    k("v_lshlrev_b32 v28, 3, v1", "s_lshl_b32 s32, s27, 1", "s_add_u32 s32, s32, s30", "s_mul_i32 s32, s32, 81920", "s_lshl_b32 s33, s26, 1", "s_add_u32 s33, s33, s31", "s_mul_i32 s33, s33, 2560", "s_add_u32 s32, s32, s33")
    k("s_waitcnt vmcnt(0)", "s_nop 4")
    for tt in range(2):
        for ft in range(2):
            a = 64 + (ft*2+tt)*16; vm = 192 + 4*tt; vr = 194 + 4*tt
            for r in range(0, 16, 2):
                k(f"v_pk_fma_f32 v[{a+r}:{a+r+1}], v[{vm}:{vm+1}], v[{128+ft*16+r}:{129+ft*16+r}], v[{a+r}:{a+r+1}] neg_lo:[1,0,0] neg_hi:[1,0,0]")
                k(f"v_pk_mul_f32 v[{a+r}:{a+r+1}], v[{a+r}:{a+r+1}], v[{vr}:{vr+1}]")
            for g in range(4):
                d = 32 + 2*((ft*4+g) % 8)
                k(f"v_cvt_pk_bf16_f32 v{d}, v{a+4*g}, v{a+4*g+1}", f"v_cvt_pk_bf16_f32 v{d+1}, v{a+4*g+2}, v{a+4*g+3}")
                k(f"ds_write_b64 v25, v[{d}:{d+1}] offset:{tt*32*144 + ft*64 + g*16}")
    k("s_waitcnt lgkmcnt(0)")
    for wh in range(3):
        for n in range(5): k(f"ds_read_b64 v[{64+2*(wh*5+n)}:{65+2*(wh*5+n)}], v{2+n} offset:{wh*40}")
    for wh in range(3):
        k(f"s_add_u32 s33, s32, {wh*32*81920}")
        for n in range(5):
            i = wh*5+n
            k(f"s_waitcnt lgkmcnt({14-i})", f"buffer_store_dwordx2 v[{64+2*i}:{65+2*i}], v28, s[16:19], s33 offen offset:{n*512}")
    if 'stamp' in opt:
        stamp(k, 4); k("s_waitcnt vmcnt(0)"); stamp(k, 5); rstamp(k, 7); k('s_waitcnt lgkmcnt(0)', 's_sub_u32 s54, s54, s52', 's_add_u32 s54, s54, s40', 's_mov_b32 s52, s40'); stamps_out(k, 8, 17)
    k.lab(done)
    k("s_endpgm")
    k.lab(lload)
    k("s_sub_u32 s29, s29, 4")
    act_dma_voffs(k)
    k("s_mul_i32 s32, s27, 163840", "s_lshl_b32 s33, s29, 12", "s_add_u32 s32, s32, s33", "v_lshlrev_b32 v6, 4, v1", "v_add_u32 v6, s32, v6")
    k("s_lshl_b32 s34, s29, 12")
    ptr_srds(k, specs)
    def dma_list(kt):
        st = kt % NST
        L = [f"s_add_u32 m0, s34, {st*STB}", f"s_mov_b32 s35, {kt*128}"]
        L += [f"buffer_load_dwordx4 v{2+j}, s[4:7], s35 offen offset:{j*1024} lds" for j in range(4)]
        L += [f"s_add_u32 m0, s34, {st*STB + 16384}", f"s_mov_b32 s36, {kt*16384}"]
        L += [f"buffer_load_dwordx4 v6, s[8:11], s36 offen offset:{j*1024} lds" for j in range(4)]
        return L
    loader_loop(k, NK, NST, dma_list, 8)
    return k

def gen_glu(name, xsrc, statsrc, opt=''):
    NK = 10; NST = 4; STB = 40960
    k = K(name, 256, 512, NST*STB)
    done = k.newlab("done"); lload = k.newlab("loader")
    k("s_cmp_ge_u32 s2, 256", f"s_cbranch_scc1 {done}")
    xcd_map16(k, 16)
    if 'stamp' in opt: stamp(k, 0)
    specs = [(4, xsrc), (8, 'WGU'), (16, 'H'), (20, statsrc), (68, 'CS')]
    ptr_loads(k, specs)
    k("v_and_b32 v1, 63, v0", "v_lshrrev_b32 v25, 6, v0", "s_nop 0", "v_readfirstlane_b32 s29, v25")
    k("s_nop 3", "s_cmp_ge_u32 s29, 4", f"s_cbranch_scc1 {lload}")
    FB = 32; AC = 88; STV = 184; CSV = 188
    k("v_and_b32 v25, 31, v1", "s_lshl_b32 s32, s26, 7", "s_lshl_b32 s33, s29, 5", "s_add_u32 s32, s32, s33", "v_add_u32 v28, s32, v25", "v_lshlrev_b32 v29, 6, v28")
    k("v_lshrrev_b32 v30, 5, v1", "v_lshlrev_b32 v30, 4, v30", "s_mul_i32 s32, s27, 384", "s_add_u32 s32, s32, 8192", "v_add_u32 v30, s32, v30")
    k("s_lshl_b32 s32, s29, 5", "v_add_u32 v26, s32, v25", "v_lshlrev_b32 v26, 7, v26")
    k("v_lshrrev_b32 v25, 1, v25", "v_and_b32 v25, 7, v25", "v_lshrrev_b32 v27, 5, v1", "v_xor_b32 v25, v25, v27")
    for s in range(4):
        k(f"v_xor_b32 v27, {2*s}, v25", f"v_lshl_add_u32 v{10+s}, v27, 4, v26")
    k("v_lshrrev_b32 v25, 5, v1", "v_lshlrev_b32 v25, 3, v25", "v_bfe_u32 v26, v1, 2, 2", "v_add_u32 v25, v25, v26", "v_mul_u32_u24 v25, 192, v25")
    k("v_bfe_u32 v27, v1, 4, 1", "v_lshl_add_u32 v25, v27, 5, v25", "v_and_b32 v27, 3, v1", "v_lshl_add_u32 v25, v27, 3, v25", "v_add_u32 v14, 16384, v25")
    for i in range(AC, AC+96): k(f"v_mov_b32 v{i}, 0")
    ptr_srds(k, specs)
    def cs_load(t, dst):
        mtx, ft = divmod(t, 3)
        for g in range(4): k(f"buffer_load_dwordx4 v[{dst+4*g}:{dst+4*g+3}], v30, s[68:71], 0 offen offset:{ft*128+g*32}" if mtx == 0 else
                             f"buffer_load_dwordx4 v[{dst+4*g}:{dst+4*g+3}], v31, s[68:71], 0 offen offset:{ft*128+g*32}")
    k("v_add_u32 v31, 6144, v30")
    for i in range(4): k(f"buffer_load_dwordx4 v[{FB+28+4*i}:{FB+31+4*i}], v29, s[20:23], 0 offen offset:{16*i}") if False else None
    for i in range(4): k(f"buffer_load_dwordx4 v[{CSV+48+4*i}:{CSV+51+4*i}], v29, s[20:23], 0 offen offset:{16*i}")
    cs_load(0, CSV); cs_load(3, CSV+16); cs_load(1, CSV+32)
    def reads(s):
        fb = FB + 28 * (s & 1); L = [f"ds_read_b128 v[{fb}:{fb+3}], v{10+s}"]
        for t in range(6):
            mtx, ft = divmod(t, 3)
            for r in range(2):
                L.append(f"ds_read_b64_tr_b16 v[{fb+4+4*t+2*r}:{fb+5+4*t+2*r}], v14 offset:{mtx*12288 + (16*s+4*r)*192 + ft*64}")
        return L
    def mfmas(s):
        fb = FB + 28 * (s & 1)
        return [f"v_mfma_f32_32x32x16_bf16 v[{AC+16*t}:{AC+16*t+15}], v[{fb+4+4*t}:{fb+7+4*t}], v[{fb}:{fb+3}], v[{AC+16*t}:{AC+16*t+15}]" for t in range(6)]
    k("s_barrier")
    if 'stamp' in opt: stamp(k, 1)
    k(*reads(0))
    for kt in range(NK):
        for s in range(4):
            k("s_waitcnt lgkmcnt(0)")
            M = mfmas(s)
            if s < 3:
                interleave(k, M, reads(s+1), [3, 3, 3, 2, 2, 0])
            elif kt + 1 < NK:
                k(M[0], "s_barrier")
                d = STB if (kt + 1) % NST else -(NST-1)*STB
                for r in range(10, 15): k(f"v_add_u32 v{r}, {d & 0xffffffff:#x}, v{r}")
                interleave(k, M[1:], reads(0), [3, 3, 3, 2, 2])
            else:
                k(*M)
        if kt == 3:
            k("s_waitcnt vmcnt(0)")
            merge_stats(k, CSV+48, 16, STV, STV+2)
            k(f"v_mov_b32 v{STV+1}, v{STV}", f"v_mov_b32 v{STV+3}, v{STV+2}")
            cs_load(4, CSV+48)
    if 'stamp' in opt: stamp(k, 2)
    cs_load(2, FB); cs_load(5, FB+16) if False else None
    k.L.pop() if False else None
    k("s_barrier")
    cs_load(5, FB+28)
    k("s_mul_i32 s32, s29, 6656")
    k("v_and_b32 v25, 31, v1", "v_mul_u32_u24 v25, 208, v25", "v_lshrrev_b32 v26, 5, v1", "v_lshl_add_u32 v25, v26, 3, v25", "v_add_u32 v25, s32, v25")
    k("v_lshrrev_b32 v26, 2, v1", "v_mul_u32_u24 v26, 208, v26", "v_and_b32 v27, 3, v1", "v_lshl_add_u32 v26, v27, 4, v26", "v_add_u32 v26, s32, v26")
    k("v_lshrrev_b32 v28, 2, v1", "s_lshl_b32 s32, s26, 7", "s_lshl_b32 s33, s29, 5", "s_add_u32 s32, s32, s33", "v_add_u32 v28, s32, v28", "v_mul_u32_u24 v28, 3072, v28")
    k("v_lshl_add_u32 v28, v27, 4, v28", "s_mul_i32 s32, s27, 192", "v_add_u32 v28, s32, v28")
    k("v_mov_b32 v16, 0xbfb8aa3b", "v_mov_b32 v17, 0xbfb8aa3b", "v_mov_b32 v18, 1.0", "v_mov_b32 v19, 1.0")
    csreg = {0: CSV, 3: CSV+16, 1: CSV+32, 4: CSV+48, 2: FB, 5: FB+28}
    for ft in range(3):
        if ft == 0: k("s_waitcnt vmcnt(8)")
        if ft == 2: k("s_waitcnt vmcnt(0)")
        ag = AC + 16*ft; au = AC + 16*(3+ft); cg = csreg[ft]; cu = csreg[3+ft]
        for r in range(0, 16, 2):
            k(f"v_pk_fma_f32 v[{ag+r}:{ag+r+1}], v[{STV}:{STV+1}], v[{cg+r}:{cg+r+1}], v[{ag+r}:{ag+r+1}] neg_lo:[1,0,0] neg_hi:[1,0,0]")
            k(f"v_pk_fma_f32 v[{au+r}:{au+r+1}], v[{STV}:{STV+1}], v[{cu+r}:{cu+r+1}], v[{au+r}:{au+r+1}] neg_lo:[1,0,0] neg_hi:[1,0,0]")
            k(f"v_pk_mul_f32 v[{ag+r}:{ag+r+1}], v[{ag+r}:{ag+r+1}], v[{STV+2}:{STV+3}]")
            k(f"v_pk_mul_f32 v[{au+r}:{au+r+1}], v[{au+r}:{au+r+1}], v[{STV+2}:{STV+3}]")
            k(f"v_cvt_pk_bf16_f32 v20, v{ag+r}, v{ag+r+1}", f"v_cvt_pk_bf16_f32 v21, v{au+r}, v{au+r+1}")
            k(f"v_lshlrev_b32 v{ag+r}, 16, v20", f"v_and_b32 v{ag+r+1}, 0xffff0000, v20", f"v_lshlrev_b32 v{au+r}, 16, v21", f"v_and_b32 v{au+r+1}, 0xffff0000, v21")
            k(f"v_pk_mul_f32 v[{ag+r}:{ag+r+1}], v[{ag+r}:{ag+r+1}], v[16:17]")
            k(f"v_exp_f32 v{ag+r}, v{ag+r}", f"v_exp_f32 v{ag+r+1}, v{ag+r+1}", "s_nop 0")
            k(f"v_pk_add_f32 v[{ag+r}:{ag+r+1}], v[{ag+r}:{ag+r+1}], v[18:19]")
            k(f"v_rcp_f32 v{ag+r}, v{ag+r}", f"v_rcp_f32 v{ag+r+1}, v{ag+r+1}", "s_nop 0")
            k(f"v_cvt_pk_bf16_f32 v20, v{ag+r}, v{ag+r+1}")
            k(f"v_lshlrev_b32 v{ag+r}, 16, v20", f"v_and_b32 v{ag+r+1}, 0xffff0000, v20")
            k(f"v_pk_mul_f32 v[{ag+r}:{ag+r+1}], v[{ag+r}:{ag+r+1}], v[{au+r}:{au+r+1}]")
        for g in range(4):
            d = 2 + 2*(g & 3)
            k(f"v_cvt_pk_bf16_f32 v{d}, v{ag+4*g}, v{ag+4*g+1}", f"v_cvt_pk_bf16_f32 v{d+1}, v{ag+4*g+2}, v{ag+4*g+3}")
            k(f"ds_write_b64 v25, v[{d}:{d+1}] offset:{ft*64 + g*16}")
    k("s_waitcnt lgkmcnt(0)")
    n = 0
    for hh in range(2):
        for seg in range(3):
            k(f"ds_read_b128 v[{AC+4*n}:{AC+4*n+3}], v26 offset:{hh*16*208 + seg*64}"); n += 1
    n = 0
    for hh in range(2):
        for seg in range(3):
            k(f"s_waitcnt lgkmcnt({5-n})", f"s_mov_b32 s32, {hh*16*3072}", f"buffer_store_dwordx4 v[{AC+4*n}:{AC+4*n+3}], v28, s[16:19], s32 offen offset:{seg*64}"); n += 1
    if 'stamp' in opt:
        stamp(k, 3); k("s_waitcnt vmcnt(0)"); stamp(k, 4); stamps_out(k, 5, 17)
    k.lab(done)
    k("s_endpgm")
    k.lab(lload)
    k("s_sub_u32 s29, s29, 4")
    act_dma_voffs(k)
    k("s_mul_i32 s32, s27, 245760", "s_mul_i32 s31, s29, 6144", "s_add_u32 s32, s32, s31", "v_lshlrev_b32 v6, 4, v1", "v_add_u32 v6, s32, v6", "v_add_u32 v7, 4096, v6")
    k("s_lshl_b32 s34, s29, 12")
    ptr_srds(k, specs)
    def dma_list(kt):
        st = kt % NST
        L = [f"s_add_u32 m0, s34, {st*STB}", f"s_mov_b32 s35, {kt*128}"]
        L += [f"buffer_load_dwordx4 v{2+j}, s[4:7], s35 offen offset:{j*1024} lds" for j in range(4)]
        L += [f"s_add_u32 m0, s31, {st*STB + 16384}", f"s_mov_b32 s30, {kt*24576}"]
        L += [f"buffer_load_dwordx4 v6, s[8:11], s30 offen offset:{j*1024} lds" for j in range(4)]
        L += [f"s_add_u32 m0, s31, {st*STB + 16384 + 4096}", "s_nop 0"]
        L += [f"buffer_load_dwordx4 v7, s[8:11], s30 offen offset:{j*1024} lds" for j in range(2)]
        return L
    loader_loop(k, NK, NST, dma_list, 10)
    return k

def gen_out(name, asrc, KK, wsrc, rsrc, dst, stdst, opt=''):
    NK = KK // 128; NST = 4; STB = 36864; AP = KK * 2
    k = K(name, 256, 512, NST*STB)
    done = k.newlab("done"); lload = k.newlab("loader")
    k("s_cmp_ge_u32 s2, 256", f"s_cbranch_scc1 {done}")
    k("s_and_b32 s24, s2, 7", "s_lshr_b32 s25, s2, 3", "s_lshl_b32 s26, s24, 2", "s_and_b32 s27, s25, 3", "s_add_u32 s26, s26, s27", "s_lshr_b32 s27, s25, 2")
    if 'stamp' in opt: stamp(k, 0)
    specs = [(4, asrc), (8, wsrc), (12, rsrc), (16, dst)] + ([(20, stdst)] if stdst else [])
    ptr_loads(k, specs)
    k("v_and_b32 v1, 63, v0", "v_lshrrev_b32 v25, 6, v0", "s_nop 0", "v_readfirstlane_b32 s29, v25")
    k("s_nop 3", "s_cmp_ge_u32 s29, 4", f"s_cbranch_scc1 {lload}")
    FB = 32; AC = 104; RS = 184
    k("v_and_b32 v25, 15, v1", "v_lshrrev_b32 v26, 4, v1", "s_lshl_b32 s32, s29, 2", "v_add_u32 v26, s32, v26", "v_xor_b32 v26, v26, v25", "v_lshlrev_b32 v26, 4, v26", "v_lshl_add_u32 v10, v25, 8, v26")
    k("v_lshrrev_b32 v26, 4, v1", "v_lshlrev_b32 v26, 3, v26", "v_bfe_u32 v27, v1, 2, 2", "v_add_u32 v26, v26, v27", "s_lshl_b32 s32, s29, 5", "v_add_u32 v26, s32, v26", "v_mul_u32_u24 v26, 160, v26")
    k("v_and_b32 v27, 3, v1", "v_lshl_add_u32 v26, v27, 3, v26", "v_add_u32 v11, 16384, v26")
    k("s_lshl_b32 s32, s26, 6", "s_lshl_b32 s33, s29, 4", "s_add_u32 s32, s32, s33", "v_add_u32 v28, s32, v25", "v_mul_u32_u24 v29, 1280, v28")
    k("v_lshrrev_b32 v26, 4, v1", "v_lshl_add_u32 v29, v26, 3, v29", "s_mul_i32 s32, s27, 160", "v_add_u32 v29, s32, v29")
    for i in range(AC, AC+80): k(f"v_mov_b32 v{i}, 0")
    ptr_srds(k, specs)
    for ft in range(5): k(f"buffer_load_dwordx2 v[{RS+2*ft}:{RS+2*ft+1}], v29, s[12:15], 0 offen offset:{ft*32}")
    def reads(p):
        fb = FB + 36 * p; L = []
        for tt in range(4): L.append(f"ds_read_b128 v[{fb+4*tt}:{fb+4*tt+3}], v10 offset:{tt*4096}")
        for ft in range(5):
            for r in range(2): L.append(f"ds_read_b64_tr_b16 v[{fb+16+4*ft+2*r}:{fb+17+4*ft+2*r}], v11 offset:{4*r*160 + ft*32}")
        return L
    def mfmas(p):
        fb = FB + 36 * p; L = []
        for ft in range(5):
            for tt in range(4):
                a = AC + (ft*4+tt)*4
                L.append(f"v_mfma_f32_16x16x32_bf16 v[{a}:{a+3}], v[{fb+16+4*ft}:{fb+19+4*ft}], v[{fb+4*tt}:{fb+4*tt+3}], v[{a}:{a+3}]")
        return L
    k("s_barrier")
    if 'stamp' in opt: stamp(k, 1)
    k(*reads(0))
    for kt in range(NK):
        k("s_waitcnt lgkmcnt(0)")
        M = mfmas(kt & 1)
        if kt + 1 < NK:
            k(M[0], "s_barrier")
            d = STB if (kt + 1) % NST else -(NST-1)*STB
            for r in (10, 11): k(f"v_add_u32 v{r}, {d & 0xffffffff:#x}, v{r}")
            interleave(k, M[1:], reads((kt+1) & 1), [1]*14 + [0]*5)
        else:
            k(*M)
    if 'stamp' in opt: stamp(k, 2)
    k("s_barrier")
    k("v_lshlrev_b32 v25, 4, v1", "s_mul_i32 s32, s29, 20480", "v_add_u32 v26, s32, v25")
    k("s_mul_i32 s32, s29, 5120", "v_add_u32 v27, s32, v25", "v_add_u32 v24, 40960, v27")
    k("s_nop 7")
    lw = [k.newlab("rw") for _ in range(4)]
    for tt in range(4):
        k(f"s_cmp_eq_u32 s29, {tt}", f"s_cbranch_scc1 {lw[tt]}")
        for ft in range(5):
            a = AC + (ft*4+tt)*4
            k(f"ds_write_b128 v26, v[{a}:{a+3}] offset:{(tt*5+ft)*1024}")
        k.lab(lw[tt])
    k("s_waitcnt lgkmcnt(0)", "s_barrier")
    le = k.newlab("e");
    labs = [k.newlab("own") for _ in range(4)]
    for tt in range(4):
        k(f"s_cmp_eq_u32 s29, {tt}", f"s_cbranch_scc1 {labs[tt]}")
    for tt in range(4):
        k.lab(labs[tt])
        for ft in range(5):
            for r in range(4): k(f"v_mov_b32 v{FB+4*ft+r}, v{AC+(ft*4+tt)*4+r}")
        n = 0
        for src in range(4):
            if src == tt: continue
            for ft in range(5):
                k(f"ds_read_b128 v[{AC+4*n}:{AC+4*n+3}], v{27 if src < 2 else 24} offset:{(src&1)*20480 + ft*1024}"); n += 1
        k(f"s_branch {le}")
    k.lab(le)
    k("s_waitcnt lgkmcnt(0) vmcnt(0)")
    for sidx in range(3):
        for ft in range(5):
            for r in range(0, 4, 2):
                k(f"v_pk_add_f32 v[{FB+4*ft+r}:{FB+4*ft+r+1}], v[{FB+4*ft+r}:{FB+4*ft+r+1}], v[{AC+4*(sidx*5+ft)+r}:{AC+4*(sidx*5+ft)+r+1}]")
    for ft in range(5):
        for p in range(2):
            a = FB + 4*ft + 2*p; x = RS + 2*ft + p
            k(f"v_cvt_pk_bf16_f32 v20, v{a}, v{a+1}", f"v_lshlrev_b32 v{a}, 16, v20", f"v_and_b32 v{a+1}, 0xffff0000, v20")
            k(f"v_lshlrev_b32 v21, 16, v{x}", f"v_and_b32 v22, 0xffff0000, v{x}", f"v_add_f32 v{a}, v{a}, v21", f"v_add_f32 v{a+1}, v{a+1}, v22")
            k(f"v_cvt_pk_bf16_f32 v{x}, v{a}, v{a+1}")
            if stdst: k(f"v_lshlrev_b32 v{a}, 16, v{x}", f"v_and_b32 v{a+1}, 0xffff0000, v{x}")
        k(f"buffer_store_dwordx2 v[{RS+2*ft}:{RS+2*ft+1}], v29, s[16:19], 0 offen offset:{ft*32}")
    if stdst:
        def xsum(v, t):
            k(f"v_mov_b32 v{t}, v{v}", "s_nop 1", f"v_permlane16_swap_b32 v{v}, v{t}", f"v_add_f32 v{v}, v{v}, v{t}")
            k(f"v_mov_b32 v{t}, v{v}", "s_nop 1", f"v_permlane32_swap_b32 v{v}, v{t}", f"v_add_f32 v{v}, v{v}, v{t}")
        k(f"v_add_f32 v20, v{FB}, v{FB+1}")
        for i in range(2, 20): k(f"v_add_f32 v20, v20, v{FB+i}")
        xsum(20, 22)
        k("v_mul_f32 v23, 0x3c4ccccd, v20", "v_mov_b32 v21, 0")
        for i in range(20): k(f"v_sub_f32 v22, v{FB+i}, v23", "v_fmac_f32 v21, v22, v22")
        xsum(21, 22)
        k("v_lshlrev_b32 v28, 6, v28", "s_lshl_b32 s32, s27, 3", "v_add_u32 v28, s32, v28")
        k("v_cmp_gt_u32 vcc, 16, v1", "s_and_saveexec_b64 s[36:37], vcc", f"s_cbranch_execz {done}")
        k("buffer_store_dwordx2 v[20:21], v28, s[20:23], 0 offen")
        if 'stamp' in opt:
            k("s_mov_b64 exec, s[36:37]"); stamp(k, 3); k("s_waitcnt vmcnt(0)"); stamp(k, 4); stamps_out(k, 5, 17)
    k.lab(done)
    k("s_endpgm")
    k.lab(lload)
    k("s_sub_u32 s29, s29, 4")
    k("s_lshl_b32 s32, s26, 6", "s_lshl_b32 s33, s29, 4", "s_add_u32 s32, s32, s33", "v_lshrrev_b32 v25, 4, v1", "v_and_b32 v26, 15, v1", f"s_mov_b32 s33, {AP}")
    for jj in range(4):
        k(f"v_add_u32 v27, {4*jj}, v25", "v_xor_b32 v28, v26, v27", "v_add_u32 v27, s32, v27", "v_mul_lo_u32 v27, v27, s33", "v_lshl_add_u32 v27, v28, 4, v27", f"v_subrev_u32 v{2+jj}, {jj*1024}, v27")
    k(f"s_mul_i32 s32, s27, {KK*160}", "s_mul_i32 s31, s29, 5120", "s_add_u32 s32, s32, s31", "v_lshlrev_b32 v6, 4, v1", "v_add_u32 v6, s32, v6", "v_add_u32 v7, 4096, v6")
    k("s_lshl_b32 s34, s29, 12")
    ptr_srds(k, specs)
    def dma_list(kt):
        st = kt % NST
        L = [f"s_add_u32 m0, s34, {st*STB}", f"s_mov_b32 s35, {kt*256}"]
        L += [f"buffer_load_dwordx4 v{2+j}, s[4:7], s35 offen offset:{j*1024} lds" for j in range(4)]
        L += [f"s_add_u32 m0, s31, {st*STB + 16384}", f"s_mov_b32 s30, {kt*20480}"]
        L += [f"buffer_load_dwordx4 v6, s[8:11], s30 offen offset:{j*1024} lds" for j in range(4)]
        L += [f"s_add_u32 m0, s31, {st*STB + 16384 + 4096}", "s_nop 0", "buffer_load_dwordx4 v7, s[8:11], s30 offen lds"]
        return L
    loader_loop(k, NK, NST, dma_list, 9)
    return k

def gen_attn(name, opt=''):
    VB = 20480
    k = K(name, 256, 512, 40960 + 128)
    done = k.newlab("done")
    specs = [(4, 'QKV'), (16, 'O')]
    ptr_loads(k, specs)
    k("s_cmp_ge_u32 s2, 256", f"s_cbranch_scc1 {done}")
    k("s_and_b32 s26, s2, 7", "s_lshr_b32 s27, s2, 3")
    if 'stamp' in opt: stamp(k, 0)
    k("v_and_b32 v1, 63, v0", "v_lshrrev_b32 v25, 6, v0", "s_nop 0", "v_readfirstlane_b32 s29, v25", "s_nop 3")
    k("s_lshr_b32 s32, s29, 2", "s_add_u32 s32, s32, 1", "s_lshl_b32 s32, s32, 5", "s_add_u32 s32, s32, s27", "s_mul_i32 s32, s32, 81920")
    k("s_mul_i32 s33, s26, 10240", "s_add_u32 s32, s32, s33", "s_sub_u32 s32, s32, 10240", "s_and_b32 s33, s29, 3", "s_mul_i32 s33, s33, 5120", "s_add_u32 s32, s32, s33")
    k("v_lshlrev_b32 v2, 4, v1", "v_add_u32 v2, s32, v2", "v_add_u32 v3, 4096, v2")
    k("s_mul_i32 s34, s29, 5120")
    k("v_and_b32 v20, 31, v1", "s_lshl_b32 s32, s26, 8", "s_lshl_b32 s35, s29, 5", "s_add_u32 s32, s32, s35", "v_add_u32 v4, s32, v20")
    k("v_mul_u32_u24 v5, 40, v4", "s_mul_i32 s33, s27, 81920", "v_add_u32 v5, s33, v5", "v_lshrrev_b32 v6, 5, v1", "v_lshl_add_u32 v7, v6, 4, v5")
    ptr_srds(k, specs)
    k("s_mov_b32 m0, s34", "s_nop 0")
    for j in range(4): k(f"buffer_load_dwordx4 v2, s[4:7], 0 offen offset:{j*1024} lds")
    k("s_add_u32 m0, s34, 4096", "s_nop 0", "buffer_load_dwordx4 v3, s[4:7], 0 offen lds")
    k("buffer_load_dwordx2 v[8:9], v7, s[4:7], 0 offen", "buffer_load_dwordx2 v[10:11], v7, s[4:7], 0 offen offset:8", "buffer_load_dwordx2 v[12:13], v5, s[4:7], 0 offen offset:32")
    k("v_mov_b32 v14, 0", "v_mov_b32 v15, 0")
    k("v_add_u32 v16, s35, v20", "v_mul_u32_u24 v16, 40, v16", "v_lshl_add_u32 v16, v6, 4, v16")
    k("v_lshlrev_b32 v17, 2, v6", "v_bfe_u32 v18, v1, 2, 2", "v_add_u32 v17, v17, v18", "v_add_u32 v17, s35, v17", "v_mul_u32_u24 v17, 40, v17")
    k("v_bfe_u32 v18, v1, 4, 1", "v_lshl_add_u32 v17, v18, 5, v17", "v_and_b32 v18, 3, v1", "v_lshl_add_u32 v17, v18, 3, v17", f"v_add_u32 v17, {VB}, v17")
    k("v_lshlrev_b32 v18, 2, v6", "v_sub_u32 v18, v20, v18")
    k("v_cmp_gt_u32 vcc, 32, v1")
    k("s_waitcnt vmcnt(0)")
    k("v_cndmask_b32 v12, 0, v12, vcc", "v_cndmask_b32 v13, 0, v13, vcc")
    k("s_barrier")
    if 'stamp' in opt: stamp(k, 1)
    S = 64; KF = 24
    def kread(i):
        b = KF + 8*(i & 1)
        k(f"ds_read2_b64 v[{b}:{b+3}], v16 offset0:{i*160} offset1:{i*160+1}") if False else None
        for p, o in enumerate((0, 8, 32, 40)):
            k(f"ds_read_b64 v[{b+2*p}:{b+2*p+1}], v16 offset:{i*1280+o}")
    kread(0)
    for i in range(9):
        if i < 8: kread(i+1); k("s_waitcnt lgkmcnt(4)")
        else: k("s_waitcnt lgkmcnt(0)")
        b = KF + 8*(i & 1); a = S + 16*i
        k(f"v_mfma_f32_32x32x16_bf16 v[{a}:{a+15}], v[{b}:{b+3}], v[8:11], 0")
        k(f"v_mfma_f32_32x32x16_bf16 v[{a}:{a+15}], v[{b+4}:{b+7}], v[12:15], v[{a}:{a+15}]")
    k("s_nop 7", "s_nop 7")
    if 'stamp' in opt: stamp(k, 2)
    emu = 'emu' in opt
    if emu:
        k("v_mov_b32 v40, 0x3e64f92e", "v_mov_b32 v41, 0x3e64f92e")
        for r in range(S, S+144, 2):
            k(f"v_cvt_pk_bf16_f32 v42, v{r}, v{r+1}", f"v_lshlrev_b32 v{r}, 16, v42", f"v_and_b32 v{r+1}, 0xffff0000, v42")
            k(f"v_pk_mul_f32 v[{r}:{r+1}], v[{r}:{r+1}], v[40:41]")
            k(f"v_cvt_pk_bf16_f32 v42, v{r}, v{r+1}", f"v_lshlrev_b32 v{r}, 16, v42", f"v_and_b32 v{r+1}, 0xffff0000, v42")
    k("v_mov_b32 v43, 0xce6e6b28")
    for g in range(4):
        for r in range(4):
            c = 8*g + r
            k(f"v_cmp_le_i32 vcc, {c}, v18", "s_nop 1")
            k(f"v_cndmask_b32 v{S+128+4*g+r}, v43, v{S+128+4*g+r}, vcc", f"v_cndmask_b32 v{S+4*g+r}, v{S+4*g+r}, v43, vcc")
    lq = k.newlab("q0")
    k("s_cmp_lg_u32 s26, 0", f"s_cbranch_scc1 {lq}")
    for i in range(8):
        ls = k.newlab("sk")
        k(f"s_add_u32 s32, s29, {i}", "s_cmp_ge_u32 s32, 8", f"s_cbranch_scc1 {ls}")
        for r in range(16): k(f"v_mov_b32 v{S+16*i+r}, v43")
        k.lab(ls)
    k.lab(lq)
    if 'stamp' in opt: stamp(k, 3)
    k(f"v_max3_f32 v44, v{S}, v{S+1}, v{S+2}", f"v_max3_f32 v45, v{S+3}, v{S+4}, v{S+5}")
    rr = list(range(S+6, S+144, 2))
    for n, r in enumerate(rr): k(f"v_max3_f32 v{44+(n&1)}, v{44+(n&1)}, v{r}, v{r+1}")
    k("v_max_f32 v44, v44, v45")
    k("v_mov_b32 v45, v44", "s_nop 1", "v_permlane32_swap_b32 v44, v45", "v_max_f32 v44, v44, v45")
    cc = 0x3fb8aa3b if emu else 0x3ea52a0b
    import struct
    if not emu:
        cc = struct.unpack('<I', struct.pack('<f', 1.4426950408889634 * struct.unpack('<f', struct.pack('<I', 0x3e64f92e))[0]))[0]
    k(f"v_mov_b32 v40, {cc:#x}", f"v_mov_b32 v41, {cc:#x}", "v_mul_f32 v44, v44, v40", "v_sub_f32 v44, 0, v44", "v_mov_b32 v45, v44", "v_mov_b32 v46, 0", "v_mov_b32 v47, 0")
    for i in range(9):
        for q in range(8):
            r = S + 16*i + 2*q
            k(f"v_pk_fma_f32 v[{r}:{r+1}], v[{r}:{r+1}], v[40:41], v[44:45]")
            k(f"v_exp_f32 v{r}, v{r}", f"v_exp_f32 v{r+1}, v{r+1}")
            if (i, q) != (0, 0):
                pr = r - 2 if q else S + 16*(i-1) + 14; pq = (S + 16*i + q - 1) if q else (S + 16*(i-1) + 7)
                k(f"v_pk_add_f32 v[46:47], v[46:47], v[{pr}:{pr+1}]", f"v_cvt_pk_bf16_f32 v{pq}, v{pr}, v{pr+1}")
    k("s_nop 0", f"v_pk_add_f32 v[46:47], v[46:47], v[{S+142}:{S+143}]", f"v_cvt_pk_bf16_f32 v{S+128+7}, v{S+142}, v{S+143}")
    k("v_add_f32 v46, v46, v47", "v_mov_b32 v47, v46", "s_nop 1", "v_permlane32_swap_b32 v46, v47", "v_add_f32 v46, v46, v47")
    k("v_rcp_f32 v46, v46", "s_nop 0", "v_mov_b32 v47, v46")
    if 'stamp' in opt: stamp(k, 4)
    OA = 208; VF = 24
    def vread(i):
        b = VF + 8*(i & 1)
        for m in range(2):
            for r in range(2):
                k(f"ds_read_b64_tr_b16 v[{b+4*m+2*r}:{b+4*m+2*r+1}], v17 offset:{(32*i+16*m+8*r)*40}")
    vread(0)
    for i in range(9):
        if i < 8: vread(i+1); k("s_waitcnt lgkmcnt(4)")
        else: k("s_waitcnt lgkmcnt(0)")
        b = VF + 8*(i & 1); p = S + 16*i
        for m in range(2):
            c = "0" if (i == 0 and m == 0) else f"v[{OA}:{OA+15}]"
            k(f"v_mfma_f32_32x32x16_bf16 v[{OA}:{OA+15}], v[{b+4*m}:{b+4*m+3}], v[{p+4*m}:{p+4*m+3}], {c}")
    if 'stamp' in opt: stamp(k, 5)
    k("v_mul_u32_u24 v5, 1280, v4", "s_mul_i32 s33, s27, 40", "v_add_u32 v5, s33, v5", "v_lshl_add_u32 v5, v6, 3, v5")
    k("s_nop 7", "s_nop 7")
    for g in range(3):
        k(f"v_pk_mul_f32 v[{OA+4*g}:{OA+4*g+1}], v[{OA+4*g}:{OA+4*g+1}], v[46:47]", f"v_pk_mul_f32 v[{OA+4*g+2}:{OA+4*g+3}], v[{OA+4*g+2}:{OA+4*g+3}], v[46:47]")
        k(f"v_cvt_pk_bf16_f32 v{40+2*g}, v{OA+4*g}, v{OA+4*g+1}", f"v_cvt_pk_bf16_f32 v{41+2*g}, v{OA+4*g+2}, v{OA+4*g+3}")
    k("buffer_store_dwordx2 v[40:41], v5, s[16:19], 0 offen", "buffer_store_dwordx2 v[42:43], v5, s[16:19], 0 offen offset:16")
    k("v_cmp_gt_u32 vcc, 32, v1", "s_and_saveexec_b64 s[36:37], vcc", f"s_cbranch_execz {done}")
    k("buffer_store_dwordx2 v[44:45], v5, s[16:19], 0 offen offset:32")
    if 'stamp' in opt:
        k("s_mov_b64 exec, s[36:37]", "s_waitcnt vmcnt(0)"); stamp(k, 6); stamps_out(k, 7, 17)
    k.lab(done)
    k("s_endpgm")
    return k

def build(kernels, launches, path):
    hdr = []
    for kn in launches:
        hdr.append(f"; @launch kernel={kn.name} grid=({kn.grid},1,1) block=({kn.block},1,1) lds={kn.lds}")
    out = "\n".join(hdr) + "\n.amdgcn_target \"amdgcn-amd-amdhsa--gfx950\"\n.text\n"
    out += "\n".join(kn.text() for kn in kernels)
    out += "\n.section .rodata,\"a\"\n" + "\n".join(kn.desc() for kn in kernels) + "\n"
    open(path, "w").write(out)
    json.dump(WS, open("layout.json", "w"))

def main_stamp(which):
    prep = gen_prep("prep_kernel"); attn = gen_attn("attn_kernel", 'stamp')
    q1 = gen_qkv("qkv1_kernel", 'x', 'STX', 'stamp')
    w1 = gen_out("wo1_kernel", 'O', 640, 'WO', 'x', 'XA', 'STA', 'stamp')
    glu = gen_glu("glu_kernel", 'XA', 'STA', 'stamp')
    d1 = gen_out("dn1_kernel", 'H', 1536, 'WD', 'XA', 'XB', 'STB', 'stamp')
    ks = [prep, q1, attn, w1, glu, d1]
    build(ks, ks, "mb.s")

if __name__ == "__main__":
    if len(sys.argv) > 1:
        main_stamp(sys.argv[1]); sys.exit(0)
    prep = gen_prep("prep_kernel"); attn = gen_attn("attn_kernel")
    q1 = gen_qkv("qkv1_kernel", 'x', 'STX'); q2 = gen_qkv("qkv2_kernel", 'XB', 'STB')
    w1 = gen_out("wo1_kernel", 'O', 640, 'WO', 'x', 'XA', 'STA'); w2 = gen_out("wo2_kernel", 'O', 640, 'WO', 'XB', 'XA', 'STA')
    glu = gen_glu("glu_kernel", 'XA', 'STA')
    d1 = gen_out("dn1_kernel", 'H', 1536, 'WD', 'XA', 'XB', 'STB'); d2 = gen_out("dn2_kernel", 'H', 1536, 'WD', 'XA', 'out', None)
    ks = [prep, q1, attn, w1, glu, d1, q2, w2, d2]
    build(ks, [prep, q1, attn, w1, glu, d1, q2, attn, w2, glu, d2], "interleave_layers__sliding_block__glu_gated_glu__prompt.s")
```

```python
import json, sys, struct
sys.path.insert(0, 'dev')
import gen
from gen import K, KA, INSZ, interleave, merge_stats, rne_bf16, stamp, build, ptr_loads, ptr_srds

MB = 0x100000
WS = dict(QKV0=0, QKV1=8*MB, O0=16*MB, O1=19*MB, XA0=22*MB, XA1=25*MB, XB=28*MB, H0=31*MB, H1=38*MB,
          STX=45*MB, STA0=45*MB+0x40000, STA1=45*MB+0x80000, STB=45*MB+0xC0000, CS=46*MB, CNT=46*MB+0x40000,
          WQ=47*MB, WGU=50*MB, WO=54*MB, WD=55*MB)
SZ = dict(QKV0=2048*1920*2, QKV1=2048*1920*2, O0=2048*1280, O1=2048*1280, XA0=2048*1280, XA1=2048*1280, XB=2048*1280, H0=2048*3072, H1=2048*3072,
          STX=2048*64, STA0=2048*64, STA1=2048*64, STB=2048*64, CS=5120*4, CNT=640*128,
          WQ=16*640*256, WGU=16*640*384, WO=8*640*160, WD=8*1536*160)
gen.WS.clear(); gen.WS.update(WS); gen.SZ.clear(); gen.SZ.update(SZ)
SC = " sc1"

def srd(k, sreg, name):
    if name in WS:
        k(f"s_add_u32 s{sreg}, s84, {WS[name]:#x}", f"s_addc_u32 s{sreg+1}, s85, 0", f"s_mov_b32 s{sreg+2}, {SZ[name]}")
    else:
        p = {'x': 86, 'out': 88}[name]
        k(f"s_mov_b32 s{sreg}, s{p}", f"s_mov_b32 s{sreg+1}, s{p+1}", f"s_mov_b32 s{sreg+2}, {INSZ[name]}")
    k(f"s_and_b32 s{sreg+1}, s{sreg+1}, 0xffff", f"s_mov_b32 s{sreg+3}, 0x00020000")

def xcd_map16(k):
    k("s_and_b32 s24, s2, 7", "s_lshr_b32 s25, s2, 3")
    k("s_lshr_b32 s26, s24, 1", "s_lshl_b32 s26, s26, 2", "s_and_b32 s27, s25, 3", "s_add_u32 s26, s26, s27")
    k("s_and_b32 s27, s24, 1", "s_lshl_b32 s27, s27, 3", "s_lshr_b32 s25, s25, 2", "s_add_u32 s27, s27, s25")

def poll(k, emit_addr, target):
    lp = k.newlab("poll"); lo = k.newlab("pok")
    k("s_cmp_lg_u32 s29, 4", f"s_cbranch_scc1 {lo}")
    emit_addr(k)
    k("s_mov_b32 s38, 0")
    k.lab(lp)
    k("buffer_load_dword v23, v24, s[92:95], 0 offen sc1", "s_waitcnt vmcnt(0)", f"v_cmp_gt_u32 vcc, {target}, v23", "s_nop 4",
      f"s_cbranch_vccz {lo}", "s_add_u32 s38, s38, 1", "s_cmp_gt_u32 s38, 6000", f"s_cbranch_scc1 {lo}", "s_sleep 2", f"s_branch {lp}")
    k.lab(lo)

def signal(k, sidx_reg):
    l = k.newlab("nosig"); l2 = k.newlab("nosig2")
    k("s_cmp_lg_u32 s29, 0", f"s_cbranch_scc1 {l}")
    k(f"s_lshl_b32 s38, s{sidx_reg}, 7", "v_mov_b32 v24, s38", "v_mov_b32 v23, 1")
    k("v_cmp_eq_u32 vcc, 0, v1", "s_and_saveexec_b64 s[36:37], vcc", f"s_cbranch_execz {l2}")
    k("buffer_atomic_add v23, v24, s[92:95], 0 offen sc1")
    k.lab(l2)
    k("s_mov_b64 exec, s[36:37]")
    k.lab(l)

def loader_phase(k, NK, NST, wlist, alist, dep, nepi):
    ops = []
    def iss(L, st):
        for t in L:
            k(t)
            if t.startswith("buffer_load"): ops.append(st)
    for kt in range(min(NST, NK)): iss(wlist(kt), kt)
    if dep: dep();
    k("s_barrier")
    ai = -1
    def issue(upto):
        nonlocal ai
        while ai < min(upto, NK - 1):
            ai += 1
            if ai >= NST: iss(wlist(ai), ai)
            iss(alist(ai), ai)
    issue(1)
    for kt in range(NK):
        last = max(i for i, s in enumerate(ops) if s == kt)
        k(f"s_waitcnt vmcnt({len(ops)-1-last})", "s_barrier")
        issue(kt + NST - 1)
    for _ in range(nepi + 1): k("s_barrier")

def act_dma_voffs(k):
    k("s_lshl_b32 s32, s26, 7", "s_lshl_b32 s33, s28, 5", "s_add_u32 s32, s32, s33")
    k("v_lshrrev_b32 v25, 3, v1", "v_add_u32 v25, s32, v25", "v_mul_u32_u24 v25, 1280, v25")
    k("v_and_b32 v26, 7, v1", "v_lshrrev_b32 v27, 4, v1", "v_xor_b32 v26, v26, v27", "v_lshlrev_b32 v26, 4, v26")
    k("v_xor_b32 v27, 64, v26")
    for j in range(4):
        k(f"v_add_u32 v{2+j}, v25, v{26 + (j&1)}")
        if j: k(f"v_add_u32 v{2+j}, {j*(8*1280-1024)}, v{2+j}")

def cnt_single(idx_sreg, base):
    def f(k): k(f"s_add_u32 s38, s{idx_sreg}, {base}", "s_lshl_b32 s38, s38, 7", "v_mov_b32 v24, s38")
    return f

def ph_qkv(k, L, xsrc, statsrc, st0=None):
    NK = 10; NST = 4; STB = 32768
    lload = k.newlab("loader"); lend = k.newlab("end")
    xcd_map16(k)
    srd(k, 4, xsrc); srd(k, 8, 'WQ'); srd(k, 16, f'QKV{L}'); srd(k, 20, statsrc); srd(k, 12, 'CS')
    k("s_cmp_ge_u32 s29, 4", f"s_cbranch_scc1 {lload}")
    k("s_and_b32 s30, s29, 1", "s_lshr_b32 s31, s29, 1")
    k("v_and_b32 v25, 31, v1", "s_lshl_b32 s32, s26, 7", "s_lshl_b32 s33, s31, 6", "s_add_u32 s32, s32, s33", "v_add_u32 v28, s32, v25")
    k("v_lshlrev_b32 v29, 6, v28")
    k("v_lshrrev_b32 v30, 5, v1", "v_lshlrev_b32 v30, 4, v30", "s_lshl_b32 s32, s27, 9", "s_lshl_b32 s33, s30, 8", "s_add_u32 s32, s32, s33", "v_add_u32 v30, s32, v30")
    k("v_and_b32 v25, 31, v1", "s_lshl_b32 s32, s31, 6", "v_add_u32 v26, s32, v25", "v_lshlrev_b32 v26, 7, v26")
    k("v_lshrrev_b32 v25, 1, v25", "v_and_b32 v25, 7, v25", "v_lshrrev_b32 v27, 5, v1", "v_xor_b32 v25, v25, v27")
    for s in range(4):
        k(f"v_xor_b32 v27, {2*s}, v25", f"v_lshl_add_u32 v{10+s}, v27, 4, v26")
    k("v_lshrrev_b32 v25, 5, v1", "v_lshlrev_b32 v25, 3, v25", "v_bfe_u32 v26, v1, 2, 2", "v_add_u32 v25, v25, v26", "v_lshlrev_b32 v25, 8, v25")
    k("v_bfe_u32 v27, v1, 4, 1", "v_lshl_add_u32 v25, v27, 5, v25", "v_and_b32 v27, 3, v1", "v_lshl_add_u32 v25, v27, 3, v25", "v_add_u32 v25, 16384, v25")
    k("s_lshl_b32 s32, s30, 1")
    for ft in range(2):
        k(f"s_add_u32 s33, s32, {ft}", "v_xor_b32 v27, s33, v26", f"v_lshl_add_u32 v{14+ft}, v27, 6, v25")
    for i in range(64, 128): k(f"v_mov_b32 v{i}, 0")
    for ft in range(2):
        for g in range(4): k(f"buffer_load_dwordx4 v[{128+16*ft+4*g}:{131+16*ft+4*g}], v30, s[12:15], 0 offen offset:{ft*128+g*32}")
    k("s_barrier")
    if st0 is not None: stamp(k, st0)
    for tt in range(2):
        for i in range(4): k(f"buffer_load_dwordx4 v[{160+16*tt+4*i}:{163+16*tt+4*i}], v29, s[20:23], 0 offen offset:{tt*2048+16*i}" + SC)
    def reads(s):
        fb = 32 + 16 * (s & 1); Ls = []
        for tt in range(2): Ls.append(f"ds_read_b128 v[{fb+4*tt}:{fb+4*tt+3}], v{10+s} offset:{tt*4096}")
        for ft in range(2):
            for r in range(2):
                Ls.append(f"ds_read_b64_tr_b16 v[{fb+8+4*ft+2*r}:{fb+8+4*ft+2*r+1}], v{14+ft} offset:{(16*s+4*r)*256}")
        return Ls
    def mfmas(s):
        fb = 32 + 16 * (s & 1); Ls = []
        for ft in range(2):
            for tt in range(2):
                a = 64 + (ft*2+tt)*16
                Ls.append(f"v_mfma_f32_32x32x16_bf16 v[{a}:{a+15}], v[{fb+8+4*ft}:{fb+8+4*ft+3}], v[{fb+4*tt}:{fb+4*tt+3}], v[{a}:{a+15}]")
        return Ls
    k("s_barrier")
    if st0 is not None: stamp(k, st0+1)
    k(*reads(0))
    for kt in range(NK):
        for s in range(4):
            k("s_waitcnt lgkmcnt(0)")
            M = mfmas(s)
            if s < 3:
                interleave(k, M, reads(s+1), [2, 2, 2, 0])
            elif kt + 1 < NK:
                k(M[0], "s_barrier")
                d = STB if (kt + 1) % NST else -(NST-1)*STB
                for r in range(10, 16): k(f"v_add_u32 v{r}, {d & 0xffffffff:#x}, v{r}")
                interleave(k, M[1:], reads(0), [2, 2, 2])
            else:
                k(*M)
        if kt == 3:
            k("s_waitcnt vmcnt(0)")
            for tt in range(2):
                merge_stats(k, 160+16*tt, 16, 192+4*tt, 194+4*tt)
                k(f"v_mov_b32 v{193+4*tt}, v{192+4*tt}", f"v_mov_b32 v{195+4*tt}, v{194+4*tt}")
        if kt == 5:
            k("s_mul_i32 s32, s29, 12288", "v_and_b32 v25, 31, v1", "v_mul_u32_u24 v25, 40, v25", "v_add_u32 v25, s32, v25", "v_cmp_gt_u32 vcc, 32, v1")
            for ft in range(2):
                for g in range(4):
                    def off(jg): return 7680 if jg == 15 else (jg // 5) * 2560 + (jg % 5) * 8
                    j0 = 8*ft + 2*g
                    k(f"v_mov_b32 v26, {off(j0+1)}", f"v_mov_b32 v27, {off(j0)}", "s_nop 0", "v_cndmask_b32 v26, v26, v27, vcc", f"v_add_u32 v{200+ft*4+g}, v25, v26")
            k("v_lshlrev_b32 v28, 4, v1", "v_add_u32 v208, s32, v28")
            k("s_lshl_b32 s32, s27, 1", "s_add_u32 s32, s32, s30", "s_mul_i32 s32, s32, 81920", "s_lshl_b32 s33, s26, 1", "s_add_u32 s33, s33, s31", "s_mul_i32 s33, s33, 2560", "s_add_u32 s39, s32, s33")
    if st0 is not None: stamp(k, st0+2)
    k("s_barrier")
    k("s_nop 4")
    for tt in range(2):
        for ft in range(2):
            a = 64 + (ft*2+tt)*16; vm = 192 + 4*tt; vr = 194 + 4*tt
            for r in range(0, 16, 2):
                k(f"v_pk_fma_f32 v[{a+r}:{a+r+1}], v[{vm}:{vm+1}], v[{128+ft*16+r}:{129+ft*16+r}], v[{a+r}:{a+r+1}] neg_lo:[1,0,0] neg_hi:[1,0,0]")
                k(f"v_pk_mul_f32 v[{a+r}:{a+r+1}], v[{a+r}:{a+r+1}], v[{vr}:{vr+1}]")
            for g in range(4):
                d = 32 + 2*((ft*4+g) % 8)
                k(f"v_cvt_pk_bf16_f32 v{d}, v{a+4*g}, v{a+4*g+1}", f"v_cvt_pk_bf16_f32 v{d+1}, v{a+4*g+2}, v{a+4*g+3}")
                k(f"ds_write_b64 v{200+ft*4+g}, v[{d}:{d+1}] offset:{tt*1280}")
    k("s_waitcnt lgkmcnt(0)")
    for wh in range(3):
        for n in range(3): k(f"ds_read_b128 v[{64+4*(wh*3+n)}:{67+4*(wh*3+n)}], v208 offset:{wh*2560+n*1024}")
    k("v_cmp_gt_u32 vcc, 32, v1")
    for n in range(2):
        for wh in range(3):
            i = wh*3+n
            k(f"s_add_u32 s33, s39, {wh*32*81920}", "s_waitcnt lgkmcnt(0)", f"buffer_store_dwordx4 v[{64+4*i}:{67+4*i}], v28, s[16:19], s33 offen offset:{n*1024}" + SC)
    k("s_and_saveexec_b64 s[36:37], vcc")
    for wh in range(3):
        i = wh*3+2
        k(f"s_add_u32 s33, s39, {wh*32*81920}", f"buffer_store_dwordx4 v[{64+4*i}:{67+4*i}], v28, s[16:19], s33 offen offset:2048" + SC)
    k("s_mov_b64 exec, s[36:37]")
    k("s_waitcnt vmcnt(0)", "s_barrier")
    if st0 is not None: stamp(k, st0+3)
    k("s_lshl_b32 s32, s26, 4", "s_add_u32 s32, s32, s27", f"s_add_u32 s32, s32, {L*320}")
    signal(k, 32)
    k(f"s_branch {lend}")
    k.lab(lload)
    act_dma_voffs(k)
    k("s_mul_i32 s32, s27, 163840", "s_lshl_b32 s33, s28, 12", "s_add_u32 s32, s32, s33", "v_lshlrev_b32 v6, 4, v1", "v_add_u32 v6, s32, v6")
    k("s_lshl_b32 s34, s28, 12")
    def wl(kt):
        st = kt % NST
        return [f"s_add_u32 m0, s34, {st*STB + 16384}", f"s_mov_b32 s36, {kt*16384}"] + [f"buffer_load_dwordx4 v6, s[8:11], s36 offen offset:{j*1024} lds" for j in range(4)]
    def al(kt):
        st = kt % NST
        return [f"s_add_u32 m0, s34, {st*STB}", f"s_mov_b32 s35, {kt*128}"] + [f"buffer_load_dwordx4 v{2+j}, s[4:7], s35 offen offset:{j*1024} sc1 lds" for j in range(4)]
    dep = (lambda: poll(k, cnt_single(26, 296), 16)) if L == 1 else None
    loader_phase(k, NK, NST, wl, al, dep, 1)
    k.lab(lend)

def ph_attn(k, L, st0=None):
    VB = 20480
    srd(k, 4, f'QKV{L}'); srd(k, 16, f'O{L}')
    k("s_and_b32 s26, s2, 7", "s_lshr_b32 s27, s2, 3")
    k("s_lshr_b32 s32, s29, 2", "s_add_u32 s32, s32, 1", "s_lshl_b32 s32, s32, 5", "s_add_u32 s32, s32, s27", "s_mul_i32 s32, s32, 81920")
    k("s_mul_i32 s33, s26, 10240", "s_add_u32 s32, s32, s33", "s_sub_u32 s32, s32, 10240", "s_mul_i32 s33, s28, 5120", "s_add_u32 s32, s32, s33")
    k("v_lshlrev_b32 v2, 4, v1", "v_add_u32 v2, s32, v2", "v_add_u32 v3, 4096, v2")
    k("s_mul_i32 s34, s29, 5120")
    k("v_and_b32 v20, 31, v1", "s_lshl_b32 s32, s26, 8", "s_lshl_b32 s35, s29, 5", "s_add_u32 s32, s32, s35", "v_add_u32 v4, s32, v20")
    k("v_mul_u32_u24 v5, 40, v4", "s_mul_i32 s33, s27, 81920", "v_add_u32 v5, s33, v5", "v_lshrrev_b32 v6, 5, v1", "v_lshl_add_u32 v7, v6, 4, v5")
    k("v_mov_b32 v14, 0", "v_mov_b32 v15, 0")
    k("v_add_u32 v16, s35, v20", "v_mul_u32_u24 v16, 40, v16", "v_lshl_add_u32 v16, v6, 4, v16")
    k("v_lshlrev_b32 v17, 2, v6", "v_bfe_u32 v18, v1, 2, 2", "v_add_u32 v17, v17, v18", "v_add_u32 v17, s35, v17", "v_mul_u32_u24 v17, 40, v17")
    k("v_bfe_u32 v18, v1, 4, 1", "v_lshl_add_u32 v17, v18, 5, v17", "v_and_b32 v18, 3, v1", "v_lshl_add_u32 v17, v18, 3, v17", f"v_add_u32 v17, {VB}, v17")
    k("v_lshlrev_b32 v18, 2, v6", "v_sub_u32 v18, v20, v18")
    def addr(k):
        k("v_and_b32 v24, 3, v1", "s_lshl_b32 s38, s26, 1", "s_sub_u32 s38, s38, 2", "v_add_u32 v24, s38, v24", "v_max_i32 v24, 0, v24")
        k("s_lshr_b32 s38, s27, 1", f"s_add_u32 s38, s38, {L*320}", "v_lshl_add_u32 v24, v24, 4, s38", "v_lshlrev_b32 v24, 7, v24")
    poll(k, addr, 1)
    k("s_barrier")
    if st0 is not None: stamp(k, st0)
    k("s_mov_b32 m0, s34", "s_nop 0")
    for j in range(4): k(f"buffer_load_dwordx4 v2, s[4:7], 0 offen offset:{j*1024} sc1 lds")
    k("s_add_u32 m0, s34, 4096", "s_nop 0", "buffer_load_dwordx4 v3, s[4:7], 0 offen sc1 lds")
    k("buffer_load_dwordx2 v[8:9], v7, s[4:7], 0 offen" + SC, "buffer_load_dwordx2 v[10:11], v7, s[4:7], 0 offen offset:8" + SC, "buffer_load_dwordx2 v[12:13], v5, s[4:7], 0 offen offset:32" + SC)
    k("v_cmp_gt_u32 vcc, 32, v1")
    k("s_waitcnt vmcnt(0)")
    k("v_cndmask_b32 v12, 0, v12, vcc", "v_cndmask_b32 v13, 0, v13, vcc")
    k("s_barrier")
    if st0 is not None: stamp(k, st0+1)
    S = 64; KF = 24
    def kread(i):
        b = KF + 8*(i & 1)
        for p, o in enumerate((0, 8, 32, 40)):
            k(f"ds_read_b64 v[{b+2*p}:{b+2*p+1}], v16 offset:{i*1280+o}")
    kread(0)
    for i in range(9):
        if i < 8: kread(i+1); k("s_waitcnt lgkmcnt(4)")
        else: k("s_waitcnt lgkmcnt(0)")
        b = KF + 8*(i & 1); a = S + 16*i
        k(f"v_mfma_f32_32x32x16_bf16 v[{a}:{a+15}], v[{b}:{b+3}], v[8:11], 0")
        k(f"v_mfma_f32_32x32x16_bf16 v[{a}:{a+15}], v[{b+4}:{b+7}], v[12:15], v[{a}:{a+15}]")
    k("s_nop 7", "s_nop 7")
    k("v_mov_b32 v43, 0xce6e6b28")
    for g in range(4):
        for r in range(4):
            c = 8*g + r
            k(f"v_cmp_le_i32 vcc, {c}, v18", "s_nop 1")
            k(f"v_cndmask_b32 v{S+128+4*g+r}, v43, v{S+128+4*g+r}, vcc", f"v_cndmask_b32 v{S+4*g+r}, v{S+4*g+r}, v43, vcc")
    lq = k.newlab("q0")
    k("s_cmp_lg_u32 s26, 0", f"s_cbranch_scc1 {lq}")
    for i in range(8):
        ls = k.newlab("sk")
        k(f"s_add_u32 s32, s29, {i}", "s_cmp_ge_u32 s32, 8", f"s_cbranch_scc1 {ls}")
        for r in range(16): k(f"v_mov_b32 v{S+16*i+r}, v43")
        k.lab(ls)
    k.lab(lq)
    k(f"v_max3_f32 v44, v{S}, v{S+1}, v{S+2}", f"v_max3_f32 v45, v{S+3}, v{S+4}, v{S+5}")
    for n, r in enumerate(range(S+6, S+144, 2)): k(f"v_max3_f32 v{44+(n&1)}, v{44+(n&1)}, v{r}, v{r+1}")
    k("v_max_f32 v44, v44, v45")
    k("v_mov_b32 v45, v44", "s_nop 1", "v_permlane32_swap_b32 v44, v45", "v_max_f32 v44, v44, v45")
    cc = struct.unpack('<I', struct.pack('<f', 1.4426950408889634 * struct.unpack('<f', struct.pack('<I', 0x3e64f92e))[0]))[0]
    k(f"v_mov_b32 v40, {cc:#x}", f"v_mov_b32 v41, {cc:#x}", "v_mul_f32 v44, v44, v40", "v_sub_f32 v44, 0, v44", "v_mov_b32 v45, v44", "v_mov_b32 v46, 0", "v_mov_b32 v47, 0")
    for i in range(9):
        for q in range(8):
            r = S + 16*i + 2*q
            k(f"v_pk_fma_f32 v[{r}:{r+1}], v[{r}:{r+1}], v[40:41], v[44:45]")
            k(f"v_exp_f32 v{r}, v{r}", f"v_exp_f32 v{r+1}, v{r+1}")
            if (i, q) != (0, 0):
                pr = r - 2 if q else S + 16*(i-1) + 14; pq = (S + 16*i + q - 1) if q else (S + 16*(i-1) + 7)
                k(f"v_pk_add_f32 v[46:47], v[46:47], v[{pr}:{pr+1}]", f"v_cvt_pk_bf16_f32 v{pq}, v{pr}, v{pr+1}")
    k("s_nop 0", f"v_pk_add_f32 v[46:47], v[46:47], v[{S+142}:{S+143}]", f"v_cvt_pk_bf16_f32 v{S+128+7}, v{S+142}, v{S+143}")
    k("v_add_f32 v46, v46, v47", "v_mov_b32 v47, v46", "s_nop 1", "v_permlane32_swap_b32 v46, v47", "v_add_f32 v46, v46, v47")
    k("v_rcp_f32 v46, v46", "s_nop 0", "v_mov_b32 v47, v46")
    OA = 208; VF = 24
    def vread(i):
        b = VF + 8*(i & 1)
        for m in range(2):
            for r in range(2):
                k(f"ds_read_b64_tr_b16 v[{b+4*m+2*r}:{b+4*m+2*r+1}], v17 offset:{(32*i+16*m+8*r)*40}")
    vread(0)
    for i in range(9):
        if i < 8: vread(i+1); k("s_waitcnt lgkmcnt(4)")
        else: k("s_waitcnt lgkmcnt(0)")
        b = VF + 8*(i & 1); p = S + 16*i
        for m in range(2):
            c = "0" if (i == 0 and m == 0) else f"v[{OA}:{OA+15}]"
            k(f"v_mfma_f32_32x32x16_bf16 v[{OA}:{OA+15}], v[{b+4*m}:{b+4*m+3}], v[{p+4*m}:{p+4*m+3}], {c}")
    if st0 is not None: stamp(k, st0+2)
    k("v_mul_u32_u24 v5, 1280, v4", "s_mul_i32 s33, s27, 40", "v_add_u32 v5, s33, v5", "v_lshl_add_u32 v5, v6, 3, v5")
    k("s_nop 7", "s_nop 7")
    for g in range(3):
        k(f"v_pk_mul_f32 v[{OA+4*g}:{OA+4*g+1}], v[{OA+4*g}:{OA+4*g+1}], v[46:47]", f"v_pk_mul_f32 v[{OA+4*g+2}:{OA+4*g+3}], v[{OA+4*g+2}:{OA+4*g+3}], v[46:47]")
        k(f"v_cvt_pk_bf16_f32 v{40+2*g}, v{OA+4*g}, v{OA+4*g+1}", f"v_cvt_pk_bf16_f32 v{41+2*g}, v{OA+4*g+2}, v{OA+4*g+3}")
    k("buffer_store_dwordx2 v[40:41], v5, s[16:19], 0 offen" + SC, "buffer_store_dwordx2 v[42:43], v5, s[16:19], 0 offen offset:16" + SC)
    k("v_cmp_gt_u32 vcc, 32, v1", "s_and_saveexec_b64 s[36:37], vcc")
    k("buffer_store_dwordx2 v[44:45], v5, s[16:19], 0 offen offset:32" + SC)
    k("s_mov_b64 exec, s[36:37]")
    k("s_waitcnt vmcnt(0)", "s_barrier")
    if st0 is not None: stamp(k, st0+3)
    k(f"s_add_u32 s32, s26, {L*320+256}")
    signal(k, 32)

def ph_glu(k, L, st0=None):
    NK = 10; NST = 4; STB = 40960
    lload = k.newlab("loader"); lend = k.newlab("end")
    xcd_map16(k)
    srd(k, 4, f'XA{L}'); srd(k, 8, 'WGU'); srd(k, 16, f'H{L}'); srd(k, 20, f'STA{L}'); srd(k, 68, 'CS')
    k("s_cmp_ge_u32 s29, 4", f"s_cbranch_scc1 {lload}")
    FB = 32; AC = 88; STV = 184; CSV = 188
    k("v_and_b32 v25, 31, v1", "s_lshl_b32 s32, s26, 7", "s_lshl_b32 s33, s29, 5", "s_add_u32 s32, s32, s33", "v_add_u32 v28, s32, v25", "v_lshlrev_b32 v29, 6, v28")
    k("v_lshrrev_b32 v30, 5, v1", "v_lshlrev_b32 v30, 4, v30", "s_mul_i32 s32, s27, 384", "s_add_u32 s32, s32, 8192", "v_add_u32 v30, s32, v30")
    k("s_lshl_b32 s32, s29, 5", "v_add_u32 v26, s32, v25", "v_lshlrev_b32 v26, 7, v26")
    k("v_lshrrev_b32 v25, 1, v25", "v_and_b32 v25, 7, v25", "v_lshrrev_b32 v27, 5, v1", "v_xor_b32 v25, v25, v27")
    for s in range(4):
        k(f"v_xor_b32 v27, {2*s}, v25", f"v_lshl_add_u32 v{10+s}, v27, 4, v26")
    k("v_lshrrev_b32 v25, 5, v1", "v_lshlrev_b32 v25, 3, v25", "v_bfe_u32 v26, v1, 2, 2", "v_add_u32 v25, v25, v26", "v_mul_u32_u24 v25, 192, v25")
    k("v_bfe_u32 v27, v1, 4, 1", "v_lshl_add_u32 v25, v27, 5, v25", "v_and_b32 v27, 3, v1", "v_lshl_add_u32 v25, v27, 3, v25", "v_add_u32 v14, 16384, v25")
    for i in range(AC, AC+96): k(f"v_mov_b32 v{i}, 0")
    def cs_load(t, dst):
        mtx, ft = divmod(t, 3)
        for g in range(4): k(f"buffer_load_dwordx4 v[{dst+4*g}:{dst+4*g+3}], v{30+mtx}, s[68:71], 0 offen offset:{ft*128+g*32}")
    k("v_add_u32 v31, 6144, v30")
    cs_load(0, CSV); cs_load(3, CSV+16); cs_load(1, CSV+32)
    k("s_barrier")
    if st0 is not None: stamp(k, st0)
    for i in range(4): k(f"buffer_load_dwordx4 v[{CSV+48+4*i}:{CSV+51+4*i}], v29, s[20:23], 0 offen offset:{16*i}" + SC)
    def reads(s):
        fb = FB + 28 * (s & 1); Ls = [f"ds_read_b128 v[{fb}:{fb+3}], v{10+s}"]
        for t in range(6):
            mtx, ft = divmod(t, 3)
            for r in range(2):
                Ls.append(f"ds_read_b64_tr_b16 v[{fb+4+4*t+2*r}:{fb+5+4*t+2*r}], v14 offset:{mtx*12288 + (16*s+4*r)*192 + ft*64}")
        return Ls
    def mfmas(s):
        fb = FB + 28 * (s & 1)
        return [f"v_mfma_f32_32x32x16_bf16 v[{AC+16*t}:{AC+16*t+15}], v[{fb+4+4*t}:{fb+7+4*t}], v[{fb}:{fb+3}], v[{AC+16*t}:{AC+16*t+15}]" for t in range(6)]
    k("s_barrier")
    if st0 is not None: stamp(k, st0+1)
    k(*reads(0))
    for kt in range(NK):
        for s in range(4):
            k("s_waitcnt lgkmcnt(0)")
            M = mfmas(s)
            if s < 3:
                interleave(k, M, reads(s+1), [3, 3, 3, 2, 2, 0])
            elif kt + 1 < NK:
                k(M[0], "s_barrier")
                d = STB if (kt + 1) % NST else -(NST-1)*STB
                for r in range(10, 15): k(f"v_add_u32 v{r}, {d & 0xffffffff:#x}, v{r}")
                interleave(k, M[1:], reads(0), [3, 3, 3, 2, 2])
            else:
                k(*M)
        if kt == 3:
            k("s_waitcnt vmcnt(0)")
            merge_stats(k, CSV+48, 16, STV, STV+2)
            k(f"v_mov_b32 v{STV+1}, v{STV}", f"v_mov_b32 v{STV+3}, v{STV+2}")
            cs_load(4, CSV+48)
    if st0 is not None: stamp(k, st0+2)
    cs_load(2, FB)
    k("s_barrier")
    cs_load(5, FB+28)
    k("s_mul_i32 s32, s29, 6656")
    k("v_and_b32 v25, 31, v1", "v_mul_u32_u24 v25, 208, v25", "v_lshrrev_b32 v26, 5, v1", "v_lshl_add_u32 v25, v26, 3, v25", "v_add_u32 v25, s32, v25")
    k("v_lshrrev_b32 v26, 2, v1", "v_mul_u32_u24 v26, 208, v26", "v_and_b32 v27, 3, v1", "v_lshl_add_u32 v26, v27, 4, v26", "v_add_u32 v26, s32, v26")
    k("v_lshrrev_b32 v28, 2, v1", "s_lshl_b32 s32, s26, 7", "s_lshl_b32 s33, s29, 5", "s_add_u32 s32, s32, s33", "v_add_u32 v28, s32, v28", "v_mul_u32_u24 v28, 3072, v28")
    k("v_lshl_add_u32 v28, v27, 4, v28", "s_mul_i32 s32, s27, 192", "v_add_u32 v28, s32, v28")
    k("v_mov_b32 v16, 0xbfb8aa3b", "v_mov_b32 v17, 0xbfb8aa3b", "v_mov_b32 v18, 1.0", "v_mov_b32 v19, 1.0")
    csreg = {0: CSV, 3: CSV+16, 1: CSV+32, 4: CSV+48, 2: FB, 5: FB+28}
    for ft in range(3):
        if ft == 0: k("s_waitcnt vmcnt(8)")
        if ft == 2: k("s_waitcnt vmcnt(0)")
        ag = AC + 16*ft; au = AC + 16*(3+ft); cg = csreg[ft]; cu = csreg[3+ft]
        for r in range(0, 16, 2):
            k(f"v_pk_fma_f32 v[{ag+r}:{ag+r+1}], v[{STV}:{STV+1}], v[{cg+r}:{cg+r+1}], v[{ag+r}:{ag+r+1}] neg_lo:[1,0,0] neg_hi:[1,0,0]")
            k(f"v_pk_fma_f32 v[{au+r}:{au+r+1}], v[{STV}:{STV+1}], v[{cu+r}:{cu+r+1}], v[{au+r}:{au+r+1}] neg_lo:[1,0,0] neg_hi:[1,0,0]")
            k(f"v_pk_mul_f32 v[{ag+r}:{ag+r+1}], v[{ag+r}:{ag+r+1}], v[{STV+2}:{STV+3}]")
            k(f"v_pk_mul_f32 v[{au+r}:{au+r+1}], v[{au+r}:{au+r+1}], v[{STV+2}:{STV+3}]")
            k(f"v_cvt_pk_bf16_f32 v20, v{ag+r}, v{ag+r+1}", f"v_cvt_pk_bf16_f32 v21, v{au+r}, v{au+r+1}")
            k(f"v_lshlrev_b32 v{ag+r}, 16, v20", f"v_and_b32 v{ag+r+1}, 0xffff0000, v20", f"v_lshlrev_b32 v{au+r}, 16, v21", f"v_and_b32 v{au+r+1}, 0xffff0000, v21")
            k(f"v_pk_mul_f32 v[{ag+r}:{ag+r+1}], v[{ag+r}:{ag+r+1}], v[16:17]")
            k(f"v_exp_f32 v{ag+r}, v{ag+r}", f"v_exp_f32 v{ag+r+1}, v{ag+r+1}", "s_nop 0")
            k(f"v_pk_add_f32 v[{ag+r}:{ag+r+1}], v[{ag+r}:{ag+r+1}], v[18:19]")
            k(f"v_rcp_f32 v{ag+r}, v{ag+r}", f"v_rcp_f32 v{ag+r+1}, v{ag+r+1}", "s_nop 0")
            k(f"v_cvt_pk_bf16_f32 v20, v{ag+r}, v{ag+r+1}")
            k(f"v_lshlrev_b32 v{ag+r}, 16, v20", f"v_and_b32 v{ag+r+1}, 0xffff0000, v20")
            k(f"v_pk_mul_f32 v[{ag+r}:{ag+r+1}], v[{ag+r}:{ag+r+1}], v[{au+r}:{au+r+1}]")
        for g in range(4):
            d = 2 + 2*(g & 3)
            k(f"v_cvt_pk_bf16_f32 v{d}, v{ag+4*g}, v{ag+4*g+1}", f"v_cvt_pk_bf16_f32 v{d+1}, v{ag+4*g+2}, v{ag+4*g+3}")
            k(f"ds_write_b64 v25, v[{d}:{d+1}] offset:{ft*64 + g*16}")
    k("s_waitcnt lgkmcnt(0)")
    n = 0
    for hh in range(2):
        for seg in range(3):
            k(f"ds_read_b128 v[{AC+4*n}:{AC+4*n+3}], v26 offset:{hh*16*208 + seg*64}"); n += 1
    n = 0
    for hh in range(2):
        for seg in range(3):
            k(f"s_waitcnt lgkmcnt({5-n})", f"s_mov_b32 s32, {hh*16*3072}", f"buffer_store_dwordx4 v[{AC+4*n}:{AC+4*n+3}], v28, s[16:19], s32 offen offset:{seg*64}" + SC); n += 1
    k("s_waitcnt vmcnt(0)", "s_barrier")
    if st0 is not None: stamp(k, st0+3)
    k(f"s_add_u32 s32, s26, {L*320+280}")
    signal(k, 32)
    k(f"s_branch {lend}")
    k.lab(lload)
    act_dma_voffs(k)
    k("s_mul_i32 s32, s27, 245760", "s_mul_i32 s31, s28, 6144", "s_add_u32 s32, s32, s31", "v_lshlrev_b32 v6, 4, v1", "v_add_u32 v6, s32, v6", "v_add_u32 v7, 4096, v6")
    k("s_lshl_b32 s34, s28, 12")
    def wl(kt):
        st = kt % NST
        Ls = [f"s_add_u32 m0, s31, {st*STB + 16384}", f"s_mov_b32 s30, {kt*24576}"]
        Ls += [f"buffer_load_dwordx4 v6, s[8:11], s30 offen offset:{j*1024} lds" for j in range(4)]
        Ls += [f"s_add_u32 m0, s31, {st*STB + 16384 + 4096}", "s_nop 0"]
        Ls += [f"buffer_load_dwordx4 v7, s[8:11], s30 offen offset:{j*1024} lds" for j in range(2)]
        return Ls
    def al(kt):
        st = kt % NST
        return [f"s_add_u32 m0, s34, {st*STB}", f"s_mov_b32 s35, {kt*128}"] + [f"buffer_load_dwordx4 v{2+j}, s[4:7], s35 offen offset:{j*1024} sc1 lds" for j in range(4)]
    loader_phase(k, NK, NST, wl, al, lambda: poll(k, cnt_single(26, L*320+264), 16), 1)
    k.lab(lend)

def ph_out(k, L, kind, st0=None):
    if kind == 'w':
        asrc, KK, wsrc, rsrc, dst, stdst = f'O{L}', 640, 'WO', ('x' if L == 0 else 'XB'), f'XA{L}', f'STA{L}'
    else:
        asrc, KK, wsrc, rsrc, dst, stdst = f'H{L}', 1536, 'WD', f'XA{L}', ('XB' if L == 0 else 'out'), ('STB' if L == 0 else None)
    NK = KK // 128; NST = 4; STB = 36864; AP = KK * 2
    lload = k.newlab("loader"); lend = k.newlab("end")
    k("s_and_b32 s24, s2, 7", "s_lshr_b32 s25, s2, 3", "s_lshl_b32 s26, s24, 2", "s_and_b32 s27, s25, 3", "s_add_u32 s26, s26, s27", "s_lshr_b32 s27, s25, 2")
    srd(k, 4, asrc); srd(k, 8, wsrc); srd(k, 12, rsrc); srd(k, 16, dst)
    if stdst: srd(k, 20, stdst)
    k("s_cmp_ge_u32 s29, 4", f"s_cbranch_scc1 {lload}")
    FB = 32; AC = 104; RS = 184
    k("v_and_b32 v25, 15, v1", "v_lshrrev_b32 v26, 4, v1", "s_lshl_b32 s32, s29, 2", "v_add_u32 v26, s32, v26", "v_xor_b32 v26, v26, v25", "v_lshlrev_b32 v26, 4, v26", "v_lshl_add_u32 v10, v25, 8, v26")
    k("v_lshrrev_b32 v26, 4, v1", "v_lshlrev_b32 v26, 3, v26", "v_bfe_u32 v27, v1, 2, 2", "v_add_u32 v26, v26, v27", "s_lshl_b32 s32, s29, 5", "v_add_u32 v26, s32, v26", "v_mul_u32_u24 v26, 160, v26")
    k("v_and_b32 v27, 3, v1", "v_lshl_add_u32 v26, v27, 3, v26", "v_add_u32 v11, 16384, v26")
    k("s_lshl_b32 s32, s26, 6", "s_lshl_b32 s33, s29, 4", "s_add_u32 s32, s32, s33", "v_add_u32 v28, s32, v25", "v_mul_u32_u24 v29, 1280, v28")
    k("v_lshrrev_b32 v26, 4, v1", "v_lshl_add_u32 v29, v26, 3, v29", "s_mul_i32 s32, s27, 160", "v_add_u32 v29, s32, v29")
    for i in range(AC, AC+80): k(f"v_mov_b32 v{i}, 0")
    k("s_barrier")
    if st0 is not None: stamp(k, st0)
    for ft in range(5): k(f"buffer_load_dwordx2 v[{RS+2*ft}:{RS+2*ft+1}], v29, s[12:15], 0 offen offset:{ft*32}" + SC)
    def reads(p):
        fb = FB + 36 * p; Ls = []
        for tt in range(4): Ls.append(f"ds_read_b128 v[{fb+4*tt}:{fb+4*tt+3}], v10 offset:{tt*4096}")
        for ft in range(5):
            for r in range(2): Ls.append(f"ds_read_b64_tr_b16 v[{fb+16+4*ft+2*r}:{fb+17+4*ft+2*r}], v11 offset:{4*r*160 + ft*32}")
        return Ls
    def mfmas(p):
        fb = FB + 36 * p; Ls = []
        for ft in range(5):
            for tt in range(4):
                a = AC + (ft*4+tt)*4
                Ls.append(f"v_mfma_f32_16x16x32_bf16 v[{a}:{a+3}], v[{fb+16+4*ft}:{fb+19+4*ft}], v[{fb+4*tt}:{fb+4*tt+3}], v[{a}:{a+3}]")
        return Ls
    k("s_barrier")
    if st0 is not None: stamp(k, st0+1)
    k(*reads(0))
    for kt in range(NK):
        k("s_waitcnt lgkmcnt(0)")
        M = mfmas(kt & 1)
        if kt + 1 < NK:
            k(M[0], "s_barrier")
            d = STB if (kt + 1) % NST else -(NST-1)*STB
            for r in (10, 11): k(f"v_add_u32 v{r}, {d & 0xffffffff:#x}, v{r}")
            interleave(k, M[1:], reads((kt+1) & 1), [1]*14 + [0]*5)
        else:
            k(*M)
    if st0 is not None: stamp(k, st0+2)
    k("s_barrier")
    k("v_lshlrev_b32 v25, 4, v1", "s_mul_i32 s32, s29, 20480", "v_add_u32 v26, s32, v25")
    k("s_mul_i32 s32, s29, 5120", "v_add_u32 v27, s32, v25", "v_add_u32 v24, 40960, v27")
    k("s_nop 7")
    for tt in range(4):
        lw = k.newlab("rw")
        k(f"s_cmp_eq_u32 s29, {tt}", f"s_cbranch_scc1 {lw}")
        for ft in range(5):
            a = AC + (ft*4+tt)*4
            k(f"ds_write_b128 v26, v[{a}:{a+3}] offset:{(tt*5+ft)*1024}")
        k.lab(lw)
    k("s_waitcnt lgkmcnt(0)", "s_barrier")
    le = k.newlab("e"); labs = [k.newlab("own") for _ in range(4)]
    for tt in range(4): k(f"s_cmp_eq_u32 s29, {tt}", f"s_cbranch_scc1 {labs[tt]}")
    for tt in range(4):
        k.lab(labs[tt])
        for ft in range(5):
            for r in range(4): k(f"v_mov_b32 v{FB+4*ft+r}, v{AC+(ft*4+tt)*4+r}")
        n = 0
        for src in range(4):
            if src == tt: continue
            for ft in range(5):
                k(f"ds_read_b128 v[{AC+4*n}:{AC+4*n+3}], v{27 if src < 2 else 24} offset:{(src&1)*20480 + ft*1024}"); n += 1
        k(f"s_branch {le}")
    k.lab(le)
    k("s_waitcnt lgkmcnt(0) vmcnt(0)")
    for sidx in range(3):
        for ft in range(5):
            for r in range(0, 4, 2):
                k(f"v_pk_add_f32 v[{FB+4*ft+r}:{FB+4*ft+r+1}], v[{FB+4*ft+r}:{FB+4*ft+r+1}], v[{AC+4*(sidx*5+ft)+r}:{AC+4*(sidx*5+ft)+r+1}]")
    for ft in range(5):
        for p in range(2):
            a = FB + 4*ft + 2*p; x = RS + 2*ft + p
            k(f"v_cvt_pk_bf16_f32 v20, v{a}, v{a+1}", f"v_lshlrev_b32 v{a}, 16, v20", f"v_and_b32 v{a+1}, 0xffff0000, v20")
            k(f"v_lshlrev_b32 v21, 16, v{x}", f"v_and_b32 v22, 0xffff0000, v{x}", f"v_add_f32 v{a}, v{a}, v21", f"v_add_f32 v{a+1}, v{a+1}, v22")
            k(f"v_cvt_pk_bf16_f32 v{x}, v{a}, v{a+1}")
            if stdst: k(f"v_lshlrev_b32 v{a}, 16, v{x}", f"v_and_b32 v{a+1}, 0xffff0000, v{x}")
        k(f"buffer_store_dwordx2 v[{RS+2*ft}:{RS+2*ft+1}], v29, s[16:19], 0 offen offset:{ft*32}" + (SC if stdst else ""))
    if stdst:
        def xsum(v, t):
            k(f"v_mov_b32 v{t}, v{v}", "s_nop 1", f"v_permlane16_swap_b32 v{v}, v{t}", f"v_add_f32 v{v}, v{v}, v{t}")
            k(f"v_mov_b32 v{t}, v{v}", "s_nop 1", f"v_permlane32_swap_b32 v{v}, v{t}", f"v_add_f32 v{v}, v{v}, v{t}")
        k(f"v_add_f32 v20, v{FB}, v{FB+1}")
        for i in range(2, 20): k(f"v_add_f32 v20, v20, v{FB+i}")
        xsum(20, 22)
        k("v_mul_f32 v23, 0x3c4ccccd, v20", "v_mov_b32 v21, 0")
        for i in range(20): k(f"v_sub_f32 v22, v{FB+i}, v23", "v_fmac_f32 v21, v22, v22")
        xsum(21, 22)
        k("v_lshlrev_b32 v28, 6, v28", "s_lshl_b32 s32, s27, 3", "v_add_u32 v28, s32, v28")
        k("v_cmp_gt_u32 vcc, 16, v1", "s_and_saveexec_b64 s[36:37], vcc")
        k("buffer_store_dwordx2 v[20:21], v28, s[20:23], 0 offen" + SC)
        k("s_mov_b64 exec, s[36:37]")
    k("s_waitcnt vmcnt(0)", "s_barrier")
    if st0 is not None: stamp(k, st0+3)
    if stdst:
        k("s_lshr_b32 s32, s26, 1", f"s_add_u32 s32, s32, {L*320 + (264 if kind == 'w' else 296)}")
        signal(k, 32)
    k(f"s_branch {lend}")
    k.lab(lload)
    k("s_lshl_b32 s32, s26, 6", "s_lshl_b32 s33, s28, 4", "s_add_u32 s32, s32, s33", "v_lshrrev_b32 v25, 4, v1", "v_and_b32 v26, 15, v1", f"s_mov_b32 s33, {AP}")
    for jj in range(4):
        k(f"v_add_u32 v27, {4*jj}, v25", "v_xor_b32 v28, v26, v27", "v_add_u32 v27, s32, v27", "v_mul_lo_u32 v27, v27, s33", "v_lshl_add_u32 v27, v28, 4, v27", f"v_subrev_u32 v{2+jj}, {jj*1024}, v27")
    k(f"s_mul_i32 s32, s27, {KK*160}", "s_mul_i32 s31, s28, 5120", "s_add_u32 s32, s32, s31", "v_lshlrev_b32 v6, 4, v1", "v_add_u32 v6, s32, v6", "v_add_u32 v7, 4096, v6")
    k("s_lshl_b32 s34, s28, 12")
    def wl(kt):
        st = kt % NST
        Ls = [f"s_add_u32 m0, s31, {st*STB + 16384}", f"s_mov_b32 s30, {kt*20480}"]
        Ls += [f"buffer_load_dwordx4 v6, s[8:11], s30 offen offset:{j*1024} lds" for j in range(4)]
        Ls += [f"s_add_u32 m0, s31, {st*STB + 16384 + 4096}", "s_nop 0", "buffer_load_dwordx4 v7, s[8:11], s30 offen lds"]
        return Ls
    def al(kt):
        st = kt % NST
        return [f"s_add_u32 m0, s34, {st*STB}", f"s_mov_b32 s35, {kt*256}"] + [f"buffer_load_dwordx4 v{2+j}, s[4:7], s35 offen offset:{j*1024} sc1 lds" for j in range(4)]
    if kind == 'w':
        def ad(k): k("s_lshr_b32 s38, s26, 2", f"s_add_u32 s38, s38, {L*320+256}", "s_lshl_b32 s38, s38, 7", "v_mov_b32 v24, s38")
        dep = lambda: poll(k, ad, 32)
    else:
        def ad(k): k("s_lshr_b32 s38, s26, 1", f"s_add_u32 s38, s38, {L*320+280}", "s_lshl_b32 s38, s38, 7", "v_mov_b32 v24, s38")
        dep = lambda: poll(k, ad, 16)
    loader_phase(k, NK, NST, wl, al, dep, 2)
    k.lab(lend)

def stamps_out2(k, n, wg):
    assert n <= 14
    lab = k.newlab("nost")
    k("s_waitcnt lgkmcnt(0)")
    k(f"s_cmp_lg_u32 s2, {wg}", f"s_cbranch_scc1 {lab}")
    k("s_cmp_lg_u32 s29, 0", f"s_cbranch_scc1 {lab}")
    k("s_load_dwordx2 s[72:73], s[0:1], 64", "s_waitcnt lgkmcnt(0)")
    k("s_and_b32 s73, s73, 0xffff", "s_mov_b32 s74, 256", "s_mov_b32 s75, 0x00020000")
    k("v_mov_b32 v1, 0")
    for i in range(n):
        k(f"s_sub_u32 s{41+2*i}, s{40+2*i}, s40")
        k(f"v_mov_b32 v2, s{41+2*i}")
        k(f"buffer_store_dword v2, v1, s[72:75], 0 offen offset:{4*i}")
    k.lab(lab)

def gen_mega(name, nph=10, stamps=None):
    k = K(name, 256, 512, 163840, sgpr=100)
    done = k.newlab("done")
    k("s_load_dwordx2 s[84:85], s[0:1], 72", "s_load_dwordx2 s[86:87], s[0:1], 0", "s_load_dwordx2 s[88:89], s[0:1], 56")
    k("s_cmp_ge_u32 s2, 256", f"s_cbranch_scc1 {done}")
    k("v_and_b32 v1, 63, v0", "v_lshrrev_b32 v25, 6, v0", "s_nop 0", "v_readfirstlane_b32 s29, v25", "s_nop 3", "s_and_b32 s28, s29, 3")
    k("s_waitcnt lgkmcnt(0)")
    srd(k, 92, "CNT")
    if stamps is not None: stamp(k, 0)
    ph = 0
    for L in range(2):
        for kind in 'qawgd':
            if ph >= nph: break
            st0 = (1 + 4*stamps.index(ph)) if (stamps is not None and ph in stamps) else None
            if kind == 'q': ph_qkv(k, L, 'x' if L == 0 else 'XB', 'STX' if L == 0 else 'STB', st0)
            elif kind == 'a': ph_attn(k, L, st0)
            elif kind == 'g': ph_glu(k, L, st0)
            else: ph_out(k, L, kind, st0)
            ph += 1
    if stamps is not None: stamps_out2(k, 1 + 4*len(stamps), 17)
    k.lab(done)
    k("s_endpgm")
    return k

def gen_prep2(name):
    k = gen.gen_prep(name)
    i = k.L.index("    buffer_store_dwordx2 v[4:5], v1, s[20:23], 0 offen")
    extra = ["s_load_dwordx2 s[64:65], s[0:1], 72", "s_waitcnt lgkmcnt(0)", f"s_add_u32 s64, s64, {WS['CNT']:#x}", "s_addc_u32 s65, s65, 0", "s_and_b32 s65, s65, 0xffff",
             f"s_mov_b32 s66, {SZ['CNT']}", "s_mov_b32 s67, 0x00020000", "v_lshlrev_b32 v1, 1, v1", "v_mov_b32 v4, 0", "v_mov_b32 v5, 0", "v_mov_b32 v6, 0", "v_mov_b32 v7, 0", "s_nop 1",
             "buffer_store_dwordx4 v[4:7], v1, s[64:67], 0 offen"]
    k.L[i+1:i+1] = ["    " + e for e in extra]
    return k

if __name__ == "__main__":
    prep = gen_prep2("prep_kernel")
    if len(sys.argv) > 1:
        st = [int(x) for x in sys.argv[1].split(",")]
        m = gen_mega("mega_kernel", 10, st)
        build([prep, m], [prep, m], "mb.s")
    else:
        m = gen_mega("mega_kernel")
        build([prep, m], [prep, m], "interleave_layers__sliding_block__glu_gated_glu__prompt.s")
```

```python
import json, sys

WS = dict(QKV=0x0, O=0x800000, XA=0xB00000, XB=0xE00000, H=0x1100000, STX=0x1800000, STA=0x1840000, STB=0x1880000, CS=0x18C0000,
          WQ=0x1A00000, WGU=0x1D00000, WO=0x2100000, WD=0x2200000)
SZ = dict(QKV=2048*1920*2, O=2048*640*2, XA=2048*640*2, XB=2048*640*2, H=2048*1536*2, STX=2048*64, STA=2048*64, STB=2048*64, CS=5120*4,
          WQ=16*640*256, WGU=16*640*384, WO=8*640*160, WD=8*1536*160)
KA = dict(x=0, wqkv=8, wo=16, bx=24, wg=32, wu=40, wd=48, out=56, dbg=64, ws=72)
INSZ = dict(x=2048*640*2, wqkv=640*1920*2, wo=640*640*2, wg=640*1536*2, wu=640*1536*2, wd=1536*640*2, out=2048*640*2)

class K:
    def __init__(s, name, grid, block, lds, vgpr=256, sgpr=96):
        s.name = name; s.L = []; s.grid = grid; s.block = block; s.lds = lds; s.vgpr = vgpr; s.sgpr = sgpr
        s.lc = 0
    def __call__(s, *ts):
        for t in ts: s.L.append("    " + t)
    def lab(s, l): s.L.append(l + ":")
    def newlab(s, p="L"):
        s.lc += 1; return f"{p}_{s.name}_{s.lc}"
    def text(s):
        out = [f".globl {s.name}", ".p2align 8", f".type {s.name},@function", f"{s.name}:"]
        out += s.L
        return "\n".join(out)
    def desc(s):
        acc = (s.vgpr + 3) // 4 * 4
        return "\n".join([".p2align 6", f".amdhsa_kernel {s.name}", f"  .amdhsa_next_free_vgpr {s.vgpr}",
            f"  .amdhsa_next_free_sgpr {s.sgpr}", f"  .amdhsa_accum_offset {acc}", "  .amdhsa_group_segment_fixed_size 0",
            "  .amdhsa_kernarg_size 80", "  .amdhsa_user_sgpr_count 2", "  .amdhsa_user_sgpr_kernarg_segment_ptr 1",
            "  .amdhsa_system_sgpr_workgroup_id_x 1", ".end_amdhsa_kernel"])

PT = 72
def ptr_loads(k, specs):
    for i, (sreg, name) in enumerate(specs):
        off = KA['ws'] if name in WS else KA[name]
        k(f"s_load_dwordx2 s[{PT+2*i}:{PT+2*i+1}], s[0:1], {off}")
def ptr_srds(k, specs):
    k("s_waitcnt lgkmcnt(0)")
    for i, (sreg, name) in enumerate(specs):
        t = PT + 2*i
        if name in WS:
            k(f"s_add_u32 s{sreg}, s{t}, {WS[name]:#x}", f"s_addc_u32 s{sreg+1}, s{t+1}, 0", f"s_mov_b32 s{sreg+2}, {SZ[name]}")
        else:
            k(f"s_mov_b32 s{sreg}, s{t}", f"s_mov_b32 s{sreg+1}, s{t+1}", f"s_mov_b32 s{sreg+2}, {INSZ[name]}")
        k(f"s_and_b32 s{sreg+1}, s{sreg+1}, 0xffff", f"s_mov_b32 s{sreg+3}, 0x00020000")
def load_ptrs(k, specs):
    ptr_loads(k, specs); ptr_srds(k, specs)

def stamp(k, i):
    k(f"s_memtime s[{40+2*i}:{41+2*i}]")
def rstamp(k, i):
    k(f"s_memrealtime s[{40+2*i}:{41+2*i}]")
def stamps_out(k, n, wg=0):
    lab = k.newlab("nost")
    k("s_waitcnt lgkmcnt(0)")
    k(f"s_cmp_lg_u32 s2, {wg}", f"s_cbranch_scc1 {lab}")
    k("s_cmp_lg_u32 s29, 0", f"s_cbranch_scc1 {lab}")
    k("s_load_dwordx2 s[64:65], s[0:1], 64", "s_waitcnt lgkmcnt(0)")
    k("s_and_b32 s65, s65, 0xffff", "s_mov_b32 s66, 256", "s_mov_b32 s67, 0x00020000")
    k("v_mov_b32 v1, 0")
    for i in range(n):
        k(f"s_sub_u32 s{41+2*i}, s{40+2*i}, s40")
        k(f"v_mov_b32 v2, s{41+2*i}")
        k(f"buffer_store_dword v2, v1, s[64:67], 0 offen offset:{4*i}")
    k.lab(lab)

def rne_bf16(k, dst, src):
    k(f"v_cvt_pk_bf16_f32 v{dst}, v{src}, v{src}")
    k(f"v_lshlrev_b32 v{dst}, 16, v{dst}")

def finish_stats(k, vmean, vvar, vm_out, vrs_out):
    rne_bf16(k, vm_out, vmean)
    rne_bf16(k, vrs_out, vvar)
    k(f"v_add_f32 v{vrs_out}, 0x3727c5ac, v{vrs_out}")
    rne_bf16(k, vrs_out, vrs_out)
    k(f"v_sqrt_f32 v{vrs_out}, v{vrs_out}", "s_nop 0")
    rne_bf16(k, vrs_out, vrs_out)
    k(f"v_rcp_f32 v{vrs_out}, v{vrs_out}", "s_nop 0")

def merge_stats(k, base, t0, vm_out, vrs_out):
    a, b, c, d = t0, t0+1, t0+2, t0+3
    k(f"v_add_f32 v{a}, v{base}, v{base+2}")
    for i in range(2, 8): k(f"v_add_f32 v{a}, v{a}, v{base+2*i}")
    k(f"v_mul_f32 v{a}, 0x3acccccd, v{a}")
    k(f"v_add_f32 v{b}, v{base+1}, v{base+3}")
    for i in range(2, 8): k(f"v_add_f32 v{b}, v{b}, v{base+1+2*i}")
    k(f"v_mov_b32 v{c}, 0")
    for i in range(8):
        k(f"v_mul_f32 v{d}, 0x3c4ccccd, v{base+2*i}", f"v_sub_f32 v{d}, v{d}, v{a}", f"v_fmac_f32 v{c}, v{d}, v{d}")
    k(f"v_mov_b32 v{d}, 0x42a00000", f"v_fmac_f32 v{b}, v{c}, v{d}", f"v_mul_f32 v{b}, 0x3acccccd, v{b}")
    finish_stats(k, a, b, vm_out, vrs_out)

def interleave(k, mf, fill, per):
    fi = 0
    for i, m in enumerate(mf):
        k(m)
        for _ in range(per[i]):
            if fi < len(fill): k(fill[fi]); fi += 1
    while fi < len(fill): k(fill[fi]); fi += 1

def xcd_map16(k, nnt):
    k("s_and_b32 s24, s2, 7", "s_lshr_b32 s25, s2, 3")
    k("s_lshr_b32 s26, s24, 1", "s_lshl_b32 s26, s26, 2", "s_and_b32 s27, s25, 3", "s_add_u32 s26, s26, s27")
    k("s_and_b32 s27, s24, 1", "s_lshl_b32 s27, s27, 3", "s_lshr_b32 s28, s25, 2", "s_add_u32 s27, s27, s28")

def gen_prep(name):
    NWG = 64 + 78 + 160 + 160 + 48 + 96
    k = K(name, NWG, 256, 4096, vgpr=128)
    done = k.newlab("done"); lcs = k.newlab("cs"); lwq = k.newlab("wq"); lgu = k.newlab("gu"); lod = k.newlab("od")
    specs = [(4, 'x'), (8, 'wqkv'), (12, 'wg'), (16, 'wu'), (20, 'STX'), (24, 'CS'), (28, 'wo'), (32, 'wd'), (48, 'WQ'), (52, 'WGU'), (56, 'WO'), (60, 'WD')]
    global PT
    PT = 68
    ptr_loads(k, specs)
    k(f"s_cmp_ge_u32 s2, {NWG}", f"s_cbranch_scc1 {done}")
    ptr_srds(k, specs)
    PT = 72
    k("s_cmp_ge_u32 s2, 462", f"s_cbranch_scc1 {lod}")
    k("s_cmp_ge_u32 s2, 302", f"s_cbranch_scc1 {lgu}")
    k("s_cmp_ge_u32 s2, 142", f"s_cbranch_scc1 {lwq}")
    k("s_cmp_ge_u32 s2, 64", f"s_cbranch_scc1 {lcs}")
    k("s_lshl_b32 s36, s2, 8", "v_add_u32 v1, s36, v0", "v_mul_u32_u24 v2, 160, v1")
    for i in range(10): k(f"buffer_load_dwordx4 v[{16+4*i}:{19+4*i}], v2, s[4:7], 0 offen offset:{16*i}")
    k("s_waitcnt vmcnt(0)")
    k("v_mov_b32 v4, 0", "v_mov_b32 v5, 0")
    for i in range(40):
        k(f"v_lshlrev_b32 v6, 16, v{16+i}", f"v_and_b32 v7, 0xffff0000, v{16+i}", "v_add_f32 v4, v4, v6", "v_add_f32 v5, v5, v7")
    k("v_add_f32 v4, v4, v5", "v_mul_f32 v8, 0x3c4ccccd, v4", "v_mov_b32 v5, 0", "v_mov_b32 v9, 0")
    for i in range(40):
        k(f"v_lshlrev_b32 v6, 16, v{16+i}", f"v_and_b32 v7, 0xffff0000, v{16+i}", "v_sub_f32 v6, v6, v8", "v_sub_f32 v7, v7, v8",
          "v_fmac_f32 v5, v6, v6", "v_fmac_f32 v9, v7, v7")
    k("v_add_f32 v5, v5, v9", "v_lshlrev_b32 v1, 3, v1")
    k("buffer_store_dwordx2 v[4:5], v1, s[20:23], 0 offen")
    k(f"s_branch {done}")
    k.lab(lcs)
    k("s_sub_u32 s36, s2, 64")
    k("s_mov_b32 s37, 3840", "s_mov_b32 s38, 0", "s_mov_b64 s[40:41], s[8:9]", "s_mov_b32 s42, s10", "s_mov_b32 s39, s36")
    l1 = k.newlab("m")
    k("s_cmp_lt_u32 s36, 30", f"s_cbranch_scc1 {l1}")
    k("s_mov_b32 s37, 3072", "s_mov_b32 s38, 2048", "s_mov_b64 s[40:41], s[12:13]", "s_mov_b32 s42, s14", "s_sub_u32 s39, s36, 30")
    k("s_cmp_lt_u32 s36, 54", f"s_cbranch_scc1 {l1}")
    k("s_mov_b32 s38, 3584", "s_mov_b64 s[40:41], s[16:17]", "s_sub_u32 s39, s36, 54")
    k.lab(l1)
    k("s_mov_b32 s43, 0x00020000")
    k("v_lshrrev_b32 v1, 4, v0", "v_mul_u32_u24 v1, 40, v1", "v_mul_lo_u32 v1, v1, s37", "v_and_b32 v2, 15, v0", "v_lshl_add_u32 v1, v2, 3, v1")
    k("s_lshl_b32 s44, s39, 7", "v_add_u32 v1, s44, v1", "s_mov_b32 s45, 0")
    for r in range(40):
        k(f"buffer_load_dwordx2 v[{16+2*r}:{17+2*r}], v1, s[40:43], s45 offen", "s_add_u32 s45, s45, s37")
    for a in range(4): k(f"v_mov_b32 v{4+a}, 0")
    k("s_waitcnt vmcnt(0)")
    for r in range(40):
        k(f"v_lshlrev_b32 v8, 16, v{16+2*r}", f"v_and_b32 v9, 0xffff0000, v{16+2*r}", f"v_lshlrev_b32 v10, 16, v{17+2*r}", f"v_and_b32 v11, 0xffff0000, v{17+2*r}",
          "v_add_f32 v4, v4, v8", "v_add_f32 v5, v5, v9", "v_add_f32 v6, v6, v10", "v_add_f32 v7, v7, v11")
    k("v_lshlrev_b32 v2, 4, v0", "ds_write_b128 v2, v[4:7]", "s_waitcnt lgkmcnt(0)", "s_barrier")
    k("v_and_b32 v3, 63, v0", "v_lshlrev_b32 v2, 2, v3")
    for g in range(16): k(f"ds_read_b32 v{16+g}, v2 offset:{g*256}")
    k("s_waitcnt lgkmcnt(0)")
    for g in range(1, 16): k(f"v_add_f32 v16, v16, v{16+g}")
    k("s_lshl_b32 s44, s39, 6", "v_add_u32 v3, s44, v3", "v_add_u32 v2, s38, v3")
    l2 = k.newlab("nq")
    k("s_cmp_lg_u32 s38, 0", f"s_cbranch_scc1 {l2}")
    k("s_mov_b32 s44, 52429", "v_mul_lo_u32 v4, v3, s44", "v_lshrrev_b32 v4, 20, v4")
    k("v_mul_u32_u24 v5, 20, v4", "v_sub_u32 v5, v3, v5")
    k("v_lshrrev_b32 v6, 5, v4", "v_and_b32 v4, 31, v4")
    k("v_mul_u32_u24 v6, 20, v6", "v_add_u32 v5, v5, v6", "v_lshl_add_u32 v2, v4, 6, v5")
    k.lab(l2)
    k("v_lshlrev_b32 v2, 2, v2")
    k("v_cmp_gt_u32 vcc, 64, v0", "s_and_saveexec_b64 s[46:47], vcc", f"s_cbranch_execz {done}")
    k("buffer_store_dword v16, v2, s[24:27], 0 offen")
    k(f"s_branch {done}")
    k.lab(lwq)
    k("s_sub_u32 s36, s2, 142", "s_mul_hi_u32 s37, s36, 0x1999999a", "s_mul_i32 s38, s37, 10", "s_sub_u32 s38, s36, s38")
    k("v_lshrrev_b32 v1, 5, v0", "v_and_b32 v2, 31, v0", "v_lshrrev_b32 v3, 1, v2", "v_and_b32 v4, 3, v1", "v_lshlrev_b32 v4, 2, v4", "v_xor_b32 v3, v3, v4")
    k("v_and_b32 v4, 1, v2", "v_lshl_add_u32 v3, v3, 1, v4")
    k("v_lshrrev_b32 v4, 4, v3", "v_and_b32 v3, 15, v3")
    k("v_mul_u32_u24 v5, 52, v3", "v_lshrrev_b32 v5, 8, v5")
    k("v_mul_u32_u24 v6, 5, v5", "v_sub_u32 v6, v3, v6")
    k("s_lshl_b32 s39, s37, 1", "v_add_u32 v4, s39, v4", "v_mul_u32_u24 v4, 40, v4", "v_mul_u32_u24 v5, 1280, v5", "v_add_u32 v4, v4, v5", "v_lshl_add_u32 v4, v6, 3, v4")
    k("s_lshl_b32 s39, s38, 6", "v_add_u32 v1, s39, v1", "v_mul_u32_u24 v1, 3840, v1", "v_add_u32 v1, v1, v4")
    k("v_cmp_eq_u32 vcc, 15, v3", "v_mov_b32 v5, 0x7ffffff0", "s_nop 0", "v_cndmask_b32 v1, v1, v5, vcc")
    for i in range(8): k(f"s_mov_b32 s39, {i*8*3840}", f"buffer_load_dwordx2 v[{16+2*i}:{17+2*i}], v1, s[8:11], s39 offen")
    k("s_lshl_b32 s39, s36, 14", "v_lshlrev_b32 v2, 3, v0")
    for i in range(8): k(f"s_waitcnt vmcnt({7-i})", f"buffer_store_dwordx2 v[{16+2*i}:{17+2*i}], v2, s[48:51], s39 offen offset:{i*2048}" if i < 2 else None) if False else None
    for i in range(8):
        k(f"s_waitcnt vmcnt({7-i})", f"s_add_u32 s40, s39, {i*2048}", f"buffer_store_dwordx2 v[{16+2*i}:{17+2*i}], v2, s[48:51], s40 offen")
    k(f"s_branch {done}")
    k.lab(lgu)
    k("s_sub_u32 s36, s2, 302", "s_mul_hi_u32 s37, s36, 0x1999999a", "s_mul_i32 s38, s37, 10", "s_sub_u32 s38, s36, s38")
    k("s_mov_b32 s40, 43691", "s_mul_i32 s41, s37, 192", "s_mul_i32 s42, s38, 196608", "s_add_u32 s41, s41, s42")
    for j in range(3):
        k(f"v_add_u32 v1, {256*j}, v0", "v_mul_lo_u32 v2, v1, s40", "v_lshrrev_b32 v2, 19, v2", "v_mul_u32_u24 v3, 12, v2", "v_sub_u32 v3, v1, v3",
          "v_mul_u32_u24 v2, 3072, v2", "v_lshl_add_u32 v2, v3, 4, v2")
        k(f"buffer_load_dwordx4 v[{16+4*j}:{19+4*j}], v2, s[12:15], s41 offen", f"buffer_load_dwordx4 v[{32+4*j}:{35+4*j}], v2, s[16:19], s41 offen")
    k("s_mul_i32 s39, s36, 24576", "v_lshlrev_b32 v2, 4, v0", "s_waitcnt vmcnt(0)")
    for j in range(3):
        k(f"s_add_u32 s40, s39, {j*4096}", f"buffer_store_dwordx4 v[{16+4*j}:{19+4*j}], v2, s[52:55], s40 offen")
        k(f"s_add_u32 s40, s39, {12288+j*4096}", f"buffer_store_dwordx4 v[{32+4*j}:{35+4*j}], v2, s[52:55], s40 offen")
    k(f"s_branch {done}")
    k.lab(lod)
    k("s_sub_u32 s36, s2, 462")
    k("s_mul_hi_u32 s37, s36, 0x2aaaaaab", "s_mul_i32 s38, s37, 6", "s_sub_u32 s38, s36, s38")
    k("s_mov_b64 s[40:41], s[28:29]", "s_mov_b32 s42, s30", "s_mov_b64 s[44:45], s[56:57]", "s_mov_b32 s46, s58", "s_mov_b32 s39, s36", "s_mov_b32 s67, 1")
    l3 = k.newlab("isd")
    k("s_cmp_lt_u32 s36, 48", f"s_cbranch_scc1 {l3}")
    k("s_sub_u32 s39, s36, 48", "s_mul_hi_u32 s37, s39, 0x15555556", "s_mul_i32 s38, s37, 12", "s_sub_u32 s38, s39, s38")
    k("s_mov_b64 s[40:41], s[32:33]", "s_mov_b32 s42, s34", "s_mov_b64 s[44:45], s[60:61]", "s_mov_b32 s46, s62", "s_mov_b32 s67, 0")
    k.lab(l3)
    k("s_mov_b32 s43, 0x00020000", "s_mov_b32 s47, 0x00020000")
    k("s_mov_b32 s64, 52429", "s_mul_i32 s65, s37, 160", "s_lshl_b32 s66, s38, 7", "v_mov_b32 v8, 0x7ffffff0")
    for j in range(5):
        l4 = k.newlab("nt")
        k(f"v_add_u32 v1, {256*j}, v0", "v_mul_lo_u32 v2, v1, s64", "v_lshrrev_b32 v2, 19, v2", "v_mul_u32_u24 v3, 10, v2", "v_sub_u32 v3, v1, v3", "v_add_u32 v2, s66, v2")
        k("s_mov_b64 vcc, 0", "s_cmp_eq_u32 s67, 0", f"s_cbranch_scc1 {l4}")
        k("v_mul_u32_u24 v4, 2731, v2", "v_lshrrev_b32 v4, 16, v4", "v_mul_u32_u24 v5, 24, v4", "v_sub_u32 v5, v2, v5", "v_mul_u32_u24 v4, 20, v4", "v_add_u32 v2, v4, v5", "v_cmp_le_u32 vcc, 20, v5")
        k.lab(l4)
        k("v_mul_u32_u24 v2, 1280, v2", "v_lshl_add_u32 v2, v3, 4, v2", "s_nop 1", "v_cndmask_b32 v2, v2, v8, vcc")
        k(f"buffer_load_dwordx4 v[{16+4*j}:{19+4*j}], v2, s[40:43], s65 offen")
    k("s_mul_i32 s39, s39, 20480", "v_lshlrev_b32 v2, 4, v0", "s_waitcnt vmcnt(0)")
    for j in range(5):
        k(f"s_add_u32 s64, s39, {j*4096}", f"buffer_store_dwordx4 v[{16+4*j}:{19+4*j}], v2, s[44:47], s64 offen")
    k.lab(done)
    k("s_endpgm")
    return k

def loader_loop(k, NK, NST, dma_list, per):
    issued = -1
    def issue(upto):
        nonlocal issued
        while issued < min(upto, NK - 1):
            issued += 1; k(*dma_list(issued))
    issue(1)
    for kt in range(NK):
        k(f"s_waitcnt vmcnt({per*(issued-kt)})", "s_barrier")
        issue(kt + NST - 1)
    k("s_endpgm")

def act_dma_voffs(k, rows_per_wave=32):
    k("s_lshl_b32 s32, s26, 7", "s_lshl_b32 s33, s29, 5", "s_add_u32 s32, s32, s33")
    k("v_lshrrev_b32 v25, 3, v1", "v_add_u32 v25, s32, v25", "v_mul_u32_u24 v25, 1280, v25")
    k("v_and_b32 v26, 7, v1", "v_lshrrev_b32 v27, 4, v1", "v_xor_b32 v26, v26, v27", "v_lshlrev_b32 v26, 4, v26")
    k("v_xor_b32 v27, 64, v26")
    for j in range(4):
        k(f"v_add_u32 v{2+j}, v25, v{26 + (j&1)}")
        if j: k(f"v_add_u32 v{2+j}, {j*(8*1280-1024)}, v{2+j}")

def gen_qkv(name, xsrc, statsrc, opt=''):
    NK = 10; NST = 4; STB = 32768
    k = K(name, 256, 512, NST*STB)
    done = k.newlab("done"); lload = k.newlab("loader")
    k("s_cmp_ge_u32 s2, 256", f"s_cbranch_scc1 {done}")
    xcd_map16(k, 15)
    if 'stamp' in opt: stamp(k, 0); rstamp(k, 6)
    specs = [(4, xsrc), (8, 'WQ'), (16, 'QKV'), (20, statsrc), (12, 'CS')]
    ptr_loads(k, specs)
    k("v_and_b32 v1, 63, v0", "v_lshrrev_b32 v25, 6, v0", "s_nop 0", "v_readfirstlane_b32 s29, v25")
    k("s_nop 3", "s_cmp_ge_u32 s29, 4", f"s_cbranch_scc1 {lload}")
    k("s_and_b32 s30, s29, 1", "s_lshr_b32 s31, s29, 1")
    k("v_and_b32 v25, 31, v1", "s_lshl_b32 s32, s26, 7", "s_lshl_b32 s33, s31, 6", "s_add_u32 s32, s32, s33", "v_add_u32 v28, s32, v25")
    k("v_lshlrev_b32 v29, 6, v28")
    k("v_lshrrev_b32 v30, 5, v1", "v_lshlrev_b32 v30, 4, v30", "s_lshl_b32 s32, s27, 9", "s_lshl_b32 s33, s30, 8", "s_add_u32 s32, s32, s33", "v_add_u32 v30, s32, v30")
    k("v_and_b32 v25, 31, v1", "s_lshl_b32 s32, s31, 6", "v_add_u32 v26, s32, v25", "v_lshlrev_b32 v26, 7, v26")
    k("v_lshrrev_b32 v25, 1, v25", "v_and_b32 v25, 7, v25", "v_lshrrev_b32 v27, 5, v1", "v_xor_b32 v25, v25, v27")
    for s in range(4):
        k(f"v_xor_b32 v27, {2*s}, v25", f"v_lshl_add_u32 v{10+s}, v27, 4, v26")
    k("v_lshrrev_b32 v25, 5, v1", "v_lshlrev_b32 v25, 3, v25", "v_bfe_u32 v26, v1, 2, 2", "v_add_u32 v25, v25, v26", "v_lshlrev_b32 v25, 8, v25")
    k("v_bfe_u32 v27, v1, 4, 1", "v_lshl_add_u32 v25, v27, 5, v25", "v_and_b32 v27, 3, v1", "v_lshl_add_u32 v25, v27, 3, v25", "v_add_u32 v25, 16384, v25")
    k("s_lshl_b32 s32, s30, 1")
    for ft in range(2):
        k(f"s_add_u32 s33, s32, {ft}", "v_xor_b32 v27, s33, v26", f"v_lshl_add_u32 v{14+ft}, v27, 6, v25")
    for i in range(64, 128): k(f"v_mov_b32 v{i}, 0")
    ptr_srds(k, specs)
    for tt in range(2):
        for i in range(4): k(f"buffer_load_dwordx4 v[{160+16*tt+4*i}:{163+16*tt+4*i}], v29, s[20:23], 0 offen offset:{tt*2048+16*i}")
    for ft in range(2):
        for g in range(4): k(f"buffer_load_dwordx4 v[{128+16*ft+4*g}:{131+16*ft+4*g}], v30, s[12:15], 0 offen offset:{ft*128+g*32}")
    if 'stamp' in opt: stamp(k, 1)
    def reads(s):
        fb = 32 + 16 * (s & 1); L = []
        for tt in range(2): L.append(f"ds_read_b128 v[{fb+4*tt}:{fb+4*tt+3}], v{10+s} offset:{tt*4096}")
        for ft in range(2):
            for r in range(2):
                L.append(f"ds_read_b64_tr_b16 v[{fb+8+4*ft+2*r}:{fb+8+4*ft+2*r+1}], v{14+ft} offset:{(16*s+4*r)*256}")
        return L
    def mfmas(s):
        fb = 32 + 16 * (s & 1); L = []
        for ft in range(2):
            for tt in range(2):
                a = 64 + (ft*2+tt)*16
                L.append(f"v_mfma_f32_32x32x16_bf16 v[{a}:{a+15}], v[{fb+8+4*ft}:{fb+8+4*ft+3}], v[{fb+4*tt}:{fb+4*tt+3}], v[{a}:{a+15}]")
        return L
    k("s_barrier")
    if 'stamp' in opt: stamp(k, 2)
    k(*reads(0))
    for kt in range(NK):
        for s in range(4):
            k("s_waitcnt lgkmcnt(0)")
            M = mfmas(s)
            if s < 3:
                interleave(k, M, reads(s+1), [2, 2, 2, 0])
            elif kt + 1 < NK:
                k(M[0], "s_barrier")
                d = STB if (kt + 1) % NST else -(NST-1)*STB
                for r in range(10, 16): k(f"v_add_u32 v{r}, {d & 0xffffffff:#x}, v{r}")
                interleave(k, M[1:], reads(0), [2, 2, 2])
            else:
                k(*M)
        if kt == 3:
            k("s_waitcnt vmcnt(8)")
            for tt in range(2):
                merge_stats(k, 160+16*tt, 16, 192+4*tt, 194+4*tt)
                k(f"v_mov_b32 v{193+4*tt}, v{192+4*tt}", f"v_mov_b32 v{195+4*tt}, v{194+4*tt}")
    if 'stamp' in opt: stamp(k, 3)
    k("s_barrier")
    k("s_mul_i32 s32, s29, 9216")
    k("v_and_b32 v25, 31, v1", "v_mul_u32_u24 v25, 144, v25", "v_lshrrev_b32 v26, 5, v1", "v_lshl_add_u32 v25, v26, 3, v25", "v_add_u32 v25, s32, v25")
    k("s_mov_b32 s33, 52429")
    for n in range(5):
        k(f"v_add_u32 v26, {64*n}, v1", "v_mul_lo_u32 v27, v26, s33", "v_lshrrev_b32 v27, 18, v27", "v_mul_u32_u24 v28, 5, v27", "v_sub_u32 v28, v26, v28",
          "v_mul_u32_u24 v27, 144, v27", "v_lshl_add_u32 v27, v28, 3, v27", f"v_add_u32 v{2+n}, s32, v27")
    k("v_lshlrev_b32 v28, 3, v1", "s_lshl_b32 s32, s27, 1", "s_add_u32 s32, s32, s30", "s_mul_i32 s32, s32, 81920", "s_lshl_b32 s33, s26, 1", "s_add_u32 s33, s33, s31", "s_mul_i32 s33, s33, 2560", "s_add_u32 s32, s32, s33")
    k("s_waitcnt vmcnt(0)", "s_nop 4")
    for tt in range(2):
        for ft in range(2):
            a = 64 + (ft*2+tt)*16; vm = 192 + 4*tt; vr = 194 + 4*tt
            for r in range(0, 16, 2):
                k(f"v_pk_fma_f32 v[{a+r}:{a+r+1}], v[{vm}:{vm+1}], v[{128+ft*16+r}:{129+ft*16+r}], v[{a+r}:{a+r+1}] neg_lo:[1,0,0] neg_hi:[1,0,0]")
                k(f"v_pk_mul_f32 v[{a+r}:{a+r+1}], v[{a+r}:{a+r+1}], v[{vr}:{vr+1}]")
            for g in range(4):
                d = 32 + 2*((ft*4+g) % 8)
                k(f"v_cvt_pk_bf16_f32 v{d}, v{a+4*g}, v{a+4*g+1}", f"v_cvt_pk_bf16_f32 v{d+1}, v{a+4*g+2}, v{a+4*g+3}")
                k(f"ds_write_b64 v25, v[{d}:{d+1}] offset:{tt*32*144 + ft*64 + g*16}")
    k("s_waitcnt lgkmcnt(0)")
    for wh in range(3):
        for n in range(5): k(f"ds_read_b64 v[{64+2*(wh*5+n)}:{65+2*(wh*5+n)}], v{2+n} offset:{wh*40}")
    for wh in range(3):
        k(f"s_add_u32 s33, s32, {wh*32*81920}")
        for n in range(5):
            i = wh*5+n
            k(f"s_waitcnt lgkmcnt({14-i})", f"buffer_store_dwordx2 v[{64+2*i}:{65+2*i}], v28, s[16:19], s33 offen offset:{n*512}")
    if 'stamp' in opt:
        stamp(k, 4); k("s_waitcnt vmcnt(0)"); stamp(k, 5); rstamp(k, 7); k('s_waitcnt lgkmcnt(0)', 's_sub_u32 s54, s54, s52', 's_add_u32 s54, s54, s40', 's_mov_b32 s52, s40'); stamps_out(k, 8, 17)
    k.lab(done)
    k("s_endpgm")
    k.lab(lload)
    k("s_sub_u32 s29, s29, 4")
    act_dma_voffs(k)
    k("s_mul_i32 s32, s27, 163840", "s_lshl_b32 s33, s29, 12", "s_add_u32 s32, s32, s33", "v_lshlrev_b32 v6, 4, v1", "v_add_u32 v6, s32, v6")
    k("s_lshl_b32 s34, s29, 12")
    ptr_srds(k, specs)
    def dma_list(kt):
        st = kt % NST
        L = [f"s_add_u32 m0, s34, {st*STB}", f"s_mov_b32 s35, {kt*128}"]
        L += [f"buffer_load_dwordx4 v{2+j}, s[4:7], s35 offen offset:{j*1024} lds" for j in range(4)]
        L += [f"s_add_u32 m0, s34, {st*STB + 16384}", f"s_mov_b32 s36, {kt*16384}"]
        L += [f"buffer_load_dwordx4 v6, s[8:11], s36 offen offset:{j*1024} lds" for j in range(4)]
        return L
    loader_loop(k, NK, NST, dma_list, 8)
    return k

def gen_glu(name, xsrc, statsrc, opt=''):
    NK = 10; NST = 4; STB = 40960
    k = K(name, 256, 512, NST*STB)
    done = k.newlab("done"); lload = k.newlab("loader")
    k("s_cmp_ge_u32 s2, 256", f"s_cbranch_scc1 {done}")
    xcd_map16(k, 16)
    if 'stamp' in opt: stamp(k, 0)
    specs = [(4, xsrc), (8, 'WGU'), (16, 'H'), (20, statsrc), (68, 'CS')]
    ptr_loads(k, specs)
    k("v_and_b32 v1, 63, v0", "v_lshrrev_b32 v25, 6, v0", "s_nop 0", "v_readfirstlane_b32 s29, v25")
    k("s_nop 3", "s_cmp_ge_u32 s29, 4", f"s_cbranch_scc1 {lload}")
    FB = 32; AC = 88; STV = 184; CSV = 188
    k("v_and_b32 v25, 31, v1", "s_lshl_b32 s32, s26, 7", "s_lshl_b32 s33, s29, 5", "s_add_u32 s32, s32, s33", "v_add_u32 v28, s32, v25", "v_lshlrev_b32 v29, 6, v28")
    k("v_lshrrev_b32 v30, 5, v1", "v_lshlrev_b32 v30, 4, v30", "s_mul_i32 s32, s27, 384", "s_add_u32 s32, s32, 8192", "v_add_u32 v30, s32, v30")
    k("s_lshl_b32 s32, s29, 5", "v_add_u32 v26, s32, v25", "v_lshlrev_b32 v26, 7, v26")
    k("v_lshrrev_b32 v25, 1, v25", "v_and_b32 v25, 7, v25", "v_lshrrev_b32 v27, 5, v1", "v_xor_b32 v25, v25, v27")
    for s in range(4):
        k(f"v_xor_b32 v27, {2*s}, v25", f"v_lshl_add_u32 v{10+s}, v27, 4, v26")
    k("v_lshrrev_b32 v25, 5, v1", "v_lshlrev_b32 v25, 3, v25", "v_bfe_u32 v26, v1, 2, 2", "v_add_u32 v25, v25, v26", "v_mul_u32_u24 v25, 192, v25")
    k("v_bfe_u32 v27, v1, 4, 1", "v_lshl_add_u32 v25, v27, 5, v25", "v_and_b32 v27, 3, v1", "v_lshl_add_u32 v25, v27, 3, v25", "v_add_u32 v14, 16384, v25")
    for i in range(AC, AC+96): k(f"v_mov_b32 v{i}, 0")
    ptr_srds(k, specs)
    def cs_load(t, dst):
        mtx, ft = divmod(t, 3)
        for g in range(4): k(f"buffer_load_dwordx4 v[{dst+4*g}:{dst+4*g+3}], v30, s[68:71], 0 offen offset:{ft*128+g*32}" if mtx == 0 else
                             f"buffer_load_dwordx4 v[{dst+4*g}:{dst+4*g+3}], v31, s[68:71], 0 offen offset:{ft*128+g*32}")
    k("v_add_u32 v31, 6144, v30")
    for i in range(4): k(f"buffer_load_dwordx4 v[{FB+28+4*i}:{FB+31+4*i}], v29, s[20:23], 0 offen offset:{16*i}") if False else None
    for i in range(4): k(f"buffer_load_dwordx4 v[{CSV+48+4*i}:{CSV+51+4*i}], v29, s[20:23], 0 offen offset:{16*i}")
    cs_load(0, CSV); cs_load(3, CSV+16); cs_load(1, CSV+32)
    def reads(s):
        fb = FB + 28 * (s & 1); L = [f"ds_read_b128 v[{fb}:{fb+3}], v{10+s}"]
        for t in range(6):
            mtx, ft = divmod(t, 3)
            for r in range(2):
                L.append(f"ds_read_b64_tr_b16 v[{fb+4+4*t+2*r}:{fb+5+4*t+2*r}], v14 offset:{mtx*12288 + (16*s+4*r)*192 + ft*64}")
        return L
    def mfmas(s):
        fb = FB + 28 * (s & 1)
        return [f"v_mfma_f32_32x32x16_bf16 v[{AC+16*t}:{AC+16*t+15}], v[{fb+4+4*t}:{fb+7+4*t}], v[{fb}:{fb+3}], v[{AC+16*t}:{AC+16*t+15}]" for t in range(6)]
    k("s_barrier")
    if 'stamp' in opt: stamp(k, 1)
    k(*reads(0))
    for kt in range(NK):
        for s in range(4):
            k("s_waitcnt lgkmcnt(0)")
            M = mfmas(s)
            if s < 3:
                interleave(k, M, reads(s+1), [3, 3, 3, 2, 2, 0])
            elif kt + 1 < NK:
                k(M[0], "s_barrier")
                d = STB if (kt + 1) % NST else -(NST-1)*STB
                for r in range(10, 15): k(f"v_add_u32 v{r}, {d & 0xffffffff:#x}, v{r}")
                interleave(k, M[1:], reads(0), [3, 3, 3, 2, 2])
            else:
                k(*M)
        if kt == 3:
            k("s_waitcnt vmcnt(0)")
            merge_stats(k, CSV+48, 16, STV, STV+2)
            k(f"v_mov_b32 v{STV+1}, v{STV}", f"v_mov_b32 v{STV+3}, v{STV+2}")
            cs_load(4, CSV+48)
    if 'stamp' in opt: stamp(k, 2)
    cs_load(2, FB); cs_load(5, FB+16) if False else None
    k.L.pop() if False else None
    k("s_barrier")
    cs_load(5, FB+28)
    k("s_mul_i32 s32, s29, 6656")
    k("v_and_b32 v25, 31, v1", "v_mul_u32_u24 v25, 208, v25", "v_lshrrev_b32 v26, 5, v1", "v_lshl_add_u32 v25, v26, 3, v25", "v_add_u32 v25, s32, v25")
    k("v_lshrrev_b32 v26, 2, v1", "v_mul_u32_u24 v26, 208, v26", "v_and_b32 v27, 3, v1", "v_lshl_add_u32 v26, v27, 4, v26", "v_add_u32 v26, s32, v26")
    k("v_lshrrev_b32 v28, 2, v1", "s_lshl_b32 s32, s26, 7", "s_lshl_b32 s33, s29, 5", "s_add_u32 s32, s32, s33", "v_add_u32 v28, s32, v28", "v_mul_u32_u24 v28, 3072, v28")
    k("v_lshl_add_u32 v28, v27, 4, v28", "s_mul_i32 s32, s27, 192", "v_add_u32 v28, s32, v28")
    k("v_mov_b32 v16, 0xbfb8aa3b", "v_mov_b32 v17, 0xbfb8aa3b", "v_mov_b32 v18, 1.0", "v_mov_b32 v19, 1.0")
    csreg = {0: CSV, 3: CSV+16, 1: CSV+32, 4: CSV+48, 2: FB, 5: FB+28}
    for ft in range(3):
        if ft == 0: k("s_waitcnt vmcnt(8)")
        if ft == 2: k("s_waitcnt vmcnt(0)")
        ag = AC + 16*ft; au = AC + 16*(3+ft); cg = csreg[ft]; cu = csreg[3+ft]
        for r in range(0, 16, 2):
            k(f"v_pk_fma_f32 v[{ag+r}:{ag+r+1}], v[{STV}:{STV+1}], v[{cg+r}:{cg+r+1}], v[{ag+r}:{ag+r+1}] neg_lo:[1,0,0] neg_hi:[1,0,0]")
            k(f"v_pk_fma_f32 v[{au+r}:{au+r+1}], v[{STV}:{STV+1}], v[{cu+r}:{cu+r+1}], v[{au+r}:{au+r+1}] neg_lo:[1,0,0] neg_hi:[1,0,0]")
            k(f"v_pk_mul_f32 v[{ag+r}:{ag+r+1}], v[{ag+r}:{ag+r+1}], v[{STV+2}:{STV+3}]")
            k(f"v_pk_mul_f32 v[{au+r}:{au+r+1}], v[{au+r}:{au+r+1}], v[{STV+2}:{STV+3}]")
            k(f"v_cvt_pk_bf16_f32 v20, v{ag+r}, v{ag+r+1}", f"v_cvt_pk_bf16_f32 v21, v{au+r}, v{au+r+1}")
            k(f"v_lshlrev_b32 v{ag+r}, 16, v20", f"v_and_b32 v{ag+r+1}, 0xffff0000, v20", f"v_lshlrev_b32 v{au+r}, 16, v21", f"v_and_b32 v{au+r+1}, 0xffff0000, v21")
            k(f"v_pk_mul_f32 v[{ag+r}:{ag+r+1}], v[{ag+r}:{ag+r+1}], v[16:17]")
            k(f"v_exp_f32 v{ag+r}, v{ag+r}", f"v_exp_f32 v{ag+r+1}, v{ag+r+1}", "s_nop 0")
            k(f"v_pk_add_f32 v[{ag+r}:{ag+r+1}], v[{ag+r}:{ag+r+1}], v[18:19]")
            k(f"v_rcp_f32 v{ag+r}, v{ag+r}", f"v_rcp_f32 v{ag+r+1}, v{ag+r+1}", "s_nop 0")
            k(f"v_cvt_pk_bf16_f32 v20, v{ag+r}, v{ag+r+1}")
            k(f"v_lshlrev_b32 v{ag+r}, 16, v20", f"v_and_b32 v{ag+r+1}, 0xffff0000, v20")
            k(f"v_pk_mul_f32 v[{ag+r}:{ag+r+1}], v[{ag+r}:{ag+r+1}], v[{au+r}:{au+r+1}]")
        for g in range(4):
            d = 2 + 2*(g & 3)
            k(f"v_cvt_pk_bf16_f32 v{d}, v{ag+4*g}, v{ag+4*g+1}", f"v_cvt_pk_bf16_f32 v{d+1}, v{ag+4*g+2}, v{ag+4*g+3}")
            k(f"ds_write_b64 v25, v[{d}:{d+1}] offset:{ft*64 + g*16}")
    k("s_waitcnt lgkmcnt(0)")
    n = 0
    for hh in range(2):
        for seg in range(3):
            k(f"ds_read_b128 v[{AC+4*n}:{AC+4*n+3}], v26 offset:{hh*16*208 + seg*64}"); n += 1
    n = 0
    for hh in range(2):
        for seg in range(3):
            k(f"s_waitcnt lgkmcnt({5-n})", f"s_mov_b32 s32, {hh*16*3072}", f"buffer_store_dwordx4 v[{AC+4*n}:{AC+4*n+3}], v28, s[16:19], s32 offen offset:{seg*64}"); n += 1
    if 'stamp' in opt:
        stamp(k, 3); k("s_waitcnt vmcnt(0)"); stamp(k, 4); stamps_out(k, 5, 17)
    k.lab(done)
    k("s_endpgm")
    k.lab(lload)
    k("s_sub_u32 s29, s29, 4")
    act_dma_voffs(k)
    k("s_mul_i32 s32, s27, 245760", "s_mul_i32 s31, s29, 6144", "s_add_u32 s32, s32, s31", "v_lshlrev_b32 v6, 4, v1", "v_add_u32 v6, s32, v6", "v_add_u32 v7, 4096, v6")
    k("s_lshl_b32 s34, s29, 12")
    ptr_srds(k, specs)
    def dma_list(kt):
        st = kt % NST
        L = [f"s_add_u32 m0, s34, {st*STB}", f"s_mov_b32 s35, {kt*128}"]
        L += [f"buffer_load_dwordx4 v{2+j}, s[4:7], s35 offen offset:{j*1024} lds" for j in range(4)]
        L += [f"s_add_u32 m0, s31, {st*STB + 16384}", f"s_mov_b32 s30, {kt*24576}"]
        L += [f"buffer_load_dwordx4 v6, s[8:11], s30 offen offset:{j*1024} lds" for j in range(4)]
        L += [f"s_add_u32 m0, s31, {st*STB + 16384 + 4096}", "s_nop 0"]
        L += [f"buffer_load_dwordx4 v7, s[8:11], s30 offen offset:{j*1024} lds" for j in range(2)]
        return L
    loader_loop(k, NK, NST, dma_list, 10)
    return k

def gen_out(name, asrc, KK, wsrc, rsrc, dst, stdst, opt=''):
    NK = KK // 128; NST = 4; STB = 36864; AP = KK * 2
    k = K(name, 256, 512, NST*STB)
    done = k.newlab("done"); lload = k.newlab("loader")
    k("s_cmp_ge_u32 s2, 256", f"s_cbranch_scc1 {done}")
    k("s_and_b32 s24, s2, 7", "s_lshr_b32 s25, s2, 3", "s_lshl_b32 s26, s24, 2", "s_and_b32 s27, s25, 3", "s_add_u32 s26, s26, s27", "s_lshr_b32 s27, s25, 2")
    if 'stamp' in opt: stamp(k, 0)
    specs = [(4, asrc), (8, wsrc), (12, rsrc), (16, dst)] + ([(20, stdst)] if stdst else [])
    ptr_loads(k, specs)
    k("v_and_b32 v1, 63, v0", "v_lshrrev_b32 v25, 6, v0", "s_nop 0", "v_readfirstlane_b32 s29, v25")
    k("s_nop 3", "s_cmp_ge_u32 s29, 4", f"s_cbranch_scc1 {lload}")
    FB = 32; AC = 104; RS = 184
    k("v_and_b32 v25, 15, v1", "v_lshrrev_b32 v26, 4, v1", "s_lshl_b32 s32, s29, 2", "v_add_u32 v26, s32, v26", "v_xor_b32 v26, v26, v25", "v_lshlrev_b32 v26, 4, v26", "v_lshl_add_u32 v10, v25, 8, v26")
    k("v_lshrrev_b32 v26, 4, v1", "v_lshlrev_b32 v26, 3, v26", "v_bfe_u32 v27, v1, 2, 2", "v_add_u32 v26, v26, v27", "s_lshl_b32 s32, s29, 5", "v_add_u32 v26, s32, v26", "v_mul_u32_u24 v26, 160, v26")
    k("v_and_b32 v27, 3, v1", "v_lshl_add_u32 v26, v27, 3, v26", "v_add_u32 v11, 16384, v26")
    k("s_lshl_b32 s32, s26, 6", "s_lshl_b32 s33, s29, 4", "s_add_u32 s32, s32, s33", "v_add_u32 v28, s32, v25", "v_mul_u32_u24 v29, 1280, v28")
    k("v_lshrrev_b32 v26, 4, v1", "v_lshl_add_u32 v29, v26, 3, v29", "s_mul_i32 s32, s27, 160", "v_add_u32 v29, s32, v29")
    for i in range(AC, AC+80): k(f"v_mov_b32 v{i}, 0")
    ptr_srds(k, specs)
    for ft in range(5): k(f"buffer_load_dwordx2 v[{RS+2*ft}:{RS+2*ft+1}], v29, s[12:15], 0 offen offset:{ft*32}")
    def reads(p):
        fb = FB + 36 * p; L = []
        for tt in range(4): L.append(f"ds_read_b128 v[{fb+4*tt}:{fb+4*tt+3}], v10 offset:{tt*4096}")
        for ft in range(5):
            for r in range(2): L.append(f"ds_read_b64_tr_b16 v[{fb+16+4*ft+2*r}:{fb+17+4*ft+2*r}], v11 offset:{4*r*160 + ft*32}")
        return L
    def mfmas(p):
        fb = FB + 36 * p; L = []
        for ft in range(5):
            for tt in range(4):
                a = AC + (ft*4+tt)*4
                L.append(f"v_mfma_f32_16x16x32_bf16 v[{a}:{a+3}], v[{fb+16+4*ft}:{fb+19+4*ft}], v[{fb+4*tt}:{fb+4*tt+3}], v[{a}:{a+3}]")
        return L
    k("s_barrier")
    if 'stamp' in opt: stamp(k, 1)
    k(*reads(0))
    for kt in range(NK):
        k("s_waitcnt lgkmcnt(0)")
        M = mfmas(kt & 1)
        if kt + 1 < NK:
            k(M[0], "s_barrier")
            d = STB if (kt + 1) % NST else -(NST-1)*STB
            for r in (10, 11): k(f"v_add_u32 v{r}, {d & 0xffffffff:#x}, v{r}")
            interleave(k, M[1:], reads((kt+1) & 1), [1]*14 + [0]*5)
        else:
            k(*M)
    if 'stamp' in opt: stamp(k, 2)
    k("s_barrier")
    k("v_lshlrev_b32 v25, 4, v1", "s_mul_i32 s32, s29, 20480", "v_add_u32 v26, s32, v25")
    k("s_mul_i32 s32, s29, 5120", "v_add_u32 v27, s32, v25", "v_add_u32 v24, 40960, v27")
    k("s_nop 7")
    lw = [k.newlab("rw") for _ in range(4)]
    for tt in range(4):
        k(f"s_cmp_eq_u32 s29, {tt}", f"s_cbranch_scc1 {lw[tt]}")
        for ft in range(5):
            a = AC + (ft*4+tt)*4
            k(f"ds_write_b128 v26, v[{a}:{a+3}] offset:{(tt*5+ft)*1024}")
        k.lab(lw[tt])
    k("s_waitcnt lgkmcnt(0)", "s_barrier")
    le = k.newlab("e");
    labs = [k.newlab("own") for _ in range(4)]
    for tt in range(4):
        k(f"s_cmp_eq_u32 s29, {tt}", f"s_cbranch_scc1 {labs[tt]}")
    for tt in range(4):
        k.lab(labs[tt])
        for ft in range(5):
            for r in range(4): k(f"v_mov_b32 v{FB+4*ft+r}, v{AC+(ft*4+tt)*4+r}")
        n = 0
        for src in range(4):
            if src == tt: continue
            for ft in range(5):
                k(f"ds_read_b128 v[{AC+4*n}:{AC+4*n+3}], v{27 if src < 2 else 24} offset:{(src&1)*20480 + ft*1024}"); n += 1
        k(f"s_branch {le}")
    k.lab(le)
    k("s_waitcnt lgkmcnt(0) vmcnt(0)")
    for sidx in range(3):
        for ft in range(5):
            for r in range(0, 4, 2):
                k(f"v_pk_add_f32 v[{FB+4*ft+r}:{FB+4*ft+r+1}], v[{FB+4*ft+r}:{FB+4*ft+r+1}], v[{AC+4*(sidx*5+ft)+r}:{AC+4*(sidx*5+ft)+r+1}]")
    for ft in range(5):
        for p in range(2):
            a = FB + 4*ft + 2*p; x = RS + 2*ft + p
            k(f"v_cvt_pk_bf16_f32 v20, v{a}, v{a+1}", f"v_lshlrev_b32 v{a}, 16, v20", f"v_and_b32 v{a+1}, 0xffff0000, v20")
            k(f"v_lshlrev_b32 v21, 16, v{x}", f"v_and_b32 v22, 0xffff0000, v{x}", f"v_add_f32 v{a}, v{a}, v21", f"v_add_f32 v{a+1}, v{a+1}, v22")
            k(f"v_cvt_pk_bf16_f32 v{x}, v{a}, v{a+1}")
            if stdst: k(f"v_lshlrev_b32 v{a}, 16, v{x}", f"v_and_b32 v{a+1}, 0xffff0000, v{x}")
        k(f"buffer_store_dwordx2 v[{RS+2*ft}:{RS+2*ft+1}], v29, s[16:19], 0 offen offset:{ft*32}")
    if stdst:
        def xsum(v, t):
            k(f"v_mov_b32 v{t}, v{v}", "s_nop 1", f"v_permlane16_swap_b32 v{v}, v{t}", f"v_add_f32 v{v}, v{v}, v{t}")
            k(f"v_mov_b32 v{t}, v{v}", "s_nop 1", f"v_permlane32_swap_b32 v{v}, v{t}", f"v_add_f32 v{v}, v{v}, v{t}")
        k(f"v_add_f32 v20, v{FB}, v{FB+1}")
        for i in range(2, 20): k(f"v_add_f32 v20, v20, v{FB+i}")
        xsum(20, 22)
        k("v_mul_f32 v23, 0x3c4ccccd, v20", "v_mov_b32 v21, 0")
        for i in range(20): k(f"v_sub_f32 v22, v{FB+i}, v23", "v_fmac_f32 v21, v22, v22")
        xsum(21, 22)
        k("v_lshlrev_b32 v28, 6, v28", "s_lshl_b32 s32, s27, 3", "v_add_u32 v28, s32, v28")
        k("v_cmp_gt_u32 vcc, 16, v1", "s_and_saveexec_b64 s[36:37], vcc", f"s_cbranch_execz {done}")
        k("buffer_store_dwordx2 v[20:21], v28, s[20:23], 0 offen")
        if 'stamp' in opt:
            k("s_mov_b64 exec, s[36:37]"); stamp(k, 3); k("s_waitcnt vmcnt(0)"); stamp(k, 4); stamps_out(k, 5, 17)
    k.lab(done)
    k("s_endpgm")
    k.lab(lload)
    k("s_sub_u32 s29, s29, 4")
    k("s_lshl_b32 s32, s26, 6", "s_lshl_b32 s33, s29, 4", "s_add_u32 s32, s32, s33", "v_lshrrev_b32 v25, 4, v1", "v_and_b32 v26, 15, v1", f"s_mov_b32 s33, {AP}")
    for jj in range(4):
        k(f"v_add_u32 v27, {4*jj}, v25", "v_xor_b32 v28, v26, v27", "v_add_u32 v27, s32, v27", "v_mul_lo_u32 v27, v27, s33", "v_lshl_add_u32 v27, v28, 4, v27", f"v_subrev_u32 v{2+jj}, {jj*1024}, v27")
    k(f"s_mul_i32 s32, s27, {KK*160}", "s_mul_i32 s31, s29, 5120", "s_add_u32 s32, s32, s31", "v_lshlrev_b32 v6, 4, v1", "v_add_u32 v6, s32, v6", "v_add_u32 v7, 4096, v6")
    k("s_lshl_b32 s34, s29, 12")
    ptr_srds(k, specs)
    def dma_list(kt):
        st = kt % NST
        L = [f"s_add_u32 m0, s34, {st*STB}", f"s_mov_b32 s35, {kt*256}"]
        L += [f"buffer_load_dwordx4 v{2+j}, s[4:7], s35 offen offset:{j*1024} lds" for j in range(4)]
        L += [f"s_add_u32 m0, s31, {st*STB + 16384}", f"s_mov_b32 s30, {kt*20480}"]
        L += [f"buffer_load_dwordx4 v6, s[8:11], s30 offen offset:{j*1024} lds" for j in range(4)]
        L += [f"s_add_u32 m0, s31, {st*STB + 16384 + 4096}", "s_nop 0", "buffer_load_dwordx4 v7, s[8:11], s30 offen lds"]
        return L
    loader_loop(k, NK, NST, dma_list, 9)
    return k

def gen_attn(name, opt=''):
    VB = 20480
    k = K(name, 256, 512, 40960 + 128)
    done = k.newlab("done")
    specs = [(4, 'QKV'), (16, 'O')]
    ptr_loads(k, specs)
    k("s_cmp_ge_u32 s2, 256", f"s_cbranch_scc1 {done}")
    k("s_and_b32 s26, s2, 7", "s_lshr_b32 s27, s2, 3")
    if 'stamp' in opt: stamp(k, 0)
    k("v_and_b32 v1, 63, v0", "v_lshrrev_b32 v25, 6, v0", "s_nop 0", "v_readfirstlane_b32 s29, v25", "s_nop 3")
    k("s_lshr_b32 s32, s29, 2", "s_add_u32 s32, s32, 1", "s_lshl_b32 s32, s32, 5", "s_add_u32 s32, s32, s27", "s_mul_i32 s32, s32, 81920")
    k("s_mul_i32 s33, s26, 10240", "s_add_u32 s32, s32, s33", "s_sub_u32 s32, s32, 10240", "s_and_b32 s33, s29, 3", "s_mul_i32 s33, s33, 5120", "s_add_u32 s32, s32, s33")
    k("v_lshlrev_b32 v2, 4, v1", "v_add_u32 v2, s32, v2", "v_add_u32 v3, 4096, v2")
    k("s_mul_i32 s34, s29, 5120")
    k("v_and_b32 v20, 31, v1", "s_lshl_b32 s32, s26, 8", "s_lshl_b32 s35, s29, 5", "s_add_u32 s32, s32, s35", "v_add_u32 v4, s32, v20")
    k("v_mul_u32_u24 v5, 40, v4", "s_mul_i32 s33, s27, 81920", "v_add_u32 v5, s33, v5", "v_lshrrev_b32 v6, 5, v1", "v_lshl_add_u32 v7, v6, 4, v5")
    ptr_srds(k, specs)
    k("s_mov_b32 m0, s34", "s_nop 0")
    for j in range(4): k(f"buffer_load_dwordx4 v2, s[4:7], 0 offen offset:{j*1024} lds")
    k("s_add_u32 m0, s34, 4096", "s_nop 0", "buffer_load_dwordx4 v3, s[4:7], 0 offen lds")
    k("buffer_load_dwordx2 v[8:9], v7, s[4:7], 0 offen", "buffer_load_dwordx2 v[10:11], v7, s[4:7], 0 offen offset:8", "buffer_load_dwordx2 v[12:13], v5, s[4:7], 0 offen offset:32")
    k("v_mov_b32 v14, 0", "v_mov_b32 v15, 0")
    k("v_add_u32 v16, s35, v20", "v_mul_u32_u24 v16, 40, v16", "v_lshl_add_u32 v16, v6, 4, v16")
    k("v_lshlrev_b32 v17, 2, v6", "v_bfe_u32 v18, v1, 2, 2", "v_add_u32 v17, v17, v18", "v_add_u32 v17, s35, v17", "v_mul_u32_u24 v17, 40, v17")
    k("v_bfe_u32 v18, v1, 4, 1", "v_lshl_add_u32 v17, v18, 5, v17", "v_and_b32 v18, 3, v1", "v_lshl_add_u32 v17, v18, 3, v17", f"v_add_u32 v17, {VB}, v17")
    k("v_lshlrev_b32 v18, 2, v6", "v_sub_u32 v18, v20, v18")
    k("v_cmp_gt_u32 vcc, 32, v1")
    k("s_waitcnt vmcnt(0)")
    k("v_cndmask_b32 v12, 0, v12, vcc", "v_cndmask_b32 v13, 0, v13, vcc")
    k("s_barrier")
    if 'stamp' in opt: stamp(k, 1)
    S = 64; KF = 24
    def kread(i):
        b = KF + 8*(i & 1)
        k(f"ds_read2_b64 v[{b}:{b+3}], v16 offset0:{i*160} offset1:{i*160+1}") if False else None
        for p, o in enumerate((0, 8, 32, 40)):
            k(f"ds_read_b64 v[{b+2*p}:{b+2*p+1}], v16 offset:{i*1280+o}")
    kread(0)
    for i in range(9):
        if i < 8: kread(i+1); k("s_waitcnt lgkmcnt(4)")
        else: k("s_waitcnt lgkmcnt(0)")
        b = KF + 8*(i & 1); a = S + 16*i
        k(f"v_mfma_f32_32x32x16_bf16 v[{a}:{a+15}], v[{b}:{b+3}], v[8:11], 0")
        k(f"v_mfma_f32_32x32x16_bf16 v[{a}:{a+15}], v[{b+4}:{b+7}], v[12:15], v[{a}:{a+15}]")
    k("s_nop 7", "s_nop 7")
    if 'stamp' in opt: stamp(k, 2)
    emu = 'emu' in opt
    if emu:
        k("v_mov_b32 v40, 0x3e64f92e", "v_mov_b32 v41, 0x3e64f92e")
        for r in range(S, S+144, 2):
            k(f"v_cvt_pk_bf16_f32 v42, v{r}, v{r+1}", f"v_lshlrev_b32 v{r}, 16, v42", f"v_and_b32 v{r+1}, 0xffff0000, v42")
            k(f"v_pk_mul_f32 v[{r}:{r+1}], v[{r}:{r+1}], v[40:41]")
            k(f"v_cvt_pk_bf16_f32 v42, v{r}, v{r+1}", f"v_lshlrev_b32 v{r}, 16, v42", f"v_and_b32 v{r+1}, 0xffff0000, v42")
    k("v_mov_b32 v43, 0xce6e6b28")
    for g in range(4):
        for r in range(4):
            c = 8*g + r
            k(f"v_cmp_le_i32 vcc, {c}, v18", "s_nop 1")
            k(f"v_cndmask_b32 v{S+128+4*g+r}, v43, v{S+128+4*g+r}, vcc", f"v_cndmask_b32 v{S+4*g+r}, v{S+4*g+r}, v43, vcc")
    lq = k.newlab("q0")
    k("s_cmp_lg_u32 s26, 0", f"s_cbranch_scc1 {lq}")
    for i in range(8):
        ls = k.newlab("sk")
        k(f"s_add_u32 s32, s29, {i}", "s_cmp_ge_u32 s32, 8", f"s_cbranch_scc1 {ls}")
        for r in range(16): k(f"v_mov_b32 v{S+16*i+r}, v43")
        k.lab(ls)
    k.lab(lq)
    if 'stamp' in opt: stamp(k, 3)
    k(f"v_max3_f32 v44, v{S}, v{S+1}, v{S+2}", f"v_max3_f32 v45, v{S+3}, v{S+4}, v{S+5}")
    rr = list(range(S+6, S+144, 2))
    for n, r in enumerate(rr): k(f"v_max3_f32 v{44+(n&1)}, v{44+(n&1)}, v{r}, v{r+1}")
    k("v_max_f32 v44, v44, v45")
    k("v_mov_b32 v45, v44", "s_nop 1", "v_permlane32_swap_b32 v44, v45", "v_max_f32 v44, v44, v45")
    cc = 0x3fb8aa3b if emu else 0x3ea52a0b
    import struct
    if not emu:
        cc = struct.unpack('<I', struct.pack('<f', 1.4426950408889634 * struct.unpack('<f', struct.pack('<I', 0x3e64f92e))[0]))[0]
    k(f"v_mov_b32 v40, {cc:#x}", f"v_mov_b32 v41, {cc:#x}", "v_mul_f32 v44, v44, v40", "v_sub_f32 v44, 0, v44", "v_mov_b32 v45, v44", "v_mov_b32 v46, 0", "v_mov_b32 v47, 0")
    for i in range(9):
        for q in range(8):
            r = S + 16*i + 2*q
            k(f"v_pk_fma_f32 v[{r}:{r+1}], v[{r}:{r+1}], v[40:41], v[44:45]")
            k(f"v_exp_f32 v{r}, v{r}", f"v_exp_f32 v{r+1}, v{r+1}")
            if (i, q) != (0, 0):
                pr = r - 2 if q else S + 16*(i-1) + 14; pq = (S + 16*i + q - 1) if q else (S + 16*(i-1) + 7)
                k(f"v_pk_add_f32 v[46:47], v[46:47], v[{pr}:{pr+1}]", f"v_cvt_pk_bf16_f32 v{pq}, v{pr}, v{pr+1}")
    k("s_nop 0", f"v_pk_add_f32 v[46:47], v[46:47], v[{S+142}:{S+143}]", f"v_cvt_pk_bf16_f32 v{S+128+7}, v{S+142}, v{S+143}")
    k("v_add_f32 v46, v46, v47", "v_mov_b32 v47, v46", "s_nop 1", "v_permlane32_swap_b32 v46, v47", "v_add_f32 v46, v46, v47")
    k("v_rcp_f32 v46, v46", "s_nop 0", "v_mov_b32 v47, v46")
    if 'stamp' in opt: stamp(k, 4)
    OA = 208; VF = 24
    def vread(i):
        b = VF + 8*(i & 1)
        for m in range(2):
            for r in range(2):
                k(f"ds_read_b64_tr_b16 v[{b+4*m+2*r}:{b+4*m+2*r+1}], v17 offset:{(32*i+16*m+8*r)*40}")
    vread(0)
    for i in range(9):
        if i < 8: vread(i+1); k("s_waitcnt lgkmcnt(4)")
        else: k("s_waitcnt lgkmcnt(0)")
        b = VF + 8*(i & 1); p = S + 16*i
        for m in range(2):
            c = "0" if (i == 0 and m == 0) else f"v[{OA}:{OA+15}]"
            k(f"v_mfma_f32_32x32x16_bf16 v[{OA}:{OA+15}], v[{b+4*m}:{b+4*m+3}], v[{p+4*m}:{p+4*m+3}], {c}")
    if 'stamp' in opt: stamp(k, 5)
    k("v_mul_u32_u24 v5, 1280, v4", "s_mul_i32 s33, s27, 40", "v_add_u32 v5, s33, v5", "v_lshl_add_u32 v5, v6, 3, v5")
    k("s_nop 7", "s_nop 7")
    for g in range(3):
        k(f"v_pk_mul_f32 v[{OA+4*g}:{OA+4*g+1}], v[{OA+4*g}:{OA+4*g+1}], v[46:47]", f"v_pk_mul_f32 v[{OA+4*g+2}:{OA+4*g+3}], v[{OA+4*g+2}:{OA+4*g+3}], v[46:47]")
        k(f"v_cvt_pk_bf16_f32 v{40+2*g}, v{OA+4*g}, v{OA+4*g+1}", f"v_cvt_pk_bf16_f32 v{41+2*g}, v{OA+4*g+2}, v{OA+4*g+3}")
    k("buffer_store_dwordx2 v[40:41], v5, s[16:19], 0 offen", "buffer_store_dwordx2 v[42:43], v5, s[16:19], 0 offen offset:16")
    k("v_cmp_gt_u32 vcc, 32, v1", "s_and_saveexec_b64 s[36:37], vcc", f"s_cbranch_execz {done}")
    k("buffer_store_dwordx2 v[44:45], v5, s[16:19], 0 offen offset:32")
    if 'stamp' in opt:
        k("s_mov_b64 exec, s[36:37]", "s_waitcnt vmcnt(0)"); stamp(k, 6); stamps_out(k, 7, 17)
    k.lab(done)
    k("s_endpgm")
    return k

def build(kernels, launches, path):
    hdr = []
    for kn in launches:
        hdr.append(f"; @launch kernel={kn.name} grid=({kn.grid},1,1) block=({kn.block},1,1) lds={kn.lds}")
    out = "\n".join(hdr) + "\n.amdgcn_target \"amdgcn-amd-amdhsa--gfx950\"\n.text\n"
    out += "\n".join(kn.text() for kn in kernels)
    out += "\n.section .rodata,\"a\"\n" + "\n".join(kn.desc() for kn in kernels) + "\n"
    open(path, "w").write(out)
    json.dump(WS, open("layout.json", "w"))

def main_stamp(which):
    prep = gen_prep("prep_kernel"); attn = gen_attn("attn_kernel", 'stamp')
    q1 = gen_qkv("qkv1_kernel", 'x', 'STX', 'stamp')
    w1 = gen_out("wo1_kernel", 'O', 640, 'WO', 'x', 'XA', 'STA', 'stamp')
    glu = gen_glu("glu_kernel", 'XA', 'STA', 'stamp')
    d1 = gen_out("dn1_kernel", 'H', 1536, 'WD', 'XA', 'XB', 'STB', 'stamp')
    ks = [prep, q1, attn, w1, glu, d1]
    build(ks, ks, "mb.s")

if __name__ == "__main__":
    if len(sys.argv) > 1:
        main_stamp(sys.argv[1]); sys.exit(0)
    prep = gen_prep("prep_kernel"); attn = gen_attn("attn_kernel")
    q1 = gen_qkv("qkv1_kernel", 'x', 'STX'); q2 = gen_qkv("qkv2_kernel", 'XB', 'STB')
    w1 = gen_out("wo1_kernel", 'O', 640, 'WO', 'x', 'XA', 'STA'); w2 = gen_out("wo2_kernel", 'O', 640, 'WO', 'XB', 'XA', 'STA')
    glu = gen_glu("glu_kernel", 'XA', 'STA')
    d1 = gen_out("dn1_kernel", 'H', 1536, 'WD', 'XA', 'XB', 'STB'); d2 = gen_out("dn2_kernel", 'H', 1536, 'WD', 'XA', 'out', None)
    ks = [prep, q1, attn, w1, glu, d1, q2, w2, d2]
    build(ks, [prep, q1, attn, w1, glu, d1, q2, attn, w2, glu, d2], "interleave_layers__sliding_block__glu_gated_glu__prompt.s")
```

```python
import json, sys, struct
sys.path.insert(0, 'dev')
import gen
from gen import K, KA, INSZ, interleave, merge_stats, rne_bf16, stamp, build, ptr_loads, ptr_srds

MB = 0x100000
WS = dict(QKV0=0, QKV1=8*MB, O0=16*MB, O1=19*MB+0x80000, XA0=23*MB, XA1=25*MB+0x80000, XB=28*MB+0x40000, H0=31*MB, H1=38*MB,
          STX=45*MB, STA0=45*MB+0x40000, STA1=45*MB+0x80000, STB=45*MB+0xC0000, CS=46*MB, CNT=46*MB+0x40000,
          WQ=47*MB, WGU=50*MB, WO=54*MB, WD=55*MB)
SZ = dict(QKV0=2048*1920*2, QKV1=2048*1920*2, O0=32*2048*48, O1=32*2048*48, XA0=2048*1280, XA1=2048*1280, XB=2048*1280, H0=2048*3072, H1=2048*3072,
          STX=2048*64, STA0=2048*64, STA1=2048*64, STB=2048*64, CS=5120*4, CNT=640*128,
          WQ=16*640*256, WGU=16*640*384, WO=8*768*160, WD=8*1536*160)
gen.WS.clear(); gen.WS.update(WS); gen.SZ.clear(); gen.SZ.update(SZ)
SC = " sc1"
import os
RT = int(os.environ.get('RT','0')); FINE = int(os.environ.get("FINE", "0")); XAL = 1; DUP = int(os.environ.get("DUP", "0"))
_K_call = K.__call__
def _call(self, *ts):
    for t in ts:
        _K_call(self, t)
        if DUP and t.startswith("buffer_store") and t.endswith(" sc1"):
            _K_call(self, t[:-4])
K.__call__ = _call

if RT:
    def stamp(k, i): k(f"s_memrealtime s[{40+2*i}:{41+2*i}]")
WS['DBG'] = 60*MB; SZ['DBG'] = 256*64
gen.WS['DBG'] = 60*MB; gen.SZ['DBG'] = 256*64
def srd(k, sreg, name):
    if name in WS:
        k(f"s_add_u32 s{sreg}, s84, {WS[name]:#x}", f"s_addc_u32 s{sreg+1}, s85, 0", f"s_mov_b32 s{sreg+2}, {SZ[name]}")
    else:
        p = {'x': 86, 'out': 88}[name]
        k(f"s_mov_b32 s{sreg}, s{p}", f"s_mov_b32 s{sreg+1}, s{p+1}", f"s_mov_b32 s{sreg+2}, {INSZ[name]}")
    k(f"s_and_b32 s{sreg+1}, s{sreg+1}, 0xffff", f"s_mov_b32 s{sreg+3}, 0x00020000")

def xcd_map16(k):
    if XAL:
        k("s_and_b32 s24, s2, 7", "s_lshr_b32 s25, s2, 3", "s_lshl_b32 s26, s24, 1", "s_and_b32 s27, s25, 1", "s_add_u32 s26, s26, s27", "s_lshr_b32 s27, s25, 1")
        return
    k("s_and_b32 s24, s2, 7", "s_lshr_b32 s25, s2, 3")
    k("s_lshr_b32 s26, s24, 1", "s_lshl_b32 s26, s26, 2", "s_and_b32 s27, s25, 3", "s_add_u32 s26, s26, s27")
    k("s_and_b32 s27, s24, 1", "s_lshl_b32 s27, s27, 3", "s_lshr_b32 s25, s25, 2", "s_add_u32 s27, s27, s25")

def poll(k, emit_addr, target):
    lp = k.newlab("poll"); lo = k.newlab("pok")
    k("s_cmp_lg_u32 s29, 3", f"s_cbranch_scc1 {lo}")
    emit_addr(k)
    k("s_mov_b32 s38, 0")
    k("buffer_load_dword v21, v24, s[92:95], 0 offen sc1", "s_sleep 3", "buffer_load_dword v22, v24, s[92:95], 0 offen sc1", "s_sleep 3")
    k.lab(lp)
    for r in (23, 21, 22):
        nx = {23: 21, 21: 22, 22: 23}[r]
        k(f"buffer_load_dword v{r}, v24, s[92:95], 0 offen sc1", "s_waitcnt vmcnt(2)", f"v_cmp_gt_u32 vcc, {target}, v{nx}", "s_nop 4", f"s_cbranch_vccz {lo}", "s_sleep 2")
    k("s_add_u32 s38, s38, 1", "s_cmp_gt_u32 s38, 4000", f"s_cbranch_scc0 {lp}")
    k.lab(lo)

def signal(k, sidx_reg):
    l = k.newlab("nosig"); l2 = k.newlab("nosig2")
    k("s_cmp_lg_u32 s29, 0", f"s_cbranch_scc1 {l}")
    k(f"s_lshl_b32 s38, s{sidx_reg}, 7", "v_mov_b32 v24, s38", "v_mov_b32 v23, 1")
    k("v_cmp_eq_u32 vcc, 0, v1", "s_and_saveexec_b64 s[36:37], vcc", f"s_cbranch_execz {l2}")
    k("buffer_atomic_add v23, v24, s[92:95], 0 offen sc1")
    k.lab(l2)
    k("s_mov_b64 exec, s[36:37]")
    k.lab(l)

def fsignal(k, sidx_reg, word_reg):
    l = k.newlab("nosig"); l2 = k.newlab("nosig2")
    k("s_cmp_lg_u32 s29, 0", f"s_cbranch_scc1 {l}")
    k(f"s_lshl_b32 s38, s{sidx_reg}, 7", f"s_lshl_b32 s39, s{word_reg}, 2", "s_add_u32 s38, s38, s39", "v_mov_b32 v24, s38", "v_mov_b32 v23, 1")
    k("v_cmp_eq_u32 vcc, 0, v1", "s_and_saveexec_b64 s[36:37], vcc", f"s_cbranch_execz {l2}")
    k("buffer_store_dword v23, v24, s[92:95], 0 offen")
    k.lab(l2)
    k("s_mov_b64 exec, s[36:37]")
    k.lab(l)

def fpoll_addr(idx_emit, n):
    def f(k):
        idx_emit(k)
        k("s_lshl_b32 s38, s38, 7", f"v_and_b32 v24, {n-1}, v1", "v_lshlrev_b32 v24, 2, v24", "v_add_u32 v24, s38, v24")
    return f

AS = 16384; WB = 65536; WSL = 24576
class WDesc:
    def __init__(s_, kind, r):
        s_.kind = kind; s_.r = r
        s_.name, s_.tile, s_.per, s_.kb, s_.sh = {'q': ('WQ', 163840, 4096, 16384, 4), 'g': ('WGU', 245760, 6144, 24576, 4),
                                          'w': ('WO', 768*160, 5120, 20480, 5), 'd': ('WD', 1536*160, 5120, 20480, 5)}[kind]
    def setup(s_, k):
        srd(k, 76, s_.name)
        k(f"s_lshr_b32 s82, s2, {s_.sh}", f"s_mul_i32 s82, s82, {s_.tile}", f"s_mul_i32 s80, s28, {s_.per}", "s_add_u32 s82, s82, s80")
        k("v_lshlrev_b32 v8, 4, v1", "v_add_u32 v8, s82, v8", "v_add_u32 v9, 4096, v8")
    def wl(s_, kt):
        sl = (kt + s_.r) % 4; n = s_.per // 1024
        Ls = [f"s_add_u32 m0, s80, {WB + sl*WSL}", f"s_mov_b32 s81, {kt*s_.kb}"]
        Ls += [f"buffer_load_dwordx4 v8, s[76:79], s81 offen offset:{j*1024} lds" for j in range(4)]
        if n > 4:
            Ls += [f"s_add_u32 m0, s80, {WB + sl*WSL + 4096}", "s_nop 0"]
            Ls += [f"buffer_load_dwordx4 v9, s[76:79], s81 offen offset:{j*1024} lds" for j in range(n - 4)]
        return Ls

def loader_phase(k, NK, wd, alist, nepi, nxt):
    NST = 4
    ops = []
    def iss(L, st):
        for t in L:
            k(t)
            if t.startswith("buffer_load"): ops.append(st)
    wd.setup(k)
    k("s_barrier")
    ai = -1
    def issue(upto):
        nonlocal ai
        while ai < min(upto, NK - 1):
            ai += 1
            iss(alist(ai), ai)
            if ai >= NST: iss(wd.wl(ai), ai)
    issue(1)
    for kt in range(NK):
        last = max(i for i, s in enumerate(ops) if s == kt)
        k(f"s_waitcnt vmcnt({len(ops)-1-last})", "s_barrier")
        issue(kt + NST - 1)
    if nxt:
        nxt.setup(k)
        for kt in range(3): k(*nxt.wl(kt))
    k("s_barrier")
    if nxt: k(*nxt.wl(3))
    for _ in range(nepi): k("s_barrier")

def act_dma_voffs(k):
    k("s_lshl_b32 s32, s26, 7", "s_lshl_b32 s33, s28, 5", "s_add_u32 s32, s32, s33")
    k("v_lshrrev_b32 v25, 3, v1", "v_add_u32 v25, s32, v25", "v_mul_u32_u24 v25, 1280, v25")
    k("v_and_b32 v26, 7, v1", "v_lshrrev_b32 v27, 4, v1", "v_xor_b32 v26, v26, v27", "v_lshlrev_b32 v26, 4, v26")
    k("v_xor_b32 v27, 64, v26")
    for j in range(4):
        k(f"v_add_u32 v{2+j}, v25, v{26 + (j&1)}")
        if j: k(f"v_add_u32 v{2+j}, {j*(8*1280-1024)}, v{2+j}")

def cnt_single(idx_sreg, base):
    def f(k): k(f"s_add_u32 s38, s{idx_sreg}, {base}", "s_lshl_b32 s38, s38, 7", "v_mov_b32 v24, s38")
    return f

def ph_qkv(k, L, xsrc, statsrc, wd, nxt, st0=None):
    NK = 10; NST = 4; R = wd.r
    lload = k.newlab("loader"); lend = k.newlab("end")
    xcd_map16(k)
    srd(k, 4, xsrc); srd(k, 16, f'QKV{L}'); srd(k, 20, statsrc); srd(k, 12, 'CS')
    k("s_cmp_ge_u32 s29, 4", f"s_cbranch_scc1 {lload}")
    k("s_and_b32 s30, s29, 1", "s_lshr_b32 s31, s29, 1")
    k("v_and_b32 v25, 31, v1", "s_lshl_b32 s32, s26, 7", "s_lshl_b32 s33, s31, 6", "s_add_u32 s32, s32, s33", "v_add_u32 v28, s32, v25")
    k("v_lshlrev_b32 v29, 6, v28")
    k("v_lshrrev_b32 v30, 5, v1", "v_lshlrev_b32 v30, 4, v30", "s_lshl_b32 s32, s27, 9", "s_lshl_b32 s33, s30, 8", "s_add_u32 s32, s32, s33", "v_add_u32 v30, s32, v30")
    k("v_and_b32 v25, 31, v1", "s_lshl_b32 s32, s31, 6", "v_add_u32 v26, s32, v25", "v_lshlrev_b32 v26, 7, v26")
    k("v_lshrrev_b32 v25, 1, v25", "v_and_b32 v25, 7, v25", "v_lshrrev_b32 v27, 5, v1", "v_xor_b32 v25, v25, v27")
    for s in range(4):
        k(f"v_xor_b32 v27, {2*s}, v25", f"v_lshl_add_u32 v{10+s}, v27, 4, v26", f"v_add_u32 v{10+s}, {R*AS}, v{10+s}")
    k("v_lshrrev_b32 v25, 5, v1", "v_lshlrev_b32 v25, 3, v25", "v_bfe_u32 v26, v1, 2, 2", "v_add_u32 v25, v25, v26", "v_lshlrev_b32 v25, 8, v25")
    k("v_bfe_u32 v27, v1, 4, 1", "v_lshl_add_u32 v25, v27, 5, v25", "v_and_b32 v27, 3, v1", "v_lshl_add_u32 v25, v27, 3, v25", f"v_add_u32 v25, {WB + R*WSL}, v25")
    k("s_lshl_b32 s32, s30, 1")
    for ft in range(2):
        k(f"s_add_u32 s33, s32, {ft}", "v_xor_b32 v27, s33, v26", f"v_lshl_add_u32 v{14+ft}, v27, 6, v25")
    for i in range(64, 128): k(f"v_mov_b32 v{i}, 0")
    if L == 1: poll(k, fpoll_addr(lambda k: k('s_add_u32 s38, s26, 296'), 16), 1)
    k("s_barrier")
    for ft in range(2):
        for g in range(4): k(f"buffer_load_dwordx4 v[{128+16*ft+4*g}:{131+16*ft+4*g}], v30, s[12:15], 0 offen offset:{ft*128+g*32}")
    if st0 is not None: stamp(k, st0)
    for tt in range(2):
        for i in range(4): k(f"buffer_load_dwordx4 v[{160+16*tt+4*i}:{163+16*tt+4*i}], v29, s[20:23], 0 offen offset:{tt*2048+16*i}" + SC)
    def reads(s):
        fb = 32 + 16 * (s & 1); Ls = []
        for tt in range(2): Ls.append(f"ds_read_b128 v[{fb+4*tt}:{fb+4*tt+3}], v{10+s} offset:{tt*4096}")
        for ft in range(2):
            for r in range(2):
                Ls.append(f"ds_read_b64_tr_b16 v[{fb+8+4*ft+2*r}:{fb+8+4*ft+2*r+1}], v{14+ft} offset:{(16*s+4*r)*256}")
        return Ls
    def mfmas(s):
        fb = 32 + 16 * (s & 1); Ls = []
        for ft in range(2):
            for tt in range(2):
                a = 64 + (ft*2+tt)*16
                Ls.append(f"v_mfma_f32_32x32x16_bf16 v[{a}:{a+15}], v[{fb+8+4*ft}:{fb+8+4*ft+3}], v[{fb+4*tt}:{fb+4*tt+3}], v[{a}:{a+15}]")
        return Ls
    k("s_barrier")
    if st0 is not None: stamp(k, st0+1)
    k(*reads(0))
    for kt in range(NK):
        for s in range(4):
            k("s_waitcnt lgkmcnt(0)")
            M = mfmas(s)
            if s < 3:
                interleave(k, M, reads(s+1), [2, 2, 2, 0])
            elif kt + 1 < NK:
                k(M[0], "s_barrier")
                wrap = (kt + 1 + R) % NST == 0
                for r in range(10, 14): k(f"v_add_u32 v{r}, {(-3*AS if wrap else AS) & 0xffffffff:#x}, v{r}")
                for r in range(14, 16): k(f"v_add_u32 v{r}, {(-3*WSL if wrap else WSL) & 0xffffffff:#x}, v{r}")
                interleave(k, M[1:], reads(0), [2, 2, 2])
            else:
                k(*M)
        if kt == 3:
            k("s_waitcnt vmcnt(0)")
            for tt in range(2):
                merge_stats(k, 160+16*tt, 16, 192+4*tt, 194+4*tt)
                k(f"v_mov_b32 v{193+4*tt}, v{192+4*tt}", f"v_mov_b32 v{195+4*tt}, v{194+4*tt}")
        if kt == 5:
            k("s_mul_i32 s32, s29, 12288", "v_and_b32 v25, 31, v1", "v_mul_u32_u24 v25, 40, v25", "v_add_u32 v25, s32, v25", "v_cmp_gt_u32 vcc, 32, v1")
            for ft in range(2):
                for g in range(4):
                    def off(jg): return 7680 if jg == 15 else (jg // 5) * 2560 + (jg % 5) * 8
                    j0 = 8*ft + 2*g
                    k(f"v_mov_b32 v26, {off(j0+1)}", f"v_mov_b32 v27, {off(j0)}", "s_nop 0", "v_cndmask_b32 v26, v26, v27, vcc", f"v_add_u32 v{200+ft*4+g}, v25, v26")
            k("v_lshlrev_b32 v28, 4, v1", "v_add_u32 v208, s32, v28")
            k("s_lshl_b32 s32, s27, 1", "s_add_u32 s32, s32, s30", "s_mul_i32 s32, s32, 81920", "s_lshl_b32 s33, s26, 1", "s_add_u32 s33, s33, s31", "s_mul_i32 s33, s33, 2560", "s_add_u32 s39, s32, s33")
    if st0 is not None: stamp(k, st0+2)
    k("s_barrier")
    k("s_nop 4")
    for tt in range(2):
        for ft in range(2):
            a = 64 + (ft*2+tt)*16; vm = 192 + 4*tt; vr = 194 + 4*tt
            for r in range(0, 16, 2):
                k(f"v_pk_fma_f32 v[{a+r}:{a+r+1}], v[{vm}:{vm+1}], v[{128+ft*16+r}:{129+ft*16+r}], v[{a+r}:{a+r+1}] neg_lo:[1,0,0] neg_hi:[1,0,0]")
                k(f"v_pk_mul_f32 v[{a+r}:{a+r+1}], v[{a+r}:{a+r+1}], v[{vr}:{vr+1}]")
            for g in range(4):
                d = 32 + 2*((ft*4+g) % 8)
                k(f"v_cvt_pk_bf16_f32 v{d}, v{a+4*g}, v{a+4*g+1}", f"v_cvt_pk_bf16_f32 v{d+1}, v{a+4*g+2}, v{a+4*g+3}")
                k(f"ds_write_b64 v{200+ft*4+g}, v[{d}:{d+1}] offset:{tt*1280}")
    k("s_waitcnt lgkmcnt(0)")
    for wh in range(3):
        for n in range(3): k(f"ds_read_b128 v[{64+4*(wh*3+n)}:{67+4*(wh*3+n)}], v208 offset:{wh*2560+n*1024}")
    k("v_cmp_gt_u32 vcc, 32, v1")
    for n in range(2):
        for wh in range(3):
            i = wh*3+n
            k(f"s_add_u32 s33, s39, {wh*32*81920}", "s_waitcnt lgkmcnt(0)", f"buffer_store_dwordx4 v[{64+4*i}:{67+4*i}], v28, s[16:19], s33 offen offset:{n*1024}" + SC)
    k("s_and_saveexec_b64 s[36:37], vcc")
    for wh in range(3):
        i = wh*3+2
        k(f"s_add_u32 s33, s39, {wh*32*81920}", f"buffer_store_dwordx4 v[{64+4*i}:{67+4*i}], v28, s[16:19], s33 offen offset:2048" + SC)
    k("s_mov_b64 exec, s[36:37]")
    k("s_waitcnt vmcnt(0)", "s_barrier")
    if st0 is not None: stamp(k, st0+3)
    k("s_lshl_b32 s32, s26, 4", "s_add_u32 s32, s32, s27", f"s_add_u32 s32, s32, {L*320}")
    signal(k, 32)
    k(f"s_branch {lend}")
    k.lab(lload)
    act_dma_voffs(k)
    k("s_lshl_b32 s34, s28, 12")
    def al(kt):
        st = (kt + R) % NST
        return [f"s_add_u32 m0, s34, {st*AS}", f"s_mov_b32 s35, {kt*128}"] + [f"buffer_load_dwordx4 v{2+j}, s[4:7], s35 offen offset:{j*1024} sc1 lds" for j in range(4)]
    loader_phase(k, NK, wd, al, 1, nxt)
    k.lab(lend)

def ph_attn(k, L, st0=None):
    VB = 20480
    srd(k, 4, f'QKV{L}'); srd(k, 16, f'O{L}')
    k("s_and_b32 s26, s2, 7", "s_lshr_b32 s27, s2, 3")
    k("s_lshr_b32 s32, s29, 2", "s_add_u32 s32, s32, 1", "s_lshl_b32 s32, s32, 5", "s_add_u32 s32, s32, s27", "s_mul_i32 s32, s32, 81920")
    k("s_mul_i32 s33, s26, 10240", "s_add_u32 s32, s32, s33", "s_sub_u32 s32, s32, 10240", "s_mul_i32 s33, s28, 5120", "s_add_u32 s32, s32, s33")
    k("v_lshlrev_b32 v2, 4, v1", "v_add_u32 v2, s32, v2", "v_add_u32 v3, 4096, v2")
    k("s_mul_i32 s34, s29, 5120")
    k("v_and_b32 v20, 31, v1", "s_lshl_b32 s32, s26, 8", "s_lshl_b32 s35, s29, 5", "s_add_u32 s32, s32, s35", "v_add_u32 v4, s32, v20")
    k("v_lshrrev_b32 v6, 5, v1")
    k("s_mul_i32 s33, s27, 81920", "s_mul_i32 s32, s26, 10240", "s_add_u32 s33, s33, s32", "s_lshl_b32 s32, s29, 11", "s_add_u32 s33, s33, s32", "v_lshlrev_b32 v7, 4, v1", "v_add_u32 v7, s33, v7")
    k("s_add_u32 s39, s32, 40960")
    k("v_add_u32 v5, s35, v20", "v_mul_u32_u24 v5, 40, v5", "v_lshl_add_u32 v5, v6, 4, v5", "v_add_u32 v5, 40960, v5")
    k("v_mov_b32 v14, 0", "v_mov_b32 v15, 0")
    k("v_add_u32 v16, s35, v20", "v_mul_u32_u24 v16, 40, v16", "v_lshl_add_u32 v16, v6, 4, v16")
    k("v_lshlrev_b32 v17, 2, v6", "v_bfe_u32 v18, v1, 2, 2", "v_add_u32 v17, v17, v18", "v_add_u32 v17, s35, v17", "v_mul_u32_u24 v17, 40, v17")
    k("v_bfe_u32 v18, v1, 4, 1", "v_lshl_add_u32 v17, v18, 5, v17", "v_and_b32 v18, 3, v1", "v_lshl_add_u32 v17, v18, 3, v17", f"v_add_u32 v17, {VB}, v17")
    k("v_lshlrev_b32 v18, 2, v6", "v_sub_u32 v18, v20, v18")
    def addr(k):
        k("v_and_b32 v24, 3, v1", "s_lshl_b32 s38, s26, 1", "s_sub_u32 s38, s38, 2", "v_add_u32 v24, s38, v24", "v_max_i32 v24, 0, v24")
        k("s_lshr_b32 s38, s27, 1", f"s_add_u32 s38, s38, {L*320}", "v_lshl_add_u32 v24, v24, 4, s38", "v_lshlrev_b32 v24, 7, v24")
    poll(k, addr, 1)
    k("s_barrier")
    if st0 is not None: stamp(k, st0)
    k("s_mov_b32 m0, s34", "s_nop 0")
    for j in range(4): k(f"buffer_load_dwordx4 v2, s[4:7], 0 offen offset:{j*1024} sc1 lds")
    k("s_add_u32 m0, s34, 4096", "s_nop 0", "buffer_load_dwordx4 v3, s[4:7], 0 offen sc1 lds")
    lnq = k.newlab("noq")
    k("s_cmp_ge_u32 s29, 5", f"s_cbranch_scc1 {lnq}")
    k("s_mov_b32 m0, s39", "s_nop 0", "buffer_load_dwordx4 v7, s[4:7], 0 offen sc1 lds", "buffer_load_dwordx4 v7, s[4:7], 0 offen offset:1024 sc1 lds")
    k.lab(lnq)
    k("v_cmp_gt_u32 vcc, 32, v1")
    k("s_waitcnt vmcnt(0)")
    k("s_barrier")
    k("ds_read_b64 v[8:9], v5", "ds_read_b64 v[10:11], v5 offset:8", "ds_read_b64 v[12:13], v5 offset:32")
    if st0 is not None: stamp(k, st0+1)
    S = 64; KF = 24
    def kread(i):
        b = KF + 8*(i & 1)
        for p, o in enumerate((0, 8, 32, 40)):
            k(f"ds_read_b64 v[{b+2*p}:{b+2*p+1}], v16 offset:{i*1280+o}")
    kread(0)
    for i in range(9):
        if i < 8: kread(i+1); k("s_waitcnt lgkmcnt(4)")
        else: k("s_waitcnt lgkmcnt(0)")
        if i == 0: k("v_cndmask_b32 v12, 0, v12, vcc", "v_cndmask_b32 v13, 0, v13, vcc", "s_nop 1")
        b = KF + 8*(i & 1); a = S + 16*i
        k(f"v_mfma_f32_32x32x16_bf16 v[{a}:{a+15}], v[{b}:{b+3}], v[8:11], 0")
        k(f"v_mfma_f32_32x32x16_bf16 v[{a}:{a+15}], v[{b+4}:{b+7}], v[12:15], v[{a}:{a+15}]")
    k("s_nop 7", "s_nop 7")
    k("v_mov_b32 v43, 0xce6e6b28")
    for g in range(4):
        for r in range(4):
            c = 8*g + r
            k(f"v_cmp_le_i32 vcc, {c}, v18", "s_nop 1")
            k(f"v_cndmask_b32 v{S+128+4*g+r}, v43, v{S+128+4*g+r}, vcc", f"v_cndmask_b32 v{S+4*g+r}, v{S+4*g+r}, v43, vcc")
    lq = k.newlab("q0")
    k("s_cmp_lg_u32 s26, 0", f"s_cbranch_scc1 {lq}")
    for i in range(8):
        ls = k.newlab("sk")
        k(f"s_add_u32 s32, s29, {i}", "s_cmp_ge_u32 s32, 8", f"s_cbranch_scc1 {ls}")
        for r in range(16): k(f"v_mov_b32 v{S+16*i+r}, v43")
        k.lab(ls)
    k.lab(lq)
    k(f"v_max3_f32 v44, v{S}, v{S+1}, v{S+2}", f"v_max3_f32 v45, v{S+3}, v{S+4}, v{S+5}")
    for n, r in enumerate(range(S+6, S+144, 2)): k(f"v_max3_f32 v{44+(n&1)}, v{44+(n&1)}, v{r}, v{r+1}")
    k("v_max_f32 v44, v44, v45")
    k("v_mov_b32 v45, v44", "s_nop 1", "v_permlane32_swap_b32 v44, v45", "v_max_f32 v44, v44, v45")
    cc = struct.unpack('<I', struct.pack('<f', 1.4426950408889634 * struct.unpack('<f', struct.pack('<I', 0x3e64f92e))[0]))[0]
    k(f"v_mov_b32 v40, {cc:#x}", f"v_mov_b32 v41, {cc:#x}", "v_mul_f32 v44, v44, v40", "v_sub_f32 v44, 0, v44", "v_mov_b32 v45, v44", "v_mov_b32 v46, 0", "v_mov_b32 v47, 0")
    for i in range(9):
        for q in range(8):
            r = S + 16*i + 2*q
            k(f"v_pk_fma_f32 v[{r}:{r+1}], v[{r}:{r+1}], v[40:41], v[44:45]")
            k(f"v_exp_f32 v{r}, v{r}", f"v_exp_f32 v{r+1}, v{r+1}")
            if (i, q) != (0, 0):
                pr = r - 2 if q else S + 16*(i-1) + 14; pq = (S + 16*i + q - 1) if q else (S + 16*(i-1) + 7)
                k(f"v_pk_add_f32 v[46:47], v[46:47], v[{pr}:{pr+1}]", f"v_cvt_pk_bf16_f32 v{pq}, v{pr}, v{pr+1}")
    k("s_nop 0", f"v_pk_add_f32 v[46:47], v[46:47], v[{S+142}:{S+143}]", f"v_cvt_pk_bf16_f32 v{S+128+7}, v{S+142}, v{S+143}")
    k("v_add_f32 v46, v46, v47", "v_mov_b32 v47, v46", "s_nop 1", "v_permlane32_swap_b32 v46, v47", "v_add_f32 v46, v46, v47")
    k("v_rcp_f32 v46, v46", "s_nop 0", "v_mov_b32 v47, v46")
    OA = 208; VF = 24
    def vread(i):
        b = VF + 8*(i & 1)
        for m in range(2):
            for r in range(2):
                k(f"ds_read_b64_tr_b16 v[{b+4*m+2*r}:{b+4*m+2*r+1}], v17 offset:{(32*i+16*m+8*r)*40}")
    vread(0)
    for i in range(9):
        if i < 8: vread(i+1); k("s_waitcnt lgkmcnt(4)")
        else: k("s_waitcnt lgkmcnt(0)")
        b = VF + 8*(i & 1); p = S + 16*i
        for m in range(2):
            c = "0" if (i == 0 and m == 0) else f"v[{OA}:{OA+15}]"
            k(f"v_mfma_f32_32x32x16_bf16 v[{OA}:{OA+15}], v[{b+4*m}:{b+4*m+3}], v[{p+4*m}:{p+4*m+3}], {c}")
    if st0 is not None: stamp(k, st0+2)
    k("s_mul_i32 s32, s29, 1536", "s_add_u32 s32, s32, 51328", "v_mul_u32_u24 v5, 48, v20", "v_lshl_add_u32 v5, v6, 3, v5", "v_add_u32 v5, s32, v5")
    k("v_lshlrev_b32 v7, 4, v1", "v_add_u32 v2, s32, v7")
    k("s_mul_i32 s33, s27, 98304", "s_lshl_b32 s32, s26, 8", "s_add_u32 s32, s32, s35", "s_mul_i32 s32, s32, 48", "s_add_u32 s33, s33, s32")
    k("v_cmp_gt_u32 vcc, 32, v1")
    k("s_nop 7", "s_nop 4")
    for g in range(3):
        k(f"v_pk_mul_f32 v[{OA+4*g}:{OA+4*g+1}], v[{OA+4*g}:{OA+4*g+1}], v[46:47]", f"v_pk_mul_f32 v[{OA+4*g+2}:{OA+4*g+3}], v[{OA+4*g+2}:{OA+4*g+3}], v[46:47]")
        k(f"v_cvt_pk_bf16_f32 v{40+2*g}, v{OA+4*g}, v{OA+4*g+1}", f"v_cvt_pk_bf16_f32 v{41+2*g}, v{OA+4*g+2}, v{OA+4*g+3}")
    k("v_cndmask_b32 v44, 0, v44, vcc", "v_cndmask_b32 v45, 0, v45, vcc")
    for g in range(3): k(f"ds_write_b64 v5, v[{40+2*g}:{41+2*g}] offset:{16*g}")
    k("s_waitcnt lgkmcnt(0)", "ds_read_b128 v[48:51], v2", "ds_read_b128 v[52:55], v2 offset:1024")
    k("s_waitcnt lgkmcnt(1)", "buffer_store_dwordx4 v[48:51], v7, s[16:19], s33 offen")
    k("s_and_saveexec_b64 s[36:37], vcc", "s_waitcnt lgkmcnt(0)", "buffer_store_dwordx4 v[52:55], v7, s[16:19], s33 offen offset:1024")
    k("s_mov_b64 exec, s[36:37]")
    k("s_waitcnt vmcnt(0)", "s_barrier")
    if st0 is not None: stamp(k, st0+3)
    k(f"s_add_u32 s32, s26, {L*320+256}")
    fsignal(k, 32, 27)

def ph_glu(k, L, wd, nxt, st0=None):
    NK = 10; NST = 4; R = wd.r
    lload = k.newlab("loader"); lend = k.newlab("end")
    xcd_map16(k)
    srd(k, 4, f'XA{L}'); srd(k, 16, f'H{L}'); srd(k, 20, f'STA{L}'); srd(k, 68, 'CS')
    k("s_cmp_ge_u32 s29, 4", f"s_cbranch_scc1 {lload}")
    FB = 32; AC = 88; STV = 184; CSV = 188
    k("v_and_b32 v25, 31, v1", "s_lshl_b32 s32, s26, 7", "s_lshl_b32 s33, s29, 5", "s_add_u32 s32, s32, s33", "v_add_u32 v28, s32, v25", "v_lshlrev_b32 v29, 6, v28")
    k("v_lshrrev_b32 v30, 5, v1", "v_lshlrev_b32 v30, 4, v30", "s_mul_i32 s32, s27, 384", "s_add_u32 s32, s32, 8192", "v_add_u32 v30, s32, v30")
    k("s_lshl_b32 s32, s29, 5", "v_add_u32 v26, s32, v25", "v_lshlrev_b32 v26, 7, v26")
    k("v_lshrrev_b32 v25, 1, v25", "v_and_b32 v25, 7, v25", "v_lshrrev_b32 v27, 5, v1", "v_xor_b32 v25, v25, v27")
    for s in range(4):
        k(f"v_xor_b32 v27, {2*s}, v25", f"v_lshl_add_u32 v{10+s}, v27, 4, v26", f"v_add_u32 v{10+s}, {R*AS}, v{10+s}")
    k("v_lshrrev_b32 v25, 5, v1", "v_lshlrev_b32 v25, 3, v25", "v_bfe_u32 v26, v1, 2, 2", "v_add_u32 v25, v25, v26", "v_mul_u32_u24 v25, 192, v25")
    k("v_bfe_u32 v27, v1, 4, 1", "v_lshl_add_u32 v25, v27, 5, v25", "v_and_b32 v27, 3, v1", "v_lshl_add_u32 v25, v27, 3, v25", f"v_add_u32 v14, {WB + R*WSL}, v25")
    for i in range(AC, AC+96): k(f"v_mov_b32 v{i}, 0")
    def cs_load(t, dst):
        mtx, ft = divmod(t, 3)
        for g in range(4): k(f"buffer_load_dwordx4 v[{dst+4*g}:{dst+4*g+3}], v{30+mtx}, s[68:71], 0 offen offset:{ft*128+g*32}")
    k("v_add_u32 v31, 6144, v30")
    poll(k, fpoll_addr(lambda k: k(f's_add_u32 s38, s26, {L*320+264}'), 16), 1)
    k("s_barrier")
    cs_load(0, CSV); cs_load(3, CSV+16); cs_load(1, CSV+32)
    if st0 is not None: stamp(k, st0)
    for i in range(4): k(f"buffer_load_dwordx4 v[{CSV+48+4*i}:{CSV+51+4*i}], v29, s[20:23], 0 offen offset:{16*i}" + SC)
    def reads(s):
        fb = FB + 28 * (s & 1); Ls = [f"ds_read_b128 v[{fb}:{fb+3}], v{10+s}"]
        for t in range(6):
            mtx, ft = divmod(t, 3)
            for r in range(2):
                Ls.append(f"ds_read_b64_tr_b16 v[{fb+4+4*t+2*r}:{fb+5+4*t+2*r}], v14 offset:{mtx*12288 + (16*s+4*r)*192 + ft*64}")
        return Ls
    def mfmas(s):
        fb = FB + 28 * (s & 1)
        return [f"v_mfma_f32_32x32x16_bf16 v[{AC+16*t}:{AC+16*t+15}], v[{fb+4+4*t}:{fb+7+4*t}], v[{fb}:{fb+3}], v[{AC+16*t}:{AC+16*t+15}]" for t in range(6)]
    k("s_barrier")
    if st0 is not None: stamp(k, st0+1)
    k(*reads(0))
    for kt in range(NK):
        for s in range(4):
            k("s_waitcnt lgkmcnt(0)")
            M = mfmas(s)
            if s < 3:
                interleave(k, M, reads(s+1), [3, 3, 3, 2, 2, 0])
            elif kt + 1 < NK:
                k(M[0], "s_barrier")
                wrap = (kt + 1 + R) % NST == 0
                for r in range(10, 14): k(f"v_add_u32 v{r}, {(-3*AS if wrap else AS) & 0xffffffff:#x}, v{r}")
                k(f"v_add_u32 v14, {(-3*WSL if wrap else WSL) & 0xffffffff:#x}, v14")
                interleave(k, M[1:], reads(0), [3, 3, 3, 2, 2])
            else:
                k(*M)
        if kt == 3:
            k("s_waitcnt vmcnt(0)")
            merge_stats(k, CSV+48, 16, STV, STV+2)
            k(f"v_mov_b32 v{STV+1}, v{STV}", f"v_mov_b32 v{STV+3}, v{STV+2}")
            cs_load(4, CSV+48)
    if st0 is not None: stamp(k, st0+2)
    cs_load(2, FB)
    k("s_barrier")
    if st0 is not None and FINE: stamp(k, 12)
    cs_load(5, FB+28)
    k("s_mul_i32 s32, s29, 6656")
    k("v_and_b32 v25, 31, v1", "v_mul_u32_u24 v25, 208, v25", "v_lshrrev_b32 v26, 5, v1", "v_lshl_add_u32 v25, v26, 3, v25", "v_add_u32 v25, s32, v25")
    k("s_lshl_b32 s33, s26, 7", "s_lshl_b32 s38, s29, 5", "s_add_u32 s33, s33, s38", "s_mul_i32 s38, s27, 192", "s_mov_b32 s39, 43691")
    k("v_mov_b32 v16, 0xbfb8aa3b", "v_mov_b32 v17, 0xbfb8aa3b", "v_mov_b32 v18, 1.0", "v_mov_b32 v19, 1.0")
    csreg = {0: CSV, 3: CSV+16, 1: CSV+32, 4: CSV+48, 2: FB, 5: FB+28}
    for ft in range(3):
        if ft == 0: k("s_waitcnt vmcnt(8)")
        if ft == 2: k("s_waitcnt vmcnt(0)")
        ag = AC + 16*ft; au = AC + 16*(3+ft); cg = csreg[ft]; cu = csreg[3+ft]
        for r in range(0, 16, 2):
            k(f"v_pk_fma_f32 v[{ag+r}:{ag+r+1}], v[{STV}:{STV+1}], v[{cg+r}:{cg+r+1}], v[{ag+r}:{ag+r+1}] neg_lo:[1,0,0] neg_hi:[1,0,0]")
            k(f"v_pk_fma_f32 v[{au+r}:{au+r+1}], v[{STV}:{STV+1}], v[{cu+r}:{cu+r+1}], v[{au+r}:{au+r+1}] neg_lo:[1,0,0] neg_hi:[1,0,0]")
            k(f"v_pk_mul_f32 v[{ag+r}:{ag+r+1}], v[{ag+r}:{ag+r+1}], v[{STV+2}:{STV+3}]")
            k(f"v_pk_mul_f32 v[{au+r}:{au+r+1}], v[{au+r}:{au+r+1}], v[{STV+2}:{STV+3}]")
            k(f"v_cvt_pk_bf16_f32 v20, v{ag+r}, v{ag+r+1}", f"v_cvt_pk_bf16_f32 v21, v{au+r}, v{au+r+1}")
            k(f"v_lshlrev_b32 v{ag+r}, 16, v20", f"v_and_b32 v{ag+r+1}, 0xffff0000, v20", f"v_lshlrev_b32 v{au+r}, 16, v21", f"v_and_b32 v{au+r+1}, 0xffff0000, v21")
            k(f"v_pk_mul_f32 v[{ag+r}:{ag+r+1}], v[{ag+r}:{ag+r+1}], v[16:17]")
            k(f"v_exp_f32 v{ag+r}, v{ag+r}", f"v_exp_f32 v{ag+r+1}, v{ag+r+1}", "s_nop 0")
            k(f"v_pk_add_f32 v[{ag+r}:{ag+r+1}], v[{ag+r}:{ag+r+1}], v[18:19]")
            k(f"v_rcp_f32 v{ag+r}, v{ag+r}", f"v_rcp_f32 v{ag+r+1}, v{ag+r+1}", "s_nop 0")
            k(f"v_cvt_pk_bf16_f32 v20, v{ag+r}, v{ag+r+1}")
            k(f"v_lshlrev_b32 v{ag+r}, 16, v20", f"v_and_b32 v{ag+r+1}, 0xffff0000, v20")
            k(f"v_pk_mul_f32 v[{ag+r}:{ag+r+1}], v[{ag+r}:{ag+r+1}], v[{au+r}:{au+r+1}]")
        for g in range(4):
            d = 2 + 2*(g & 3)
            k(f"v_cvt_pk_bf16_f32 v{d}, v{ag+4*g}, v{ag+4*g+1}", f"v_cvt_pk_bf16_f32 v{d+1}, v{ag+4*g+2}, v{ag+4*g+3}")
            k(f"ds_write_b64 v25, v[{d}:{d+1}] offset:{ft*64 + g*16}")
    for n in range(6):
        k(f"v_add_u32 v26, {64*n}, v1", "v_mul_lo_u32 v27, v26, s39", "v_lshrrev_b32 v27, 19, v27", "v_mul_u32_u24 v28, 12, v27", "v_sub_u32 v28, v26, v28",
          "v_mul_u32_u24 v26, 208, v27", "v_lshl_add_u32 v26, v28, 4, v26", f"v_add_u32 v{FB+n}, s32, v26",
          "v_add_u32 v27, s33, v27", "v_mul_u32_u24 v27, 3072, v27", "v_lshl_add_u32 v27, v28, 4, v27", f"v_add_u32 v{FB+8+n}, s38, v27")
    if st0 is not None and FINE: stamp(k, 9)
    k("s_waitcnt lgkmcnt(0)")
    for n in range(6): k(f"ds_read_b128 v[{AC+4*n}:{AC+4*n+3}], v{FB+n}")
    for n in range(6): k(f"s_waitcnt lgkmcnt({5-n})", f"buffer_store_dwordx4 v[{AC+4*n}:{AC+4*n+3}], v{FB+8+n}, s[16:19], 0 offen")
    if st0 is not None and FINE: stamp(k, 10)
    k("s_waitcnt vmcnt(0)")
    if st0 is not None and FINE: stamp(k, 11)
    k("s_barrier")
    if st0 is not None: stamp(k, st0+3)
    k(f"s_add_u32 s32, s26, {L*320+280}")
    fsignal(k, 32, 27)
    k(f"s_branch {lend}")
    k.lab(lload)
    act_dma_voffs(k)
    k("s_lshl_b32 s34, s28, 12")
    def al(kt):
        st = (kt + R) % NST
        return [f"s_add_u32 m0, s34, {st*AS}", f"s_mov_b32 s35, {kt*128}"] + [f"buffer_load_dwordx4 v{2+j}, s[4:7], s35 offen offset:{j*1024} sc1 lds" for j in range(4)]
    loader_phase(k, NK, wd, al, 1, nxt)
    k.lab(lend)

def ph_out(k, L, kind, wd, nxt, st0=None):
    R = wd.r
    if kind == 'w':
        asrc, KK, wsrc, rsrc, dst, stdst = f'O{L}', 768, 'WO', ('x' if L == 0 else 'XB'), f'XA{L}', f'STA{L}'
    else:
        asrc, KK, wsrc, rsrc, dst, stdst = f'H{L}', 1536, 'WD', f'XA{L}', ('XB' if L == 0 else 'out'), ('STB' if L == 0 else None)
    NK = KK // 128; NST = 4; AP = KK * 2
    lload = k.newlab("loader"); lend = k.newlab("end")
    k("s_and_b32 s24, s2, 7", "s_lshr_b32 s25, s2, 3", "s_lshl_b32 s26, s24, 2", "s_and_b32 s27, s25, 3", "s_add_u32 s26, s26, s27", "s_lshr_b32 s27, s25, 2")
    srd(k, 4, asrc); srd(k, 12, rsrc); srd(k, 16, dst)
    if stdst: srd(k, 20, stdst)
    k("s_cmp_ge_u32 s29, 4", f"s_cbranch_scc1 {lload}")
    FB = 32; AC = 104; RS = 184
    k("v_and_b32 v25, 15, v1", "v_lshrrev_b32 v26, 4, v1", "s_lshl_b32 s32, s29, 2", "v_add_u32 v26, s32, v26", "v_xor_b32 v26, v26, v25", "v_lshlrev_b32 v26, 4, v26", "v_lshl_add_u32 v10, v25, 8, v26", f"v_add_u32 v10, {R*AS}, v10")
    k("v_lshrrev_b32 v26, 4, v1", "v_lshlrev_b32 v26, 3, v26", "v_bfe_u32 v27, v1, 2, 2", "v_add_u32 v26, v26, v27", "s_lshl_b32 s32, s29, 5", "v_add_u32 v26, s32, v26", "v_mul_u32_u24 v26, 160, v26")
    k("v_and_b32 v27, 3, v1", "v_lshl_add_u32 v26, v27, 3, v26", f"v_add_u32 v11, {WB + R*WSL}, v26")
    k("s_lshl_b32 s32, s26, 6", "s_lshl_b32 s33, s29, 4", "s_add_u32 s32, s32, s33", "v_add_u32 v28, s32, v25", "v_mul_u32_u24 v29, 1280, v28")
    k("v_lshrrev_b32 v26, 4, v1", "v_lshl_add_u32 v29, v26, 3, v29", "s_mul_i32 s32, s27, 160", "v_add_u32 v29, s32, v29")
    for i in range(AC, AC+80): k(f"v_mov_b32 v{i}, 0")
    k("s_mul_i32 s32, s29, 15360", "s_nop 0", "v_mul_u32_u24 v30, 160, v25", "v_lshrrev_b32 v26, 4, v1", "v_lshl_add_u32 v30, v26, 3, v30", "v_add_u32 v30, s32, v30")
    k("v_lshlrev_b32 v31, 4, v1", "v_add_u32 v31, s32, v31")
    k("s_lshl_b32 s32, s26, 6", "s_lshl_b32 s33, s29, 4", "s_add_u32 s32, s32, s33", "s_mul_i32 s33, s27, 160", "s_mov_b32 s38, 52429")
    for n in range(3):
        k(f"v_add_u32 v26, {64*n}, v1", "v_mul_lo_u32 v27, v26, s38", "v_lshrrev_b32 v27, 19, v27", "v_mul_u32_u24 v24, 10, v27", "v_sub_u32 v24, v26, v24",
          "v_add_u32 v27, s32, v27", "v_mul_u32_u24 v27, 1280, v27", "v_lshl_add_u32 v27, v24, 4, v27", f"v_add_u32 v{12+n}, s33, v27")
    if kind == 'w':
        poll(k, fpoll_addr(lambda k: k("s_lshr_b32 s38, s26, 2", f"s_add_u32 s38, s38, {L*320+256}"), 32), 1)
    else:
        poll(k, fpoll_addr(lambda k: k("s_lshr_b32 s38, s26, 1", f"s_add_u32 s38, s38, {L*320+280}"), 16), 1)
    k("s_barrier")
    if st0 is not None: stamp(k, st0)
    for ft in range(5): k(f"buffer_load_dwordx2 v[{RS+2*ft}:{RS+2*ft+1}], v29, s[12:15], 0 offen offset:{ft*32}" + SC)
    def reads(p):
        fb = FB + 36 * p; Ls = []
        for tt in range(4): Ls.append(f"ds_read_b128 v[{fb+4*tt}:{fb+4*tt+3}], v10 offset:{tt*4096}")
        for ft in range(5):
            for r in range(2): Ls.append(f"ds_read_b64_tr_b16 v[{fb+16+4*ft+2*r}:{fb+17+4*ft+2*r}], v11 offset:{4*r*160 + ft*32}")
        return Ls
    def mfmas(p):
        fb = FB + 36 * p; Ls = []
        for ft in range(5):
            for tt in range(4):
                a = AC + (ft*4+tt)*4
                Ls.append(f"v_mfma_f32_16x16x32_bf16 v[{a}:{a+3}], v[{fb+16+4*ft}:{fb+19+4*ft}], v[{fb+4*tt}:{fb+4*tt+3}], v[{a}:{a+3}]")
        return Ls
    k("s_barrier")
    if st0 is not None: stamp(k, st0+1)
    k(*reads(0))
    for kt in range(NK):
        k("s_waitcnt lgkmcnt(0)")
        M = mfmas(kt & 1)
        if kt + 1 < NK:
            k(M[0], "s_barrier")
            wrap = (kt + 1 + R) % NST == 0
            k(f"v_add_u32 v10, {(-3*AS if wrap else AS) & 0xffffffff:#x}, v10", f"v_add_u32 v11, {(-3*WSL if wrap else WSL) & 0xffffffff:#x}, v11")
            interleave(k, M[1:], reads((kt+1) & 1), [1]*14 + [0]*5)
        else:
            k(*M)
    if st0 is not None: stamp(k, st0+2)
    k("s_barrier")
    k("v_lshlrev_b32 v25, 4, v1", "s_mul_i32 s32, s29, 15360", "v_add_u32 v27, s32, v25")
    k("s_nop 7")
    for tt in range(4):
        lw = k.newlab("rw")
        k(f"s_cmp_eq_u32 s29, {tt}", f"s_cbranch_scc1 {lw}")
        k(f"s_sub_u32 s32, s29, {tt+1}", "s_and_b32 s32, s32, 3", "s_mul_i32 s32, s32, 5120", f"s_add_u32 s32, s32, {tt*15360}", "v_add_u32 v26, s32, v25")
        for ft in range(5):
            a_ = AC + (ft*4+tt)*4
            k(f"ds_write_b128 v26, v[{a_}:{a_+3}] offset:{ft*1024}")
        k.lab(lw)
    k("s_waitcnt lgkmcnt(0)", "s_barrier")
    le = k.newlab("e"); labs = [k.newlab("own") for _ in range(4)]
    for tt in range(4): k(f"s_cmp_eq_u32 s29, {tt}", f"s_cbranch_scc1 {labs[tt]}")
    for tt in range(4):
        k.lab(labs[tt])
        for ft in range(5):
            for r in range(4): k(f"v_mov_b32 v{FB+4*ft+r}, v{AC+(ft*4+tt)*4+r}")
        k(f"s_branch {le}")
    k.lab(le)
    for n in range(15): k(f"ds_read_b128 v[{AC+4*n}:{AC+4*n+3}], v27 offset:{n*1024}")
    k("s_waitcnt lgkmcnt(0) vmcnt(0)")
    for sidx in range(3):
        for ft in range(5):
            for r in range(0, 4, 2):
                k(f"v_pk_add_f32 v[{FB+4*ft+r}:{FB+4*ft+r+1}], v[{FB+4*ft+r}:{FB+4*ft+r+1}], v[{AC+4*(sidx*5+ft)+r}:{AC+4*(sidx*5+ft)+r+1}]")
    for ft in range(5):
        for p in range(2):
            a = FB + 4*ft + 2*p; x = RS + 2*ft + p
            k(f"v_cvt_pk_bf16_f32 v20, v{a}, v{a+1}", f"v_lshlrev_b32 v{a}, 16, v20", f"v_and_b32 v{a+1}, 0xffff0000, v20")
            k(f"v_lshlrev_b32 v21, 16, v{x}", f"v_and_b32 v22, 0xffff0000, v{x}", f"v_add_f32 v{a}, v{a}, v21", f"v_add_f32 v{a+1}, v{a+1}, v22")
            k(f"v_cvt_pk_bf16_f32 v{x}, v{a}, v{a+1}")
            if stdst: k(f"v_lshlrev_b32 v{a}, 16, v{x}", f"v_and_b32 v{a+1}, 0xffff0000, v{x}")
        k(f"ds_write_b64 v30, v[{RS+2*ft}:{RS+2*ft+1}] offset:{ft*32}")
    k("s_waitcnt lgkmcnt(0)")
    for n in range(3): k(f"ds_read_b128 v[{AC+4*n}:{AC+4*n+3}], v31 offset:{n*1024}")
    k("v_cmp_gt_u32 vcc, 32, v1")
    for n in range(3):
        if n == 2: k("s_and_saveexec_b64 s[36:37], vcc")
        k(f"s_waitcnt lgkmcnt({2-n})", f"buffer_store_dwordx4 v[{AC+4*n}:{AC+4*n+3}], v{12+n}, s[16:19], 0 offen")
    k("s_mov_b64 exec, s[36:37]")
    if stdst:
        def xsum(v, t):
            k(f"v_mov_b32 v{t}, v{v}", "s_nop 1", f"v_permlane16_swap_b32 v{v}, v{t}", f"v_add_f32 v{v}, v{v}, v{t}")
            k(f"v_mov_b32 v{t}, v{v}", "s_nop 1", f"v_permlane32_swap_b32 v{v}, v{t}", f"v_add_f32 v{v}, v{v}, v{t}")
        k(f"v_add_f32 v20, v{FB}, v{FB+1}")
        for i in range(2, 20): k(f"v_add_f32 v20, v20, v{FB+i}")
        xsum(20, 22)
        k("v_mul_f32 v23, 0x3c4ccccd, v20", "v_mov_b32 v21, 0")
        for i in range(20): k(f"v_sub_f32 v22, v{FB+i}, v23", "v_fmac_f32 v21, v22, v22")
        xsum(21, 22)
        k("v_lshlrev_b32 v28, 6, v28", "s_lshl_b32 s32, s27, 3", "v_add_u32 v28, s32, v28")
        k("v_cmp_gt_u32 vcc, 16, v1", "s_and_saveexec_b64 s[36:37], vcc")
        k("buffer_store_dwordx2 v[20:21], v28, s[20:23], 0 offen")
        k("s_mov_b64 exec, s[36:37]")
    k("s_waitcnt vmcnt(0)", "s_barrier")
    if st0 is not None: stamp(k, st0+3)
    if stdst:
        k("s_lshr_b32 s32, s26, 1", f"s_add_u32 s32, s32, {L*320 + (264 if kind == 'w' else 296)}")
        k("s_and_b32 s33, s26, 1", "s_lshl_b32 s33, s33, 3", "s_add_u32 s33, s33, s27")
        fsignal(k, 32, 33)
    k(f"s_branch {lend}")
    k.lab(lload)
    k("s_lshl_b32 s32, s26, 6", "s_lshl_b32 s33, s28, 4", "s_add_u32 s32, s32, s33", "v_lshrrev_b32 v25, 4, v1", "v_and_b32 v26, 15, v1", f"s_mov_b32 s33, {AP}")
    for jj in range(4):
        if kind == 'w':
            k(f"v_add_u32 v27, {4*jj}, v25", f"v_xor_b32 v{12+jj}, v26, v27", "v_add_u32 v27, s32, v27", f"v_mul_u32_u24 v{16+jj}, 48, v27")
        else:
            k(f"v_add_u32 v27, {4*jj}, v25", "v_xor_b32 v28, v26, v27", "v_add_u32 v27, s32, v27", "v_mul_lo_u32 v27, v27, s33", "v_lshl_add_u32 v27, v28, 4, v27", f"v_subrev_u32 v{2+jj}, {jj*1024}, v27")
    k("s_mov_b32 s39, 98304")
    k("s_lshl_b32 s34, s28, 12")
    def al(kt):
        st = (kt + R) % NST
        if kind == 'w':
            Ls = []
            for j in range(4):
                Ls += [f"s_add_u32 m0, s34, {st*AS + j*1024}"]
                Ls += [f"v_add_u32 v25, {16*kt}, v{12+j}", "v_mul_u32_u24 v26, 171, v25", "v_lshrrev_b32 v26, 9, v26", "v_mul_u32_u24 v27, 3, v26", "v_sub_u32 v27, v25, v27",
                       "v_mul_lo_u32 v26, v26, s39", "v_lshl_add_u32 v26, v27, 4, v26", f"v_add_u32 v{2+j}, v26, v{16+j}",
                       f"buffer_load_dwordx4 v{2+j}, s[4:7], 0 offen sc1 lds"]
            return Ls
        return [f"s_add_u32 m0, s34, {st*AS}", f"s_mov_b32 s35, {kt*256}"] + [f"buffer_load_dwordx4 v{2+j}, s[4:7], s35 offen offset:{j*1024} sc1 lds" for j in range(4)]
    loader_phase(k, NK, wd, al, 2, nxt)
    k.lab(lend)

def stamps_out2(k, n, wg):
    assert n <= 14
    if RT:
        lab = k.newlab("nost")
        k("s_waitcnt lgkmcnt(0)", "s_cmp_lg_u32 s29, 0", f"s_cbranch_scc1 {lab}")
        srd(k, 72, 'DBG')
        k("s_lshl_b32 s38, s2, 6", "v_mov_b32 v1, s38")
        for i in range(n):
            k(f"v_mov_b32 v2, s{40+2*i}", f"buffer_store_dword v2, v1, s[72:75], 0 offen offset:{4*i}")
        k.lab(lab)
        return
    lab = k.newlab("nost")
    k("s_waitcnt lgkmcnt(0)")
    k(f"s_cmp_lg_u32 s2, {wg}", f"s_cbranch_scc1 {lab}")
    k("s_cmp_lg_u32 s29, 0", f"s_cbranch_scc1 {lab}")
    k("s_load_dwordx2 s[72:73], s[0:1], 64", "s_waitcnt lgkmcnt(0)")
    k("s_and_b32 s73, s73, 0xffff", "s_mov_b32 s74, 256", "s_mov_b32 s75, 0x00020000")
    k("v_mov_b32 v1, 0")
    for i in range(n):
        k(f"s_sub_u32 s{41+2*i}, s{40+2*i}, s40")
        k(f"v_mov_b32 v2, s{41+2*i}")
        k(f"buffer_store_dword v2, v1, s[72:75], 0 offen offset:{4*i}")
    k.lab(lab)

def gen_mega(name, nph=10, stamps=None):
    k = K(name, 256, 512, 163840, sgpr=100)
    done = k.newlab("done")
    k("s_load_dwordx2 s[84:85], s[0:1], 72", "s_load_dwordx2 s[86:87], s[0:1], 0", "s_load_dwordx2 s[88:89], s[0:1], 56")
    k("s_cmp_ge_u32 s2, 256", f"s_cbranch_scc1 {done}")
    k("v_and_b32 v1, 63, v0", "v_lshrrev_b32 v25, 6, v0", "s_nop 0", "v_readfirstlane_b32 s29, v25", "s_nop 3", "s_and_b32 s28, s29, 3")
    k("s_waitcnt lgkmcnt(0)")
    srd(k, 92, "CNT")
    lns = k.newlab("noslot")
    k("s_getreg_b32 s24, hwreg(HW_REG_XCC_ID)", "s_and_b32 s24, s24, 7")
    k("s_cmp_lg_u32 s29, 0", f"s_cbranch_scc1 {lns}")
    k("s_add_u32 s38, s24, 632", "s_lshl_b32 s38, s38, 7", "v_mov_b32 v24, s38", "v_mov_b32 v23, 1", "v_mov_b32 v22, 0")
    k("s_mov_b64 s[36:37], exec", "s_mov_b64 exec, 1")
    k("buffer_atomic_add v23, v24, s[92:95], 0 offen sc0 sc1", "s_waitcnt vmcnt(0)", "ds_write_b32 v22, v23", "s_waitcnt lgkmcnt(0)")
    k("s_mov_b64 exec, s[36:37]")
    k.lab(lns)
    k("s_barrier", "v_mov_b32 v22, 0", "ds_read_b32 v23, v22", "s_waitcnt lgkmcnt(0)", "v_readfirstlane_b32 s2, v23", "s_nop 3", "s_and_b32 s2, s2, 31", "s_lshl_b32 s2, s2, 3", "s_add_u32 s2, s2, s24", "s_barrier")
    if stamps is not None: stamp(k, 0)
    seq = [(L, kind) for L in range(2) for kind in 'qawgd']
    wds = {}; r = 0
    for (L, kind) in seq:
        if kind == 'a': continue
        wds[(L, kind)] = WDesc(kind, r); r = (r + {'q': 10, 'g': 10, 'w': 6, 'd': 12}[kind]) % 4
    gl = [x for x in seq if x[1] != 'a']
    l0 = k.newlab("w0")
    k("s_cmp_lt_u32 s29, 4", f"s_cbranch_scc1 {l0}")
    wds[gl[0]].setup(k)
    for kt in range(4): k(*wds[gl[0]].wl(kt))
    k.lab(l0)
    for ph, (L, kind) in enumerate(seq):
        st0 = (1 + 4*stamps.index(ph)) if (stamps is not None and ph in stamps) else None
        if kind == 'a':
            ph_attn(k, L, st0); continue
        wd = wds[(L, kind)]; gi = gl.index((L, kind)); nxt = wds[gl[gi+1]] if gi + 1 < len(gl) else None
        if kind == 'q': ph_qkv(k, L, 'x' if L == 0 else 'XB', 'STX' if L == 0 else 'STB', wd, nxt, st0)
        elif kind == 'g': ph_glu(k, L, wd, nxt, st0)
        else: ph_out(k, L, kind, wd, nxt, st0)
    if stamps is not None: stamps_out2(k, 13 if FINE else 1 + 4*len(stamps), 17)
    k.lab(done)
    k("s_endpgm")
    return k

def gen_prep2(name):
    k = gen.gen_prep(name)
    i = k.L.index("    buffer_store_dwordx2 v[4:5], v1, s[20:23], 0 offen")
    extra = ["s_load_dwordx2 s[64:65], s[0:1], 72", "s_waitcnt lgkmcnt(0)", f"s_add_u32 s64, s64, {WS['CNT']:#x}", "s_addc_u32 s65, s65, 0", "s_and_b32 s65, s65, 0xffff",
             f"s_mov_b32 s66, {SZ['CNT']}", "s_mov_b32 s67, 0x00020000", "v_lshlrev_b32 v1, 1, v1", "v_mov_b32 v4, 0", "v_mov_b32 v5, 0", "v_mov_b32 v6, 0", "v_mov_b32 v7, 0", "s_nop 1",
             "buffer_store_dwordx4 v[4:7], v1, s[64:67], 0 offen"]
    k.L[i+1:i+1] = ["    " + e for e in extra]
    return k

if __name__ == "__main__":
    prep = gen_prep2("prep_kernel")
    if len(sys.argv) > 1:
        st = [int(x) for x in sys.argv[1].split(",")]
        m = gen_mega("mega_kernel", 10, st)
        build([prep, m], [prep, m], "mb.s")
    else:
        m = gen_mega("mega_kernel")
        build([prep, m], [prep, m], "interleave_layers__sliding_block__glu_gated_glu__prompt.s")
```

```python
import json, sys, struct
sys.path.insert(0, 'dev')
import gen
from gen import K, KA, INSZ, interleave, merge_stats, rne_bf16, stamp, build, ptr_loads, ptr_srds

MB = 0x100000
WS = dict(QKV0=0, QKV1=8*MB, O0=16*MB, O1=19*MB+0x80000, XA0=23*MB, XA1=25*MB+0x80000, XB=28*MB+0x40000, H0=31*MB, H1=38*MB,
          STX=45*MB, STA0=45*MB+0x40000, STA1=45*MB+0x80000, STB=45*MB+0xC0000, CS=46*MB, CNT=46*MB+0x40000,
          WQ=47*MB, WGU=50*MB, WO=54*MB, WD=55*MB)
SZ = dict(QKV0=2048*1920*2, QKV1=2048*1920*2, O0=32*2048*48, O1=32*2048*48, XA0=2048*1280, XA1=2048*1280, XB=2048*1280, H0=2048*3072, H1=2048*3072,
          STX=2048*64, STA0=2048*64, STA1=2048*64, STB=2048*64, CS=5120*4, CNT=640*128,
          WQ=16*640*256, WGU=16*640*384, WO=8*768*160, WD=8*1536*160)
gen.WS.clear(); gen.WS.update(WS); gen.SZ.clear(); gen.SZ.update(SZ)
SC = " sc1"
import os
RT = int(os.environ.get('RT','0')); FINE = int(os.environ.get("FINE", "0")); XAL = 1; DUP = int(os.environ.get("DUP", "0"))
_K_call = K.__call__
def _call(self, *ts):
    for t in ts:
        _K_call(self, t)
        if DUP and t.startswith("buffer_store") and t.endswith(" sc1"):
            _K_call(self, t[:-4])
K.__call__ = _call

if RT:
    def stamp(k, i): k(f"s_memrealtime s[{40+2*i}:{41+2*i}]")
WS['DBG'] = 60*MB; SZ['DBG'] = 256*64
gen.WS['DBG'] = 60*MB; gen.SZ['DBG'] = 256*64
def srd(k, sreg, name):
    if name in WS:
        k(f"s_add_u32 s{sreg}, s84, {WS[name]:#x}", f"s_addc_u32 s{sreg+1}, s85, 0", f"s_mov_b32 s{sreg+2}, {SZ[name]}")
    else:
        p = {'x': 86, 'out': 88}[name]
        k(f"s_mov_b32 s{sreg}, s{p}", f"s_mov_b32 s{sreg+1}, s{p+1}", f"s_mov_b32 s{sreg+2}, {INSZ[name]}")
    k(f"s_and_b32 s{sreg+1}, s{sreg+1}, 0xffff", f"s_mov_b32 s{sreg+3}, 0x00020000")

def xcd_map16(k):
    if XAL:
        k("s_and_b32 s24, s2, 7", "s_lshr_b32 s25, s2, 3", "s_lshl_b32 s26, s24, 1", "s_and_b32 s27, s25, 1", "s_add_u32 s26, s26, s27", "s_lshr_b32 s27, s25, 1")
        return
    k("s_and_b32 s24, s2, 7", "s_lshr_b32 s25, s2, 3")
    k("s_lshr_b32 s26, s24, 1", "s_lshl_b32 s26, s26, 2", "s_and_b32 s27, s25, 3", "s_add_u32 s26, s26, s27")
    k("s_and_b32 s27, s24, 1", "s_lshl_b32 s27, s27, 3", "s_lshr_b32 s25, s25, 2", "s_add_u32 s27, s27, s25")

def poll(k, emit_addr, target):
    lp = k.newlab("poll"); lo = k.newlab("pok")
    k("s_cmp_lg_u32 s29, 3", f"s_cbranch_scc1 {lo}")
    emit_addr(k)
    k("s_mov_b32 s38, 0")
    k("buffer_load_dword v21, v24, s[92:95], 0 offen sc1", "s_sleep 3", "buffer_load_dword v22, v24, s[92:95], 0 offen sc1", "s_sleep 3")
    k.lab(lp)
    for r in (23, 21, 22):
        nx = {23: 21, 21: 22, 22: 23}[r]
        k(f"buffer_load_dword v{r}, v24, s[92:95], 0 offen sc1", "s_waitcnt vmcnt(2)", f"v_cmp_gt_u32 vcc, {target}, v{nx}", "s_nop 4", f"s_cbranch_vccz {lo}", "s_sleep 2")
    k("s_add_u32 s38, s38, 1", "s_cmp_gt_u32 s38, 4000", f"s_cbranch_scc0 {lp}")
    k.lab(lo)

def signal(k, sidx_reg):
    l = k.newlab("nosig"); l2 = k.newlab("nosig2")
    k("s_cmp_lg_u32 s29, 0", f"s_cbranch_scc1 {l}")
    k(f"s_lshl_b32 s38, s{sidx_reg}, 7", "v_mov_b32 v24, s38", "v_mov_b32 v23, 1")
    k("v_cmp_eq_u32 vcc, 0, v1", "s_and_saveexec_b64 s[36:37], vcc", f"s_cbranch_execz {l2}")
    k("buffer_atomic_add v23, v24, s[92:95], 0 offen sc1")
    k.lab(l2)
    k("s_mov_b64 exec, s[36:37]")
    k.lab(l)

def fsignal(k, sidx_reg, word_reg):
    l = k.newlab("nosig"); l2 = k.newlab("nosig2")
    k("s_cmp_lg_u32 s29, 0", f"s_cbranch_scc1 {l}")
    k(f"s_lshl_b32 s38, s{sidx_reg}, 7", f"s_lshl_b32 s39, s{word_reg}, 2", "s_add_u32 s38, s38, s39", "v_mov_b32 v24, s38", "v_mov_b32 v23, 1")
    k("v_cmp_eq_u32 vcc, 0, v1", "s_and_saveexec_b64 s[36:37], vcc", f"s_cbranch_execz {l2}")
    k("buffer_store_dword v23, v24, s[92:95], 0 offen")
    k.lab(l2)
    k("s_mov_b64 exec, s[36:37]")
    k.lab(l)

def fpoll_addr(idx_emit, n):
    def f(k):
        idx_emit(k)
        k("s_lshl_b32 s38, s38, 7", f"v_and_b32 v24, {n-1}, v1", "v_lshlrev_b32 v24, 2, v24", "v_add_u32 v24, s38, v24")
    return f

AS = 16384; WB = 65536; WSL = 24576
class WDesc:
    def __init__(s_, kind, r):
        s_.kind = kind; s_.r = r
        s_.name, s_.tile, s_.per, s_.kb, s_.sh = {'q': ('WQ', 163840, 4096, 16384, 4), 'g': ('WGU', 245760, 6144, 24576, 4),
                                          'w': ('WO', 768*160, 5120, 20480, 5), 'd': ('WD', 1536*160, 5120, 20480, 5)}[kind]
    def setup(s_, k):
        srd(k, 76, s_.name)
        k(f"s_lshr_b32 s82, s2, {s_.sh}", f"s_mul_i32 s82, s82, {s_.tile}", f"s_mul_i32 s80, s28, {s_.per}", "s_add_u32 s82, s82, s80")
        k("v_lshlrev_b32 v8, 4, v1", "v_add_u32 v8, s82, v8", "v_add_u32 v9, 4096, v8")
    def wl(s_, kt):
        sl = (kt + s_.r) % 4; n = s_.per // 1024
        Ls = [f"s_add_u32 m0, s80, {WB + sl*WSL}", f"s_mov_b32 s81, {kt*s_.kb}"]
        Ls += [f"buffer_load_dwordx4 v8, s[76:79], s81 offen offset:{j*1024} sc1 lds" for j in range(4)]
        if n > 4:
            Ls += [f"s_add_u32 m0, s80, {WB + sl*WSL + 4096}", "s_nop 0"]
            Ls += [f"buffer_load_dwordx4 v9, s[76:79], s81 offen offset:{j*1024} sc1 lds" for j in range(n - 4)]
        return Ls

def loader_phase(k, NK, wd, alist, nepi, nxt):
    NST = 4
    ops = []
    def iss(L, st):
        for t in L:
            k(t)
            if t.startswith("buffer_load"): ops.append(st)
    wd.setup(k)
    k("s_barrier")
    ai = -1
    def issue(upto):
        nonlocal ai
        while ai < min(upto, NK - 1):
            ai += 1
            iss(alist(ai), ai)
            if ai >= NST: iss(wd.wl(ai), ai)
    issue(1)
    for kt in range(NK):
        last = max(i for i, s in enumerate(ops) if s == kt)
        k(f"s_waitcnt vmcnt({len(ops)-1-last})", "s_barrier")
        issue(kt + NST - 1)
    if nxt:
        nxt.setup(k)
        for kt in range(3): k(*nxt.wl(kt))
    k("s_barrier")
    if nxt: k(*nxt.wl(3))
    for _ in range(nepi): k("s_barrier")

def act_dma_voffs(k):
    k("s_lshl_b32 s32, s26, 7", "s_lshl_b32 s33, s28, 5", "s_add_u32 s32, s32, s33")
    k("v_lshrrev_b32 v25, 3, v1", "v_add_u32 v25, s32, v25", "v_mul_u32_u24 v25, 1280, v25")
    k("v_and_b32 v26, 7, v1", "v_lshrrev_b32 v27, 4, v1", "v_xor_b32 v26, v26, v27", "v_lshlrev_b32 v26, 4, v26")
    k("v_xor_b32 v27, 64, v26")
    for j in range(4):
        k(f"v_add_u32 v{2+j}, v25, v{26 + (j&1)}")
        if j: k(f"v_add_u32 v{2+j}, {j*(8*1280-1024)}, v{2+j}")

def cnt_single(idx_sreg, base):
    def f(k): k(f"s_add_u32 s38, s{idx_sreg}, {base}", "s_lshl_b32 s38, s38, 7", "v_mov_b32 v24, s38")
    return f

def ph_qkv(k, L, xsrc, statsrc, wd, nxt, st0=None):
    NK = 10; NST = 4; R = wd.r
    lload = k.newlab("loader"); lend = k.newlab("end")
    xcd_map16(k)
    srd(k, 4, xsrc); srd(k, 16, f'QKV{L}'); srd(k, 20, statsrc); srd(k, 12, 'CS')
    k("s_cmp_ge_u32 s29, 4", f"s_cbranch_scc1 {lload}")
    k("s_and_b32 s30, s29, 1", "s_lshr_b32 s31, s29, 1")
    k("v_and_b32 v25, 31, v1", "s_lshl_b32 s32, s26, 7", "s_lshl_b32 s33, s31, 6", "s_add_u32 s32, s32, s33", "v_add_u32 v28, s32, v25")
    k(f"v_lshlrev_b32 v29, {3 if L == 0 else 6}, v28")
    k("v_lshrrev_b32 v30, 5, v1", "v_lshlrev_b32 v30, 4, v30", "s_lshl_b32 s32, s27, 9", "s_lshl_b32 s33, s30, 8", "s_add_u32 s32, s32, s33", "v_add_u32 v30, s32, v30")
    k("v_and_b32 v25, 31, v1", "s_lshl_b32 s32, s31, 6", "v_add_u32 v26, s32, v25", "v_lshlrev_b32 v26, 7, v26")
    k("v_lshrrev_b32 v25, 1, v25", "v_and_b32 v25, 7, v25", "v_lshrrev_b32 v27, 5, v1", "v_xor_b32 v25, v25, v27")
    for s in range(4):
        k(f"v_xor_b32 v27, {2*s}, v25", f"v_lshl_add_u32 v{10+s}, v27, 4, v26", f"v_add_u32 v{10+s}, {R*AS}, v{10+s}")
    k("v_lshrrev_b32 v25, 5, v1", "v_lshlrev_b32 v25, 3, v25", "v_bfe_u32 v26, v1, 2, 2", "v_add_u32 v25, v25, v26", "v_lshlrev_b32 v25, 8, v25")
    k("v_bfe_u32 v27, v1, 4, 1", "v_lshl_add_u32 v25, v27, 5, v25", "v_and_b32 v27, 3, v1", "v_lshl_add_u32 v25, v27, 3, v25", f"v_add_u32 v25, {WB + R*WSL}, v25")
    k("s_lshl_b32 s32, s30, 1")
    for ft in range(2):
        k(f"s_add_u32 s33, s32, {ft}", "v_xor_b32 v27, s33, v26", f"v_lshl_add_u32 v{14+ft}, v27, 6, v25")
    for i in range(64, 128): k(f"v_mov_b32 v{i}, 0")
    if L == 1: poll(k, fpoll_addr(lambda k: k('s_add_u32 s38, s26, 296'), 16), 1)
    k("s_barrier")
    for ft in range(2):
        for g in range(4): k(f"buffer_load_dwordx4 v[{128+16*ft+4*g}:{131+16*ft+4*g}], v30, s[12:15], 0 offen offset:{ft*128+g*32} sc1")
    if st0 is not None: stamp(k, st0)
    for tt in range(2):
        if L == 0: k(f"buffer_load_dwordx2 v[{160+16*tt}:{161+16*tt}], v29, s[20:23], 0 offen offset:{tt*256}" + SC); continue
        for i in range(4): k(f"buffer_load_dwordx4 v[{160+16*tt+4*i}:{163+16*tt+4*i}], v29, s[20:23], 0 offen offset:{tt*2048+16*i}" + SC)
    def reads(s):
        fb = 32 + 16 * (s & 1); Ls = []
        for tt in range(2): Ls.append(f"ds_read_b128 v[{fb+4*tt}:{fb+4*tt+3}], v{10+s} offset:{tt*4096}")
        for ft in range(2):
            for r in range(2):
                Ls.append(f"ds_read_b64_tr_b16 v[{fb+8+4*ft+2*r}:{fb+8+4*ft+2*r+1}], v{14+ft} offset:{(16*s+4*r)*256}")
        return Ls
    def mfmas(s):
        fb = 32 + 16 * (s & 1); Ls = []
        for ft in range(2):
            for tt in range(2):
                a = 64 + (ft*2+tt)*16
                Ls.append(f"v_mfma_f32_32x32x16_bf16 v[{a}:{a+15}], v[{fb+8+4*ft}:{fb+8+4*ft+3}], v[{fb+4*tt}:{fb+4*tt+3}], v[{a}:{a+15}]")
        return Ls
    k("s_barrier")
    if st0 is not None: stamp(k, st0+1)
    k(*reads(0))
    for kt in range(NK):
        for s in range(4):
            k("s_waitcnt lgkmcnt(0)")
            M = mfmas(s)
            if s < 3:
                interleave(k, M, reads(s+1), [2, 2, 2, 0])
            elif kt + 1 < NK:
                k(M[0], "s_barrier")
                wrap = (kt + 1 + R) % NST == 0
                for r in range(10, 14): k(f"v_add_u32 v{r}, {(-3*AS if wrap else AS) & 0xffffffff:#x}, v{r}")
                for r in range(14, 16): k(f"v_add_u32 v{r}, {(-3*WSL if wrap else WSL) & 0xffffffff:#x}, v{r}")
                interleave(k, M[1:], reads(0), [2, 2, 2])
            else:
                k(*M)
        if kt == 3:
            k("s_waitcnt vmcnt(0)")
            for tt in range(2):
                if L == 0:
                    k(f"v_mul_f32 v16, 0x3acccccd, v{160+16*tt}", f"v_mul_f32 v17, 0x3acccccd, v{161+16*tt}")
                    gen.finish_stats(k, 16, 17, 192+4*tt, 194+4*tt)
                else: merge_stats(k, 160+16*tt, 16, 192+4*tt, 194+4*tt)
                k(f"v_mov_b32 v{193+4*tt}, v{192+4*tt}", f"v_mov_b32 v{195+4*tt}, v{194+4*tt}")
        if kt == 5:
            k("s_mul_i32 s32, s29, 12288", "v_and_b32 v25, 31, v1", "v_mul_u32_u24 v25, 40, v25", "v_add_u32 v25, s32, v25", "v_cmp_gt_u32 vcc, 32, v1")
            for ft in range(2):
                for g in range(4):
                    def off(jg): return 7680 if jg == 15 else (jg // 5) * 2560 + (jg % 5) * 8
                    j0 = 8*ft + 2*g
                    k(f"v_mov_b32 v26, {off(j0+1)}", f"v_mov_b32 v27, {off(j0)}", "s_nop 0", "v_cndmask_b32 v26, v26, v27, vcc", f"v_add_u32 v{200+ft*4+g}, v25, v26")
            k("v_lshlrev_b32 v28, 4, v1", "v_add_u32 v208, s32, v28")
            k("s_lshl_b32 s32, s27, 1", "s_add_u32 s32, s32, s30", "s_mul_i32 s32, s32, 81920", "s_lshl_b32 s33, s26, 1", "s_add_u32 s33, s33, s31", "s_mul_i32 s33, s33, 2560", "s_add_u32 s39, s32, s33")
    if st0 is not None: stamp(k, st0+2)
    k("s_barrier")
    k("s_nop 4")
    for tt in range(2):
        for ft in range(2):
            a = 64 + (ft*2+tt)*16; vm = 192 + 4*tt; vr = 194 + 4*tt
            for r in range(0, 16, 2):
                k(f"v_pk_fma_f32 v[{a+r}:{a+r+1}], v[{vm}:{vm+1}], v[{128+ft*16+r}:{129+ft*16+r}], v[{a+r}:{a+r+1}] neg_lo:[1,0,0] neg_hi:[1,0,0]")
                k(f"v_pk_mul_f32 v[{a+r}:{a+r+1}], v[{a+r}:{a+r+1}], v[{vr}:{vr+1}]")
            for g in range(4):
                d = 32 + 2*((ft*4+g) % 8)
                k(f"v_cvt_pk_bf16_f32 v{d}, v{a+4*g}, v{a+4*g+1}", f"v_cvt_pk_bf16_f32 v{d+1}, v{a+4*g+2}, v{a+4*g+3}")
                k(f"ds_write_b64 v{200+ft*4+g}, v[{d}:{d+1}] offset:{tt*1280}")
    k("s_waitcnt lgkmcnt(0)")
    for wh in range(3):
        for n in range(3): k(f"ds_read_b128 v[{64+4*(wh*3+n)}:{67+4*(wh*3+n)}], v208 offset:{wh*2560+n*1024}")
    k("v_cmp_gt_u32 vcc, 32, v1")
    for n in range(2):
        for wh in range(3):
            i = wh*3+n
            k(f"s_add_u32 s33, s39, {wh*32*81920}", "s_waitcnt lgkmcnt(0)", f"buffer_store_dwordx4 v[{64+4*i}:{67+4*i}], v28, s[16:19], s33 offen offset:{n*1024}" + SC)
    k("s_and_saveexec_b64 s[36:37], vcc")
    for wh in range(3):
        i = wh*3+2
        k(f"s_add_u32 s33, s39, {wh*32*81920}", f"buffer_store_dwordx4 v[{64+4*i}:{67+4*i}], v28, s[16:19], s33 offen offset:2048" + SC)
    k("s_mov_b64 exec, s[36:37]")
    k("s_waitcnt vmcnt(0)", "s_barrier")
    if st0 is not None: stamp(k, st0+3)
    k("s_lshl_b32 s32, s26, 4", "s_add_u32 s32, s32, s27", f"s_add_u32 s32, s32, {L*320}")
    signal(k, 32)
    k(f"s_branch {lend}")
    k.lab(lload)
    act_dma_voffs(k)
    k("s_lshl_b32 s34, s28, 12")
    def al(kt):
        st = (kt + R) % NST
        return [f"s_add_u32 m0, s34, {st*AS}", f"s_mov_b32 s35, {kt*128}"] + [f"buffer_load_dwordx4 v{2+j}, s[4:7], s35 offen offset:{j*1024} sc1 lds" for j in range(4)]
    loader_phase(k, NK, wd, al, 1, nxt)
    k.lab(lend)

def ph_attn(k, L, st0=None):
    VB = 20480
    srd(k, 4, f'QKV{L}'); srd(k, 16, f'O{L}')
    k("s_and_b32 s26, s2, 7", "s_lshr_b32 s27, s2, 3")
    k("s_lshr_b32 s32, s29, 2", "s_add_u32 s32, s32, 1", "s_lshl_b32 s32, s32, 5", "s_add_u32 s32, s32, s27", "s_mul_i32 s32, s32, 81920")
    k("s_mul_i32 s33, s26, 10240", "s_add_u32 s32, s32, s33", "s_sub_u32 s32, s32, 10240", "s_mul_i32 s33, s28, 5120", "s_add_u32 s32, s32, s33")
    lneg = k.newlab("neg")
    k("s_cmp_lg_u32 s26, 0", f"s_cbranch_scc1 {lneg}", "s_cmp_ge_u32 s28, 2", f"s_cbranch_scc1 {lneg}", "s_mov_b32 s32, 0x7ff00000")
    k.lab(lneg)
    k("v_lshlrev_b32 v2, 4, v1", "v_add_u32 v2, s32, v2", "v_add_u32 v3, 4096, v2")
    k("s_mul_i32 s34, s29, 5120")
    k("v_and_b32 v20, 31, v1", "s_lshl_b32 s32, s26, 8", "s_lshl_b32 s35, s29, 5", "s_add_u32 s32, s32, s35", "v_add_u32 v4, s32, v20")
    k("v_lshrrev_b32 v6, 5, v1")
    k("s_mul_i32 s33, s27, 81920", "s_mul_i32 s32, s26, 10240", "s_add_u32 s33, s33, s32", "s_lshl_b32 s32, s29, 11", "s_add_u32 s33, s33, s32", "v_lshlrev_b32 v7, 4, v1", "v_add_u32 v7, s33, v7")
    k("s_add_u32 s39, s32, 40960")
    k("v_add_u32 v5, s35, v20", "v_mul_u32_u24 v5, 40, v5", "v_lshl_add_u32 v5, v6, 4, v5", "v_add_u32 v5, 40960, v5")
    k("v_mov_b32 v14, 0", "v_mov_b32 v15, 0")
    k("v_add_u32 v16, s35, v20", "v_mul_u32_u24 v16, 40, v16", "v_lshl_add_u32 v16, v6, 4, v16")
    k("v_lshlrev_b32 v17, 2, v6", "v_bfe_u32 v18, v1, 2, 2", "v_add_u32 v17, v17, v18", "v_add_u32 v17, s35, v17", "v_mul_u32_u24 v17, 40, v17")
    k("v_bfe_u32 v18, v1, 4, 1", "v_lshl_add_u32 v17, v18, 5, v17", "v_and_b32 v18, 3, v1", "v_lshl_add_u32 v17, v18, 3, v17", f"v_add_u32 v17, {VB}, v17")
    k("v_lshlrev_b32 v18, 2, v6", "v_sub_u32 v18, v20, v18")
    def addr(k):
        k("v_and_b32 v24, 3, v1", "s_lshl_b32 s38, s26, 1", "s_sub_u32 s38, s38, 2", "v_add_u32 v24, s38, v24", "v_max_i32 v24, 0, v24")
        k("s_lshr_b32 s38, s27, 1", f"s_add_u32 s38, s38, {L*320}", "v_lshl_add_u32 v24, v24, 4, s38", "v_lshlrev_b32 v24, 7, v24")
    poll(k, addr, 1)
    k("s_barrier")
    if st0 is not None: stamp(k, st0)
    k("s_mov_b32 m0, s34", "s_nop 0")
    for j in range(4): k(f"buffer_load_dwordx4 v2, s[4:7], 0 offen offset:{j*1024} sc1 lds")
    k("s_add_u32 m0, s34, 4096", "s_nop 0", "buffer_load_dwordx4 v3, s[4:7], 0 offen sc1 lds")
    lnq = k.newlab("noq")
    k("s_cmp_ge_u32 s29, 5", f"s_cbranch_scc1 {lnq}")
    k("s_mov_b32 m0, s39", "s_nop 0", "buffer_load_dwordx4 v7, s[4:7], 0 offen sc1 lds", "buffer_load_dwordx4 v7, s[4:7], 0 offen offset:1024 sc1 lds")
    k.lab(lnq)
    k("v_cmp_gt_u32 vcc, 32, v1")
    k("s_waitcnt vmcnt(0)")
    k("s_barrier")
    k("ds_read_b64 v[8:9], v5", "ds_read_b64 v[10:11], v5 offset:8", "ds_read_b64 v[12:13], v5 offset:32")
    if st0 is not None: stamp(k, st0+1)
    S = 64; KF = 24
    def kread(i):
        b = KF + 8*(i & 1)
        for p, o in enumerate((0, 8, 32, 40)):
            k(f"ds_read_b64 v[{b+2*p}:{b+2*p+1}], v16 offset:{i*1280+o}")
    kread(0)
    for i in range(9):
        if i < 8: kread(i+1); k("s_waitcnt lgkmcnt(4)")
        else: k("s_waitcnt lgkmcnt(0)")
        if i == 0: k("v_cndmask_b32 v12, 0, v12, vcc", "v_cndmask_b32 v13, 0, v13, vcc", "s_nop 1")
        b = KF + 8*(i & 1); a = S + 16*i
        k(f"v_mfma_f32_32x32x16_bf16 v[{a}:{a+15}], v[{b}:{b+3}], v[8:11], 0")
        k(f"v_mfma_f32_32x32x16_bf16 v[{a}:{a+15}], v[{b+4}:{b+7}], v[12:15], v[{a}:{a+15}]")
    k("s_nop 7", "s_nop 7")
    k("v_mov_b32 v43, 0xce6e6b28")
    for g in range(4):
        for r in range(4):
            c = 8*g + r
            k(f"v_cmp_le_i32 vcc, {c}, v18", "s_nop 1")
            k(f"v_cndmask_b32 v{S+128+4*g+r}, v43, v{S+128+4*g+r}, vcc", f"v_cndmask_b32 v{S+4*g+r}, v{S+4*g+r}, v43, vcc")
    lq = k.newlab("q0")
    k("s_cmp_lg_u32 s26, 0", f"s_cbranch_scc1 {lq}")
    for i in range(8):
        ls = k.newlab("sk")
        k(f"s_add_u32 s32, s29, {i}", "s_cmp_ge_u32 s32, 8", f"s_cbranch_scc1 {ls}")
        for r in range(16): k(f"v_mov_b32 v{S+16*i+r}, v43")
        k.lab(ls)
    k.lab(lq)
    k(f"v_max3_f32 v44, v{S}, v{S+1}, v{S+2}", f"v_max3_f32 v45, v{S+3}, v{S+4}, v{S+5}")
    for n, r in enumerate(range(S+6, S+144, 2)): k(f"v_max3_f32 v{44+(n&1)}, v{44+(n&1)}, v{r}, v{r+1}")
    k("v_max_f32 v44, v44, v45")
    k("v_mov_b32 v45, v44", "s_nop 1", "v_permlane32_swap_b32 v44, v45", "v_max_f32 v44, v44, v45")
    cc = struct.unpack('<I', struct.pack('<f', 1.4426950408889634 * struct.unpack('<f', struct.pack('<I', 0x3e64f92e))[0]))[0]
    k(f"v_mov_b32 v40, {cc:#x}", f"v_mov_b32 v41, {cc:#x}", "v_mul_f32 v44, v44, v40", "v_sub_f32 v44, 0, v44", "v_mov_b32 v45, v44", "v_mov_b32 v46, 0", "v_mov_b32 v47, 0")
    for i in range(9):
        for q in range(8):
            r = S + 16*i + 2*q
            k(f"v_pk_fma_f32 v[{r}:{r+1}], v[{r}:{r+1}], v[40:41], v[44:45]")
            k(f"v_exp_f32 v{r}, v{r}", f"v_exp_f32 v{r+1}, v{r+1}")
            if (i, q) != (0, 0):
                pr = r - 2 if q else S + 16*(i-1) + 14; pq = (S + 16*i + q - 1) if q else (S + 16*(i-1) + 7)
                k(f"v_pk_add_f32 v[46:47], v[46:47], v[{pr}:{pr+1}]", f"v_cvt_pk_bf16_f32 v{pq}, v{pr}, v{pr+1}")
    k("s_nop 0", f"v_pk_add_f32 v[46:47], v[46:47], v[{S+142}:{S+143}]", f"v_cvt_pk_bf16_f32 v{S+128+7}, v{S+142}, v{S+143}")
    k("v_add_f32 v46, v46, v47", "v_mov_b32 v47, v46", "s_nop 1", "v_permlane32_swap_b32 v46, v47", "v_add_f32 v46, v46, v47")
    k("v_rcp_f32 v46, v46", "s_nop 0", "v_mov_b32 v47, v46")
    OA = 208; VF = 24
    def vread(i):
        b = VF + 8*(i & 1)
        for m in range(2):
            for r in range(2):
                k(f"ds_read_b64_tr_b16 v[{b+4*m+2*r}:{b+4*m+2*r+1}], v17 offset:{(32*i+16*m+8*r)*40}")
    vread(0)
    for i in range(9):
        if i < 8: vread(i+1); k("s_waitcnt lgkmcnt(4)")
        else: k("s_waitcnt lgkmcnt(0)")
        b = VF + 8*(i & 1); p = S + 16*i
        for m in range(2):
            c = "0" if (i == 0 and m == 0) else f"v[{OA}:{OA+15}]"
            k(f"v_mfma_f32_32x32x16_bf16 v[{OA}:{OA+15}], v[{b+4*m}:{b+4*m+3}], v[{p+4*m}:{p+4*m+3}], {c}")
    if st0 is not None: stamp(k, st0+2)
    k("s_mul_i32 s32, s29, 1536", "s_add_u32 s32, s32, 51328", "v_mul_u32_u24 v5, 48, v20", "v_lshl_add_u32 v5, v6, 3, v5", "v_add_u32 v5, s32, v5")
    k("v_lshlrev_b32 v7, 4, v1", "v_add_u32 v2, s32, v7")
    k("s_mul_i32 s33, s27, 98304", "s_lshl_b32 s32, s26, 8", "s_add_u32 s32, s32, s35", "s_mul_i32 s32, s32, 48", "s_add_u32 s33, s33, s32")
    k("v_cmp_gt_u32 vcc, 32, v1")
    k("s_nop 7", "s_nop 4")
    for g in range(3):
        k(f"v_pk_mul_f32 v[{OA+4*g}:{OA+4*g+1}], v[{OA+4*g}:{OA+4*g+1}], v[46:47]", f"v_pk_mul_f32 v[{OA+4*g+2}:{OA+4*g+3}], v[{OA+4*g+2}:{OA+4*g+3}], v[46:47]")
        k(f"v_cvt_pk_bf16_f32 v{40+2*g}, v{OA+4*g}, v{OA+4*g+1}", f"v_cvt_pk_bf16_f32 v{41+2*g}, v{OA+4*g+2}, v{OA+4*g+3}")
    k("v_cndmask_b32 v44, 0, v44, vcc", "v_cndmask_b32 v45, 0, v45, vcc")
    for g in range(3): k(f"ds_write_b64 v5, v[{40+2*g}:{41+2*g}] offset:{16*g}")
    k("s_waitcnt lgkmcnt(0)", "ds_read_b128 v[48:51], v2", "ds_read_b128 v[52:55], v2 offset:1024")
    k("s_waitcnt lgkmcnt(1)", "buffer_store_dwordx4 v[48:51], v7, s[16:19], s33 offen")
    k("s_and_saveexec_b64 s[36:37], vcc", "s_waitcnt lgkmcnt(0)", "buffer_store_dwordx4 v[52:55], v7, s[16:19], s33 offen offset:1024")
    k("s_mov_b64 exec, s[36:37]")
    k("s_waitcnt vmcnt(0)", "s_barrier")
    if st0 is not None: stamp(k, st0+3)
    k(f"s_add_u32 s32, s26, {L*320+256}")
    fsignal(k, 32, 27)

def ph_glu(k, L, wd, nxt, st0=None):
    NK = 10; NST = 4; R = wd.r
    lload = k.newlab("loader"); lend = k.newlab("end")
    xcd_map16(k)
    srd(k, 4, f'XA{L}'); srd(k, 16, f'H{L}'); srd(k, 20, f'STA{L}'); srd(k, 68, 'CS')
    k("s_cmp_ge_u32 s29, 4", f"s_cbranch_scc1 {lload}")
    FB = 32; AC = 88; STV = 184; CSV = 188
    k("v_and_b32 v25, 31, v1", "s_lshl_b32 s32, s26, 7", "s_lshl_b32 s33, s29, 5", "s_add_u32 s32, s32, s33", "v_add_u32 v28, s32, v25", "v_lshlrev_b32 v29, 6, v28")
    k("v_lshrrev_b32 v30, 5, v1", "v_lshlrev_b32 v30, 4, v30", "s_mul_i32 s32, s27, 384", "s_add_u32 s32, s32, 8192", "v_add_u32 v30, s32, v30")
    k("s_lshl_b32 s32, s29, 5", "v_add_u32 v26, s32, v25", "v_lshlrev_b32 v26, 7, v26")
    k("v_lshrrev_b32 v25, 1, v25", "v_and_b32 v25, 7, v25", "v_lshrrev_b32 v27, 5, v1", "v_xor_b32 v25, v25, v27")
    for s in range(4):
        k(f"v_xor_b32 v27, {2*s}, v25", f"v_lshl_add_u32 v{10+s}, v27, 4, v26", f"v_add_u32 v{10+s}, {R*AS}, v{10+s}")
    k("v_lshrrev_b32 v25, 5, v1", "v_lshlrev_b32 v25, 3, v25", "v_bfe_u32 v26, v1, 2, 2", "v_add_u32 v25, v25, v26", "v_mul_u32_u24 v25, 192, v25")
    k("v_bfe_u32 v27, v1, 4, 1", "v_lshl_add_u32 v25, v27, 5, v25", "v_and_b32 v27, 3, v1", "v_lshl_add_u32 v25, v27, 3, v25", f"v_add_u32 v14, {WB + R*WSL}, v25")
    for i in range(AC, AC+96): k(f"v_mov_b32 v{i}, 0")
    def cs_load(t, dst):
        mtx, ft = divmod(t, 3)
        for g in range(4): k(f"buffer_load_dwordx4 v[{dst+4*g}:{dst+4*g+3}], v{30+mtx}, s[68:71], 0 offen offset:{ft*128+g*32} sc1")
    k("v_add_u32 v31, 6144, v30")
    poll(k, fpoll_addr(lambda k: k(f's_add_u32 s38, s26, {L*320+264}'), 16), 1)
    k("s_barrier")
    cs_load(0, CSV); cs_load(3, CSV+16); cs_load(1, CSV+32)
    if st0 is not None: stamp(k, st0)
    for i in range(4): k(f"buffer_load_dwordx4 v[{CSV+48+4*i}:{CSV+51+4*i}], v29, s[20:23], 0 offen offset:{16*i}" + SC)
    def reads(s):
        fb = FB + 28 * (s & 1); Ls = [f"ds_read_b128 v[{fb}:{fb+3}], v{10+s}"]
        for t in range(6):
            mtx, ft = divmod(t, 3)
            for r in range(2):
                Ls.append(f"ds_read_b64_tr_b16 v[{fb+4+4*t+2*r}:{fb+5+4*t+2*r}], v14 offset:{mtx*12288 + (16*s+4*r)*192 + ft*64}")
        return Ls
    def mfmas(s):
        fb = FB + 28 * (s & 1)
        return [f"v_mfma_f32_32x32x16_bf16 v[{AC+16*t}:{AC+16*t+15}], v[{fb+4+4*t}:{fb+7+4*t}], v[{fb}:{fb+3}], v[{AC+16*t}:{AC+16*t+15}]" for t in range(6)]
    k("s_barrier")
    if st0 is not None: stamp(k, st0+1)
    k(*reads(0))
    for kt in range(NK):
        for s in range(4):
            k("s_waitcnt lgkmcnt(0)")
            M = mfmas(s)
            if s < 3:
                interleave(k, M, reads(s+1), [3, 3, 3, 2, 2, 0])
            elif kt + 1 < NK:
                k(M[0], "s_barrier")
                wrap = (kt + 1 + R) % NST == 0
                for r in range(10, 14): k(f"v_add_u32 v{r}, {(-3*AS if wrap else AS) & 0xffffffff:#x}, v{r}")
                k(f"v_add_u32 v14, {(-3*WSL if wrap else WSL) & 0xffffffff:#x}, v14")
                interleave(k, M[1:], reads(0), [3, 3, 3, 2, 2])
            else:
                k(*M)
        if kt == 3:
            k("s_waitcnt vmcnt(0)")
            merge_stats(k, CSV+48, 16, STV, STV+2)
            k(f"v_mov_b32 v{STV+1}, v{STV}", f"v_mov_b32 v{STV+3}, v{STV+2}")
            cs_load(4, CSV+48)
    if st0 is not None: stamp(k, st0+2)
    cs_load(2, FB)
    k("s_barrier")
    if st0 is not None and FINE: stamp(k, 12)
    cs_load(5, FB+28)
    k("s_mul_i32 s32, s29, 6656")
    k("v_and_b32 v25, 31, v1", "v_mul_u32_u24 v25, 208, v25", "v_lshrrev_b32 v26, 5, v1", "v_lshl_add_u32 v25, v26, 3, v25", "v_add_u32 v25, s32, v25")
    k("s_lshl_b32 s33, s26, 7", "s_lshl_b32 s38, s29, 5", "s_add_u32 s33, s33, s38", "s_mul_i32 s38, s27, 192", "s_mov_b32 s39, 43691")
    k("v_mov_b32 v16, 0xbfb8aa3b", "v_mov_b32 v17, 0xbfb8aa3b", "v_mov_b32 v18, 1.0", "v_mov_b32 v19, 1.0")
    csreg = {0: CSV, 3: CSV+16, 1: CSV+32, 4: CSV+48, 2: FB, 5: FB+28}
    for ft in range(3):
        if ft == 0: k("s_waitcnt vmcnt(8)")
        if ft == 2: k("s_waitcnt vmcnt(0)")
        ag = AC + 16*ft; au = AC + 16*(3+ft); cg = csreg[ft]; cu = csreg[3+ft]
        for r in range(0, 16, 2):
            k(f"v_pk_fma_f32 v[{ag+r}:{ag+r+1}], v[{STV}:{STV+1}], v[{cg+r}:{cg+r+1}], v[{ag+r}:{ag+r+1}] neg_lo:[1,0,0] neg_hi:[1,0,0]")
            k(f"v_pk_fma_f32 v[{au+r}:{au+r+1}], v[{STV}:{STV+1}], v[{cu+r}:{cu+r+1}], v[{au+r}:{au+r+1}] neg_lo:[1,0,0] neg_hi:[1,0,0]")
            k(f"v_pk_mul_f32 v[{ag+r}:{ag+r+1}], v[{ag+r}:{ag+r+1}], v[{STV+2}:{STV+3}]")
            k(f"v_pk_mul_f32 v[{au+r}:{au+r+1}], v[{au+r}:{au+r+1}], v[{STV+2}:{STV+3}]")
            k(f"v_cvt_pk_bf16_f32 v20, v{ag+r}, v{ag+r+1}", f"v_cvt_pk_bf16_f32 v21, v{au+r}, v{au+r+1}")
            k(f"v_lshlrev_b32 v{ag+r}, 16, v20", f"v_and_b32 v{ag+r+1}, 0xffff0000, v20", f"v_lshlrev_b32 v{au+r}, 16, v21", f"v_and_b32 v{au+r+1}, 0xffff0000, v21")
            k(f"v_pk_mul_f32 v[{ag+r}:{ag+r+1}], v[{ag+r}:{ag+r+1}], v[16:17]")
            k(f"v_exp_f32 v{ag+r}, v{ag+r}", f"v_exp_f32 v{ag+r+1}, v{ag+r+1}", "s_nop 0")
            k(f"v_pk_add_f32 v[{ag+r}:{ag+r+1}], v[{ag+r}:{ag+r+1}], v[18:19]")
            k(f"v_rcp_f32 v{ag+r}, v{ag+r}", f"v_rcp_f32 v{ag+r+1}, v{ag+r+1}", "s_nop 0")
            k(f"v_cvt_pk_bf16_f32 v20, v{ag+r}, v{ag+r+1}")
            k(f"v_lshlrev_b32 v{ag+r}, 16, v20", f"v_and_b32 v{ag+r+1}, 0xffff0000, v20")
            k(f"v_pk_mul_f32 v[{ag+r}:{ag+r+1}], v[{ag+r}:{ag+r+1}], v[{au+r}:{au+r+1}]")
        for g in range(4):
            d = 2 + 2*(g & 3)
            k(f"v_cvt_pk_bf16_f32 v{d}, v{ag+4*g}, v{ag+4*g+1}", f"v_cvt_pk_bf16_f32 v{d+1}, v{ag+4*g+2}, v{ag+4*g+3}")
            k(f"ds_write_b64 v25, v[{d}:{d+1}] offset:{ft*64 + g*16}")
    for n in range(6):
        k(f"v_add_u32 v26, {64*n}, v1", "v_mul_lo_u32 v27, v26, s39", "v_lshrrev_b32 v27, 19, v27", "v_mul_u32_u24 v28, 12, v27", "v_sub_u32 v28, v26, v28",
          "v_mul_u32_u24 v26, 208, v27", "v_lshl_add_u32 v26, v28, 4, v26", f"v_add_u32 v{FB+n}, s32, v26",
          "v_add_u32 v27, s33, v27", "v_mul_u32_u24 v27, 3072, v27", "v_lshl_add_u32 v27, v28, 4, v27", f"v_add_u32 v{FB+8+n}, s38, v27")
    if st0 is not None and FINE: stamp(k, 9)
    k("s_waitcnt lgkmcnt(0)")
    for n in range(6): k(f"ds_read_b128 v[{AC+4*n}:{AC+4*n+3}], v{FB+n}")
    for n in range(6): k(f"s_waitcnt lgkmcnt({5-n})", f"buffer_store_dwordx4 v[{AC+4*n}:{AC+4*n+3}], v{FB+8+n}, s[16:19], 0 offen")
    if st0 is not None and FINE: stamp(k, 10)
    k("s_waitcnt vmcnt(0)")
    if st0 is not None and FINE: stamp(k, 11)
    k("s_barrier")
    if st0 is not None: stamp(k, st0+3)
    k(f"s_add_u32 s32, s26, {L*320+280}")
    fsignal(k, 32, 27)
    k(f"s_branch {lend}")
    k.lab(lload)
    act_dma_voffs(k)
    k("s_lshl_b32 s34, s28, 12")
    def al(kt):
        st = (kt + R) % NST
        return [f"s_add_u32 m0, s34, {st*AS}", f"s_mov_b32 s35, {kt*128}"] + [f"buffer_load_dwordx4 v{2+j}, s[4:7], s35 offen offset:{j*1024} sc1 lds" for j in range(4)]
    loader_phase(k, NK, wd, al, 1, nxt)
    k.lab(lend)

def ph_out(k, L, kind, wd, nxt, st0=None):
    R = wd.r
    if kind == 'w':
        asrc, KK, wsrc, rsrc, dst, stdst = f'O{L}', 768, 'WO', ('x' if L == 0 else 'XB'), f'XA{L}', f'STA{L}'
    else:
        asrc, KK, wsrc, rsrc, dst, stdst = f'H{L}', 1536, 'WD', f'XA{L}', ('XB' if L == 0 else 'out'), ('STB' if L == 0 else None)
    NK = KK // 128; NST = 4; AP = KK * 2
    lload = k.newlab("loader"); lend = k.newlab("end")
    k("s_and_b32 s24, s2, 7", "s_lshr_b32 s25, s2, 3", "s_lshl_b32 s26, s24, 2", "s_and_b32 s27, s25, 3", "s_add_u32 s26, s26, s27", "s_lshr_b32 s27, s25, 2")
    srd(k, 4, asrc); srd(k, 12, rsrc); srd(k, 16, dst)
    if stdst: srd(k, 20, stdst)
    k("s_cmp_ge_u32 s29, 4", f"s_cbranch_scc1 {lload}")
    FB = 32; AC = 104; RS = 184
    k("v_and_b32 v25, 15, v1", "v_lshrrev_b32 v26, 4, v1", "s_lshl_b32 s32, s29, 2", "v_add_u32 v26, s32, v26", "v_xor_b32 v26, v26, v25", "v_lshlrev_b32 v26, 4, v26", "v_lshl_add_u32 v10, v25, 8, v26", f"v_add_u32 v10, {R*AS}, v10")
    k("v_lshrrev_b32 v26, 4, v1", "v_lshlrev_b32 v26, 3, v26", "v_bfe_u32 v27, v1, 2, 2", "v_add_u32 v26, v26, v27", "s_lshl_b32 s32, s29, 5", "v_add_u32 v26, s32, v26", "v_mul_u32_u24 v26, 160, v26")
    k("v_and_b32 v27, 3, v1", "v_lshl_add_u32 v26, v27, 3, v26", f"v_add_u32 v11, {WB + R*WSL}, v26")
    k("s_lshl_b32 s32, s26, 6", "s_lshl_b32 s33, s29, 4", "s_add_u32 s32, s32, s33", "v_add_u32 v28, s32, v25", "v_mul_u32_u24 v29, 1280, v28")
    k("v_lshrrev_b32 v26, 4, v1", "v_lshl_add_u32 v29, v26, 3, v29", "s_mul_i32 s32, s27, 160", "v_add_u32 v29, s32, v29")
    for i in range(AC, AC+80): k(f"v_mov_b32 v{i}, 0")
    k("s_mul_i32 s32, s29, 15360", "s_nop 0", "v_mul_u32_u24 v30, 160, v25", "v_lshrrev_b32 v26, 4, v1", "v_lshl_add_u32 v30, v26, 3, v30", "v_add_u32 v30, s32, v30")
    k("v_lshlrev_b32 v31, 4, v1", "v_add_u32 v31, s32, v31")
    k("s_lshl_b32 s32, s26, 6", "s_lshl_b32 s33, s29, 4", "s_add_u32 s32, s32, s33", "s_mul_i32 s33, s27, 160", "s_mov_b32 s38, 52429")
    for n in range(3):
        k(f"v_add_u32 v26, {64*n}, v1", "v_mul_lo_u32 v27, v26, s38", "v_lshrrev_b32 v27, 19, v27", "v_mul_u32_u24 v24, 10, v27", "v_sub_u32 v24, v26, v24",
          "v_add_u32 v27, s32, v27", "v_mul_u32_u24 v27, 1280, v27", "v_lshl_add_u32 v27, v24, 4, v27", f"v_add_u32 v{12+n}, s33, v27")
    if kind == 'w':
        poll(k, fpoll_addr(lambda k: k("s_lshr_b32 s38, s26, 2", f"s_add_u32 s38, s38, {L*320+256}"), 32), 1)
    else:
        poll(k, fpoll_addr(lambda k: k("s_lshr_b32 s38, s26, 1", f"s_add_u32 s38, s38, {L*320+280}"), 16), 1)
    k("s_barrier")
    if st0 is not None: stamp(k, st0)
    for ft in range(5): k(f"buffer_load_dwordx2 v[{RS+2*ft}:{RS+2*ft+1}], v29, s[12:15], 0 offen offset:{ft*32}" + SC)
    def reads(p):
        fb = FB + 36 * p; Ls = []
        for tt in range(4): Ls.append(f"ds_read_b128 v[{fb+4*tt}:{fb+4*tt+3}], v10 offset:{tt*4096}")
        for ft in range(5):
            for r in range(2): Ls.append(f"ds_read_b64_tr_b16 v[{fb+16+4*ft+2*r}:{fb+17+4*ft+2*r}], v11 offset:{4*r*160 + ft*32}")
        return Ls
    def mfmas(p):
        fb = FB + 36 * p; Ls = []
        for ft in range(5):
            for tt in range(4):
                a = AC + (ft*4+tt)*4
                Ls.append(f"v_mfma_f32_16x16x32_bf16 v[{a}:{a+3}], v[{fb+16+4*ft}:{fb+19+4*ft}], v[{fb+4*tt}:{fb+4*tt+3}], v[{a}:{a+3}]")
        return Ls
    k("s_barrier")
    if st0 is not None: stamp(k, st0+1)
    k(*reads(0))
    for kt in range(NK):
        k("s_waitcnt lgkmcnt(0)")
        M = mfmas(kt & 1)
        if kt + 1 < NK:
            k(M[0], "s_barrier")
            wrap = (kt + 1 + R) % NST == 0
            k(f"v_add_u32 v10, {(-3*AS if wrap else AS) & 0xffffffff:#x}, v10", f"v_add_u32 v11, {(-3*WSL if wrap else WSL) & 0xffffffff:#x}, v11")
            interleave(k, M[1:], reads((kt+1) & 1), [1]*14 + [0]*5)
        else:
            k(*M)
    if st0 is not None: stamp(k, st0+2)
    k("s_barrier")
    k("v_lshlrev_b32 v25, 4, v1", "s_mul_i32 s32, s29, 15360", "v_add_u32 v27, s32, v25")
    k("s_nop 7")
    for tt in range(4):
        lw = k.newlab("rw")
        k(f"s_cmp_eq_u32 s29, {tt}", f"s_cbranch_scc1 {lw}")
        k(f"s_sub_u32 s32, s29, {tt+1}", "s_and_b32 s32, s32, 3", "s_mul_i32 s32, s32, 5120", f"s_add_u32 s32, s32, {tt*15360}", "v_add_u32 v26, s32, v25")
        for ft in range(5):
            a_ = AC + (ft*4+tt)*4
            k(f"ds_write_b128 v26, v[{a_}:{a_+3}] offset:{ft*1024}")
        k.lab(lw)
    k("s_waitcnt lgkmcnt(0)", "s_barrier")
    le = k.newlab("e"); labs = [k.newlab("own") for _ in range(4)]
    for tt in range(4): k(f"s_cmp_eq_u32 s29, {tt}", f"s_cbranch_scc1 {labs[tt]}")
    for tt in range(4):
        k.lab(labs[tt])
        for ft in range(5):
            for r in range(4): k(f"v_mov_b32 v{FB+4*ft+r}, v{AC+(ft*4+tt)*4+r}")
        k(f"s_branch {le}")
    k.lab(le)
    for n in range(15): k(f"ds_read_b128 v[{AC+4*n}:{AC+4*n+3}], v27 offset:{n*1024}")
    k("s_waitcnt lgkmcnt(0) vmcnt(0)")
    for sidx in range(3):
        for ft in range(5):
            for r in range(0, 4, 2):
                k(f"v_pk_add_f32 v[{FB+4*ft+r}:{FB+4*ft+r+1}], v[{FB+4*ft+r}:{FB+4*ft+r+1}], v[{AC+4*(sidx*5+ft)+r}:{AC+4*(sidx*5+ft)+r+1}]")
    for ft in range(5):
        for p in range(2):
            a = FB + 4*ft + 2*p; x = RS + 2*ft + p
            k(f"v_cvt_pk_bf16_f32 v20, v{a}, v{a+1}", f"v_lshlrev_b32 v{a}, 16, v20", f"v_and_b32 v{a+1}, 0xffff0000, v20")
            k(f"v_lshlrev_b32 v21, 16, v{x}", f"v_and_b32 v22, 0xffff0000, v{x}", f"v_add_f32 v{a}, v{a}, v21", f"v_add_f32 v{a+1}, v{a+1}, v22")
            k(f"v_cvt_pk_bf16_f32 v{x}, v{a}, v{a+1}")
            if stdst: k(f"v_lshlrev_b32 v{a}, 16, v{x}", f"v_and_b32 v{a+1}, 0xffff0000, v{x}")
        k(f"ds_write_b64 v30, v[{RS+2*ft}:{RS+2*ft+1}] offset:{ft*32}")
    k("s_waitcnt lgkmcnt(0)")
    for n in range(3): k(f"ds_read_b128 v[{AC+4*n}:{AC+4*n+3}], v31 offset:{n*1024}")
    k("v_cmp_gt_u32 vcc, 32, v1")
    for n in range(3):
        if n == 2: k("s_and_saveexec_b64 s[36:37], vcc")
        k(f"s_waitcnt lgkmcnt({2-n})", f"buffer_store_dwordx4 v[{AC+4*n}:{AC+4*n+3}], v{12+n}, s[16:19], 0 offen")
    k("s_mov_b64 exec, s[36:37]")
    if stdst:
        def xsum(v, t):
            k(f"v_mov_b32 v{t}, v{v}", "s_nop 1", f"v_permlane16_swap_b32 v{v}, v{t}", f"v_add_f32 v{v}, v{v}, v{t}")
            k(f"v_mov_b32 v{t}, v{v}", "s_nop 1", f"v_permlane32_swap_b32 v{v}, v{t}", f"v_add_f32 v{v}, v{v}, v{t}")
        k(f"v_add_f32 v20, v{FB}, v{FB+1}")
        for i in range(2, 20): k(f"v_add_f32 v20, v20, v{FB+i}")
        xsum(20, 22)
        k("v_mul_f32 v23, 0x3c4ccccd, v20", "v_mov_b32 v21, 0")
        for i in range(20): k(f"v_sub_f32 v22, v{FB+i}, v23", "v_fmac_f32 v21, v22, v22")
        xsum(21, 22)
        k("v_lshlrev_b32 v28, 6, v28", "s_lshl_b32 s32, s27, 3", "v_add_u32 v28, s32, v28")
        k("v_cmp_gt_u32 vcc, 16, v1", "s_and_saveexec_b64 s[36:37], vcc")
        k("buffer_store_dwordx2 v[20:21], v28, s[20:23], 0 offen")
        k("s_mov_b64 exec, s[36:37]")
    k("s_waitcnt vmcnt(0)", "s_barrier")
    if st0 is not None: stamp(k, st0+3)
    if stdst:
        k("s_lshr_b32 s32, s26, 1", f"s_add_u32 s32, s32, {L*320 + (264 if kind == 'w' else 296)}")
        k("s_and_b32 s33, s26, 1", "s_lshl_b32 s33, s33, 3", "s_add_u32 s33, s33, s27")
        fsignal(k, 32, 33)
    k(f"s_branch {lend}")
    k.lab(lload)
    k("s_lshl_b32 s32, s26, 6", "s_lshl_b32 s33, s28, 4", "s_add_u32 s32, s32, s33", "v_lshrrev_b32 v25, 4, v1", "v_and_b32 v26, 15, v1", f"s_mov_b32 s33, {AP}")
    for jj in range(4):
        if kind == 'w':
            k(f"v_add_u32 v27, {4*jj}, v25", f"v_xor_b32 v{12+jj}, v26, v27", "v_add_u32 v27, s32, v27", f"v_mul_u32_u24 v{16+jj}, 48, v27")
        else:
            k(f"v_add_u32 v27, {4*jj}, v25", "v_xor_b32 v28, v26, v27", "v_add_u32 v27, s32, v27", "v_mul_lo_u32 v27, v27, s33", "v_lshl_add_u32 v27, v28, 4, v27", f"v_subrev_u32 v{2+jj}, {jj*1024}, v27")
    k("s_mov_b32 s39, 98304")
    k("s_lshl_b32 s34, s28, 12")
    def al(kt):
        st = (kt + R) % NST
        if kind == 'w':
            Ls = []
            for j in range(4):
                Ls += [f"s_add_u32 m0, s34, {st*AS + j*1024}"]
                Ls += [f"v_add_u32 v25, {16*kt}, v{12+j}", "v_mul_u32_u24 v26, 171, v25", "v_lshrrev_b32 v26, 9, v26", "v_mul_u32_u24 v27, 3, v26", "v_sub_u32 v27, v25, v27",
                       "v_mul_lo_u32 v26, v26, s39", "v_lshl_add_u32 v26, v27, 4, v26", f"v_add_u32 v{2+j}, v26, v{16+j}",
                       f"buffer_load_dwordx4 v{2+j}, s[4:7], 0 offen sc1 lds"]
            return Ls
        return [f"s_add_u32 m0, s34, {st*AS}", f"s_mov_b32 s35, {kt*256}"] + [f"buffer_load_dwordx4 v{2+j}, s[4:7], s35 offen offset:{j*1024} sc1 lds" for j in range(4)]
    loader_phase(k, NK, wd, al, 2, nxt)
    k.lab(lend)

def stamps_out2(k, n, wg):
    assert n <= 14
    if RT:
        lab = k.newlab("nost")
        k("s_waitcnt lgkmcnt(0)", "s_cmp_lg_u32 s29, 0", f"s_cbranch_scc1 {lab}")
        srd(k, 72, 'DBG')
        k("s_lshl_b32 s38, s2, 6", "v_mov_b32 v1, s38")
        for i in range(n):
            k(f"v_mov_b32 v2, s{40+2*i}", f"buffer_store_dword v2, v1, s[72:75], 0 offen offset:{4*i}")
        k.lab(lab)
        return
    lab = k.newlab("nost")
    k("s_waitcnt lgkmcnt(0)")
    k(f"s_cmp_lg_u32 s2, {wg}", f"s_cbranch_scc1 {lab}")
    k("s_cmp_lg_u32 s29, 0", f"s_cbranch_scc1 {lab}")
    k("s_load_dwordx2 s[72:73], s[0:1], 64", "s_waitcnt lgkmcnt(0)")
    k("s_and_b32 s73, s73, 0xffff", "s_mov_b32 s74, 256", "s_mov_b32 s75, 0x00020000")
    k("v_mov_b32 v1, 0")
    for i in range(n):
        k(f"s_sub_u32 s{41+2*i}, s{40+2*i}, s40")
        k(f"v_mov_b32 v2, s{41+2*i}")
        k(f"buffer_store_dword v2, v1, s[72:75], 0 offen offset:{4*i}")
    k.lab(lab)

def ph_prep(k):
    done = k.newlab("pdone"); lcs = k.newlab("cs"); lwq = k.newlab("wq"); lgu = k.newlab("gu"); lod = k.newlab("od")
    k("s_load_dwordx2 s[40:41], s[0:1], 8", "s_load_dwordx2 s[42:43], s[0:1], 32", "s_load_dwordx2 s[44:45], s[0:1], 40", "s_load_dwordx2 s[46:47], s[0:1], 16", "s_load_dwordx2 s[48:49], s[0:1], 48")
    k("s_lshl_b32 s36, s2, 1", "s_lshr_b32 s37, s29, 2", "s_add_u32 s36, s36, s37", "v_and_b32 v0, 255, v0", "s_mov_b32 s83, 0")
    k("s_waitcnt lgkmcnt(0)")
    def insrd(sreg, p, name):
        k(f"s_mov_b32 s{sreg}, s{p}", f"s_and_b32 s{sreg+1}, s{p+1}, 0xffff", f"s_mov_b32 s{sreg+2}, {INSZ[name]}", f"s_mov_b32 s{sreg+3}, 0x00020000")
    srd(k, 4, 'x'); insrd(8, 40, 'wqkv'); insrd(12, 42, 'wg'); insrd(16, 44, 'wu'); srd(k, 20, 'STX'); srd(k, 68, 'CS')
    insrd(52, 46, 'wo'); insrd(56, 48, 'wd'); srd(k, 60, 'WQ'); srd(k, 64, 'WGU'); srd(k, 72, 'WO'); srd(k, 76, 'WD')
    k("s_mov_b32 s44, 0")
    k("v_and_b32 v12, 63, v0", "s_lshl_b32 s37, s2, 3", "s_add_u32 s37, s37, s29", "s_mul_i32 s38, s37, 1280", "v_lshlrev_b32 v2, 4, v12", "v_mov_b32 v3, 0x7ffffff0")
    k("v_cmp_gt_u32 vcc, 16, v12", "v_add_u32 v4, 1024, v2", "s_nop 0", "v_cndmask_b32 v4, v3, v4, vcc")
    k("buffer_load_dwordx4 v[100:103], v2, s[4:7], s38 offen", "buffer_load_dwordx4 v[104:107], v4, s[4:7], s38 offen")
    k("s_lshl_b32 s39, s37, 10", "v_mov_b32 v4, 0", "v_mov_b32 v5, 0", "v_mov_b32 v6, 0", "v_mov_b32 v7, 0", "s_min_u32 s39, s39, 0x7ff00000")
    k("buffer_store_dwordx4 v[4:7], v2, s[92:95], s39 offen sc1")
    k("s_waitcnt vmcnt(1)")
    for i in range(8):
        k(f"v_lshlrev_b32 v{108+2*i}, 16, v{100+i}", f"v_and_b32 v{109+2*i}, 0xffff0000, v{100+i}")
    def wsum(v):
        for sh in (1, 2, 4, 8):
            k("s_nop 1", f"v_add_f32_dpp v{v}, v{v}, v{v} row_shr:{sh} row_mask:0xf bank_mask:0xf bound_ctrl:0")
        k("s_nop 1", f"v_readlane_b32 s40, v{v}, 15", f"v_readlane_b32 s41, v{v}, 31", f"v_readlane_b32 s42, v{v}, 47", f"v_readlane_b32 s43, v{v}, 63", "s_nop 1")
        k(f"v_mov_b32 v{v}, s40", f"v_add_f32 v{v}, s41, v{v}", f"v_add_f32 v{v}, s42, v{v}", f"v_add_f32 v{v}, s43, v{v}")
    k("v_add_f32 v8, v108, v109")
    for i in range(2, 16): k(f"v_add_f32 v8, v8, v{108+i}")
    wsum(8)
    k("v_mul_f32 v10, 0x3acccccd, v8", "v_mov_b32 v9, 0", "v_mov_b32 v11, 0")
    for i in range(8): k(f"v_sub_f32 v13, v{108+i}, v10", "v_fmac_f32 v9, v13, v13")
    for i in range(8, 16): k(f"v_sub_f32 v13, v{108+i}, v10", "v_fmac_f32 v11, v13, v13")
    k("v_cndmask_b32 v11, 0, v11, vcc", "v_add_f32 v9, v9, v11")
    wsum(9)
    k("s_lshl_b32 s38, s37, 3", "v_mov_b32 v2, s38", "s_mov_b64 s[40:41], exec", "s_mov_b64 exec, 1", "buffer_store_dwordx2 v[8:9], v2, s[20:23], 0 offen sc1", "s_mov_b64 exec, s[40:41]")
    k("s_add_u32 s36, s36, 32")
    k("s_cmp_ge_u32 s36, 502", f"s_cbranch_scc1 {done}")
    k("s_cmp_ge_u32 s36, 430", f"s_cbranch_scc1 {lod}")
    k("s_cmp_ge_u32 s36, 270", f"s_cbranch_scc1 {lgu}")
    k("s_cmp_ge_u32 s36, 110", f"s_cbranch_scc1 {lwq}")
    k.lab(lcs)
    k("s_sub_u32 s36, s36, 32")
    k("s_mov_b32 s37, 3840", "s_mov_b32 s38, 0", "s_mov_b64 s[40:41], s[8:9]", "s_mov_b32 s42, s10", "s_mov_b32 s39, s36")
    l1 = k.newlab("m")
    k("s_cmp_lt_u32 s36, 30", f"s_cbranch_scc1 {l1}")
    k("s_mov_b32 s37, 3072", "s_mov_b32 s38, 2048", "s_mov_b64 s[40:41], s[12:13]", "s_mov_b32 s42, s14", "s_sub_u32 s39, s36, 30")
    k("s_cmp_lt_u32 s36, 54", f"s_cbranch_scc1 {l1}")
    k("s_mov_b32 s38, 3584", "s_mov_b64 s[40:41], s[16:17]", "s_sub_u32 s39, s36, 54")
    k.lab(l1)
    k("s_mov_b32 s43, 0x00020000")
    k("v_lshrrev_b32 v1, 4, v0", "v_mul_u32_u24 v1, 40, v1", "v_mul_lo_u32 v1, v1, s37", "v_and_b32 v2, 15, v0", "v_lshl_add_u32 v1, v2, 3, v1")
    k("s_lshl_b32 s44, s39, 7", "v_add_u32 v1, s44, v1", "s_mov_b32 s45, 0")
    for r in range(40):
        k(f"buffer_load_dwordx2 v[{16+2*r}:{17+2*r}], v1, s[40:43], s45 offen", "s_add_u32 s45, s45, s37")
    for a_ in range(4): k(f"v_mov_b32 v{4+a_}, 0")
    k("s_waitcnt vmcnt(0)")
    for r in range(40):
        k(f"v_lshlrev_b32 v8, 16, v{16+2*r}", f"v_and_b32 v9, 0xffff0000, v{16+2*r}", f"v_lshlrev_b32 v10, 16, v{17+2*r}", f"v_and_b32 v11, 0xffff0000, v{17+2*r}",
          "v_add_f32 v4, v4, v8", "v_add_f32 v5, v5, v9", "v_add_f32 v6, v6, v10", "v_add_f32 v7, v7, v11")
    k("s_lshr_b32 s44, s29, 2", "s_lshl_b32 s44, s44, 12", "s_add_u32 s44, s44, 1024", "v_lshlrev_b32 v2, 4, v0", "v_add_u32 v2, s44, v2", "ds_write_b128 v2, v[4:7]")
    k("s_mov_b32 s83, 1")
    k(f"s_branch {done}")
    k.lab(lwq)
    k("s_sub_u32 s36, s36, 110", "s_mul_hi_u32 s37, s36, 0x1999999a", "s_mul_i32 s38, s37, 10", "s_sub_u32 s38, s36, s38")
    k("v_lshrrev_b32 v1, 5, v0", "v_and_b32 v2, 31, v0", "v_lshrrev_b32 v3, 1, v2", "v_and_b32 v4, 3, v1", "v_lshlrev_b32 v4, 2, v4", "v_xor_b32 v3, v3, v4")
    k("v_and_b32 v4, 1, v2", "v_lshl_add_u32 v3, v3, 1, v4", "v_lshrrev_b32 v4, 4, v3", "v_and_b32 v3, 15, v3")
    k("v_mul_u32_u24 v5, 52, v3", "v_lshrrev_b32 v5, 8, v5", "v_mul_u32_u24 v6, 5, v5", "v_sub_u32 v6, v3, v6")
    k("s_lshl_b32 s39, s37, 1", "v_add_u32 v4, s39, v4", "v_mul_u32_u24 v4, 40, v4", "v_mul_u32_u24 v5, 1280, v5", "v_add_u32 v4, v4, v5", "v_lshl_add_u32 v4, v6, 3, v4")
    k("s_lshl_b32 s39, s38, 6", "v_add_u32 v1, s39, v1", "v_mul_u32_u24 v1, 3840, v1", "v_add_u32 v1, v1, v4")
    k("v_cmp_eq_u32 vcc, 15, v3", "v_mov_b32 v5, 0x7ffffff0", "s_nop 0", "v_cndmask_b32 v1, v1, v5, vcc")
    for i in range(8): k(f"s_mov_b32 s39, {i*8*3840}", f"buffer_load_dwordx2 v[{16+2*i}:{17+2*i}], v1, s[8:11], s39 offen")
    k("s_lshr_b32 s40, s29, 2", "s_lshl_b32 s40, s40, 14", "s_add_u32 s40, s40, 16384", "v_lshlrev_b32 v2, 3, v0", "v_add_u32 v2, s40, v2")
    for i in range(8): k(f"s_waitcnt vmcnt({7-i})", f"ds_write_b64 v2, v[{16+2*i}:{17+2*i}] offset:{i*2048}")
    k("v_and_b32 v12, 63, v0", "v_lshrrev_b32 v3, 5, v12", "v_lshlrev_b32 v3, 11, v3", "v_and_b32 v4, 31, v12", "v_lshl_add_u32 v3, v4, 4, v3", "s_lshl_b32 s41, s28, 9", "v_add_u32 v3, s41, v3")
    k("v_add_u32 v4, s40, v3", "s_lshl_b32 s39, s36, 14", "s_waitcnt lgkmcnt(0)")
    for i in range(4): k(f"ds_read_b128 v[{32+4*i}:{35+4*i}], v4 offset:{i*4096}")
    for i in range(4): k(f"s_waitcnt lgkmcnt({3-i})", f"s_add_u32 s41, s39, {i*4096}", f"buffer_store_dwordx4 v[{32+4*i}:{35+4*i}], v3, s[60:63], s41 offen sc1")
    k(f"s_branch {done}")
    k.lab(lgu)
    k("s_sub_u32 s36, s36, 270", "s_mul_hi_u32 s37, s36, 0x1999999a", "s_mul_i32 s38, s37, 10", "s_sub_u32 s38, s36, s38")
    k("s_mov_b32 s40, 43691", "s_mul_i32 s41, s37, 192", "s_mul_i32 s42, s38, 196608", "s_add_u32 s41, s41, s42")
    for j in range(3):
        k(f"v_add_u32 v1, {256*j}, v0", "v_mul_lo_u32 v2, v1, s40", "v_lshrrev_b32 v2, 19, v2", "v_mul_u32_u24 v3, 12, v2", "v_sub_u32 v3, v1, v3",
          "v_mul_u32_u24 v2, 3072, v2", "v_lshl_add_u32 v2, v3, 4, v2")
        k(f"buffer_load_dwordx4 v[{16+4*j}:{19+4*j}], v2, s[12:15], s41 offen", f"buffer_load_dwordx4 v[{32+4*j}:{35+4*j}], v2, s[16:19], s41 offen")
    k("s_mul_i32 s39, s36, 24576", "v_lshlrev_b32 v2, 4, v0", "s_waitcnt vmcnt(0)")
    for j in range(3):
        k(f"s_add_u32 s40, s39, {j*4096}", f"buffer_store_dwordx4 v[{16+4*j}:{19+4*j}], v2, s[64:67], s40 offen sc1")
        k(f"s_add_u32 s40, s39, {12288+j*4096}", f"buffer_store_dwordx4 v[{32+4*j}:{35+4*j}], v2, s[64:67], s40 offen sc1")
    k(f"s_branch {done}")
    k.lab(lod)
    k("s_sub_u32 s36, s36, 430")
    k("s_mul_hi_u32 s37, s36, 0x55555556", "s_mul_i32 s38, s37, 3", "s_sub_u32 s38, s36, s38")
    k("s_mov_b64 s[40:41], s[52:53]", "s_mov_b32 s42, s54", "s_mov_b64 s[44:45], s[72:73]", "s_mov_b32 s46, s74", "s_mov_b32 s39, s36", "s_mov_b32 s51, 1")
    l3 = k.newlab("isd")
    k("s_cmp_lt_u32 s36, 24", f"s_cbranch_scc1 {l3}")
    k("s_sub_u32 s39, s36, 24", "s_mul_hi_u32 s37, s39, 0x2aaaaaab", "s_mul_i32 s38, s37, 6", "s_sub_u32 s38, s39, s38")
    k("s_mov_b64 s[40:41], s[56:57]", "s_mov_b32 s42, s58", "s_mov_b64 s[44:45], s[76:77]", "s_mov_b32 s46, s78", "s_mov_b32 s51, 0")
    k.lab(l3)
    k("s_mov_b32 s43, 0x00020000", "s_mov_b32 s47, 0x00020000")
    k("s_mov_b32 s48, 52429", "s_mul_i32 s49, s37, 160", "s_lshl_b32 s50, s38, 8", "v_mov_b32 v8, 0x7ffffff0")
    for j in range(10):
        l4 = k.newlab("nt")
        k(f"v_add_u32 v1, {256*j}, v0", "v_mul_lo_u32 v2, v1, s48", "v_lshrrev_b32 v2, 19, v2", "v_mul_u32_u24 v3, 10, v2", "v_sub_u32 v3, v1, v3", "v_add_u32 v2, s50, v2")
        k("s_mov_b64 vcc, 0", "s_cmp_eq_u32 s51, 0", f"s_cbranch_scc1 {l4}")
        k("v_mul_u32_u24 v4, 2731, v2", "v_lshrrev_b32 v4, 16, v4", "v_mul_u32_u24 v5, 24, v4", "v_sub_u32 v5, v2, v5", "v_mul_u32_u24 v4, 20, v4", "v_add_u32 v2, v4, v5", "v_cmp_le_u32 vcc, 20, v5")
        k.lab(l4)
        k("v_mul_u32_u24 v2, 1280, v2", "v_lshl_add_u32 v2, v3, 4, v2", "s_nop 1", "v_cndmask_b32 v2, v2, v8, vcc")
        k(f"buffer_load_dwordx4 v[{16+4*j}:{19+4*j}], v2, s[40:43], s49 offen")
    k("s_mul_i32 s39, s39, 40960", "v_lshlrev_b32 v2, 4, v0", "s_waitcnt vmcnt(0)")
    for j in range(10):
        k(f"s_add_u32 s48, s39, {j*4096}", f"buffer_store_dwordx4 v[{16+4*j}:{19+4*j}], v2, s[44:47], s48 offen sc1")
    k.lab(done)
    k("s_lshl_b32 s36, s29, 6", "v_mbcnt_lo_u32_b32 v1, -1, 0", "v_mbcnt_hi_u32_b32 v1, -1, v1", "v_add_u32 v0, s36, v1")
    k("s_waitcnt lgkmcnt(0)", "s_barrier")
    lnc = k.newlab("nocs")
    k("s_cmp_eq_u32 s83, 0", f"s_cbranch_scc1 {lnc}", "s_cmp_lg_u32 s28, 0", f"s_cbranch_scc1 {lnc}")
    k("v_lshlrev_b32 v2, 2, v1", "v_add_u32 v2, s44, v2")
    for g in range(16): k(f"ds_read_b32 v{16+g}, v2 offset:{g*256}")
    k("s_waitcnt lgkmcnt(0)")
    for g in range(1, 16): k(f"v_add_f32 v16, v16, v{16+g}")
    k("s_lshl_b32 s44, s39, 6", "v_add_u32 v3, s44, v1", "v_add_u32 v2, s38, v3")
    l2 = k.newlab("nq")
    k("s_cmp_lg_u32 s38, 0", f"s_cbranch_scc1 {l2}")
    k("s_mov_b32 s44, 52429", "v_mul_lo_u32 v4, v3, s44", "v_lshrrev_b32 v4, 20, v4")
    k("v_mul_u32_u24 v5, 20, v4", "v_sub_u32 v5, v3, v5", "v_lshrrev_b32 v6, 5, v4", "v_and_b32 v4, 31, v4")
    k("v_mul_u32_u24 v6, 20, v6", "v_add_u32 v5, v5, v6", "v_lshl_add_u32 v2, v4, 6, v5")
    k.lab(l2)
    k("v_lshlrev_b32 v2, 2, v2", "buffer_store_dword v16, v2, s[68:71], 0 offen sc1")
    k.lab(lnc)
    k("s_waitcnt vmcnt(0)", "s_barrier")
    k("s_memrealtime s[100:101]", "s_waitcnt lgkmcnt(0)", "v_mov_b32 v254, s100")
    lns = k.newlab("noslot")
    k("s_cmp_lg_u32 s29, 0", f"s_cbranch_scc1 {lns}")
    k("v_mov_b32 v22, 0", "s_mov_b64 s[36:37], exec", "s_mov_b64 exec, 1", "ds_write_b32 v22, v253", "s_waitcnt lgkmcnt(0)", "s_mov_b64 exec, s[36:37]")
    k.lab(lns)
    k("s_barrier", "v_mov_b32 v22, 0", "ds_read_b32 v23, v22", "s_waitcnt lgkmcnt(0)", "v_readfirstlane_b32 s2, v23", "s_nop 3", "s_and_b32 s2, s2, 31", "s_lshl_b32 s2, s2, 3",
      "s_getreg_b32 s24, hwreg(HW_REG_XCC_ID)", "s_and_b32 s24, s24, 7", "s_add_u32 s2, s2, s24")
    l5 = k.newlab("gb"); lp = k.newlab("gpoll"); lo = k.newlab("gok"); ln = k.newlab("notlast")
    k("s_cmp_lg_u32 s29, 0", f"s_cbranch_scc1 {l5}")
    k("s_and_b32 s38, s2, 7", "s_lshl_b32 s38, s38, 2", "s_add_u32 s38, s38, 64", "v_mov_b32 v24, s38", "v_mov_b32 v23, 1")
    k("buffer_atomic_add v23, v24, s[96:99], 0 offen sc0 sc1" if False else "s_nop 0")
    k("s_mov_b64 s[36:37], exec", "s_mov_b64 exec, 1", "buffer_atomic_add v23, v24, s[96:99], 0 offen sc0 sc1", "s_waitcnt vmcnt(0)", "s_mov_b64 exec, s[36:37]")
    k("v_readfirstlane_b32 s38, v23", "s_nop 3", "s_cmp_lg_u32 s38, 31", f"s_cbranch_scc1 {ln}")
    k("v_mov_b32 v24, 96", "v_mov_b32 v23, 1", "s_mov_b64 exec, 1", "buffer_atomic_add v23, v24, s[96:99], 0 offen sc0 sc1", "s_waitcnt vmcnt(0)", "s_mov_b64 exec, s[36:37]")
    k("v_readfirstlane_b32 s38, v23", "s_nop 3", "s_cmp_lg_u32 s38, 7", f"s_cbranch_scc1 {ln}")
    k("v_mov_b32 v24, 128", "v_mov_b32 v23, 1", "s_mov_b64 exec, 1", "buffer_store_dword v23, v24, s[96:99], 0 offen sc1", "s_mov_b64 exec, s[36:37]")
    k.lab(ln)
    k("v_mov_b32 v24, 128", "s_mov_b32 s38, 0")
    k.lab(lp)
    k("buffer_load_dword v23, v24, s[96:99], 0 offen sc1", "s_waitcnt vmcnt(0)", "v_cmp_gt_u32 vcc, 1, v23", "s_nop 4", f"s_cbranch_vccz {lo}",
      "s_add_u32 s38, s38, 1", "s_cmp_gt_u32 s38, 8000", f"s_cbranch_scc1 {lo}", "s_sleep 6", f"s_branch {lp}")
    k.lab(lo)
    k.lab(l5)
    k("s_barrier")

def gen_mega(name, nph=10, stamps=None):
    k = K(name, 256, 512, 163840, sgpr=102)
    done = k.newlab("done")
    k("s_load_dwordx2 s[84:85], s[0:1], 72", "s_load_dwordx2 s[86:87], s[0:1], 0", "s_load_dwordx2 s[88:89], s[0:1], 56", "s_load_dwordx2 s[96:97], s[0:1], 64")
    k("s_cmp_ge_u32 s2, 256", f"s_cbranch_scc1 {done}")
    k("v_and_b32 v1, 63, v0", "v_lshrrev_b32 v25, 6, v0", "s_nop 0", "v_readfirstlane_b32 s29, v25", "s_nop 3", "s_and_b32 s28, s29, 3")
    k("s_waitcnt lgkmcnt(0)")
    srd(k, 92, "CNT")
    k("s_and_b32 s97, s97, 0xffff", "s_mov_b32 s98, 256", "s_mov_b32 s99, 0x00020000")
    lns = k.newlab("noslot")
    k("s_getreg_b32 s24, hwreg(HW_REG_XCC_ID)", "s_and_b32 s24, s24, 7", "v_mov_b32 v253, 1")
    k("s_cmp_lg_u32 s29, 0", f"s_cbranch_scc1 {lns}")
    k("s_lshl_b32 s38, s24, 2", "v_mov_b32 v24, s38")
    k("s_mov_b64 s[36:37], exec", "s_mov_b64 exec, 1")
    k("buffer_atomic_add v253, v24, s[96:99], 0 offen sc0 sc1")
    k("s_mov_b64 exec, s[36:37]")
    k.lab(lns)
    if stamps is not None: k("s_memrealtime s[100:101]", "s_waitcnt lgkmcnt(0)", "v_mov_b32 v255, s100")
    ph_prep(k)
    if stamps is not None: stamp(k, 0); k("v_readfirstlane_b32 s66, v255", "v_readfirstlane_b32 s64, v254")
    seq = [(L, kind) for L in range(2) for kind in 'qawgd']
    wds = {}; r = 0
    for (L, kind) in seq:
        if kind == 'a': continue
        wds[(L, kind)] = WDesc(kind, r); r = (r + {'q': 10, 'g': 10, 'w': 6, 'd': 12}[kind]) % 4
    gl = [x for x in seq if x[1] != 'a']
    l0 = k.newlab("w0")
    k("s_cmp_lt_u32 s29, 4", f"s_cbranch_scc1 {l0}")
    wds[gl[0]].setup(k)
    for kt in range(4): k(*wds[gl[0]].wl(kt))
    k.lab(l0)
    for ph, (L, kind) in enumerate(seq):
        st0 = (1 + 4*stamps.index(ph)) if (stamps is not None and ph in stamps) else None
        if kind == 'a':
            ph_attn(k, L, st0); continue
        wd = wds[(L, kind)]; gi = gl.index((L, kind)); nxt = wds[gl[gi+1]] if gi + 1 < len(gl) else None
        if kind == 'q': ph_qkv(k, L, 'x' if L == 0 else 'XB', 'STX' if L == 0 else 'STB', wd, nxt, st0)
        elif kind == 'g': ph_glu(k, L, wd, nxt, st0)
        else: ph_out(k, L, kind, wd, nxt, st0)
    if stamps is not None: stamps_out2(k, 14, 17)
    k.lab(done)
    k("s_endpgm")
    return k

def gen_prep2(name):
    k = gen.gen_prep(name)
    i = k.L.index("    buffer_store_dwordx2 v[4:5], v1, s[20:23], 0 offen")
    extra = ["s_load_dwordx2 s[64:65], s[0:1], 72", "s_waitcnt lgkmcnt(0)", f"s_add_u32 s64, s64, {WS['CNT']:#x}", "s_addc_u32 s65, s65, 0", "s_and_b32 s65, s65, 0xffff",
             f"s_mov_b32 s66, {SZ['CNT']}", "s_mov_b32 s67, 0x00020000", "v_lshlrev_b32 v1, 1, v1", "v_mov_b32 v4, 0", "v_mov_b32 v5, 0", "v_mov_b32 v6, 0", "v_mov_b32 v7, 0", "s_nop 1",
             "buffer_store_dwordx4 v[4:7], v1, s[64:67], 0 offen"]
    k.L[i+1:i+1] = ["    " + e for e in extra]
    return k

if __name__ == "__main__":
    if len(sys.argv) > 1:
        st = [int(x) for x in sys.argv[1].split(",")]
        m = gen_mega("mega_kernel", 10, st)
        build([m], [m], "mb.s")
    else:
        m = gen_mega("mega_kernel")
        build([m], [m], "interleave_layers__sliding_block__glu_gated_glu__prompt.s")
```

```python
import json, sys, struct
sys.path.insert(0, 'dev')
import gen
from gen import K, KA, INSZ, interleave, merge_stats, rne_bf16, stamp, build, ptr_loads, ptr_srds

MB = 0x100000
WS = dict(QKV0=0, QKV1=8*MB, O0=16*MB, O1=19*MB+0x80000, XA0=23*MB, XA1=25*MB+0x80000, XB=28*MB+0x40000, H0=31*MB, H1=38*MB,
          STX=45*MB, STA0=45*MB+0x40000, STA1=45*MB+0x80000, STB=45*MB+0xC0000, CS=46*MB, CNT=46*MB+0x40000,
          WQ=47*MB, WGU=50*MB, WO=54*MB, WD=55*MB)
SZ = dict(QKV0=2048*1920*2, QKV1=2048*1920*2, O0=32*2048*48, O1=32*2048*48, XA0=2048*1280, XA1=2048*1280, XB=2048*1280, H0=2048*3072, H1=2048*3072,
          STX=2048*64, STA0=2048*64, STA1=2048*64, STB=2048*64, CS=5120*4, CNT=640*128,
          WQ=16*640*256, WGU=16*640*384, WO=8*768*160, WD=8*1536*160)
gen.WS.clear(); gen.WS.update(WS); gen.SZ.clear(); gen.SZ.update(SZ)
SC = " sc1"
import os
PAT = int(os.environ.get('PAT','1')); PREPK = int(os.environ.get('PREPK','1')); RT = int(os.environ.get('RT','0')); FINE = int(os.environ.get("FINE", "0")); XAL = 1; DUP = int(os.environ.get("DUP", "0"))
_K_call = K.__call__
def _call(self, *ts):
    for t in ts:
        _K_call(self, t)
        if DUP and t.startswith("buffer_store") and t.endswith(" sc1"):
            _K_call(self, t[:-4])
K.__call__ = _call

if RT:
    def stamp(k, i): k(f"s_memrealtime s[{40+2*i}:{41+2*i}]")
WS['DBG'] = 60*MB; SZ['DBG'] = 256*64
gen.WS['DBG'] = 60*MB; gen.SZ['DBG'] = 256*64
def srd(k, sreg, name):
    if name in WS:
        k(f"s_add_u32 s{sreg}, s84, {WS[name]:#x}", f"s_addc_u32 s{sreg+1}, s85, 0", f"s_mov_b32 s{sreg+2}, {SZ[name]}")
    else:
        p = {'x': 86, 'out': 88}[name]
        k(f"s_mov_b32 s{sreg}, s{p}", f"s_mov_b32 s{sreg+1}, s{p+1}", f"s_mov_b32 s{sreg+2}, {INSZ[name]}")
    k(f"s_and_b32 s{sreg+1}, s{sreg+1}, 0xffff", f"s_mov_b32 s{sreg+3}, 0x00020000")

def xcd_map16(k):
    if XAL:
        k("s_and_b32 s24, s2, 7", "s_lshr_b32 s25, s2, 3", "s_lshl_b32 s26, s24, 1", "s_and_b32 s27, s25, 1", "s_add_u32 s26, s26, s27", "s_lshr_b32 s27, s25, 1")
        return
    k("s_and_b32 s24, s2, 7", "s_lshr_b32 s25, s2, 3")
    k("s_lshr_b32 s26, s24, 1", "s_lshl_b32 s26, s26, 2", "s_and_b32 s27, s25, 3", "s_add_u32 s26, s26, s27")
    k("s_and_b32 s27, s24, 1", "s_lshl_b32 s27, s27, 3", "s_lshr_b32 s25, s25, 2", "s_add_u32 s27, s27, s25")

def poll(k, emit_addr, target):
    lp = k.newlab("poll"); lo = k.newlab("pok")
    k("s_cmp_lg_u32 s29, 3", f"s_cbranch_scc1 {lo}")
    emit_addr(k)
    k("s_mov_b32 s38, 0")
    k("buffer_load_dword v21, v24, s[92:95], 0 offen sc1", "s_sleep 3", "buffer_load_dword v22, v24, s[92:95], 0 offen sc1", "s_sleep 3")
    k.lab(lp)
    for r in (23, 21, 22):
        nx = {23: 21, 21: 22, 22: 23}[r]
        k(f"buffer_load_dword v{r}, v24, s[92:95], 0 offen sc1", "s_waitcnt vmcnt(2)", f"v_cmp_gt_u32 vcc, {target}, v{nx}", "s_nop 4", f"s_cbranch_vccz {lo}", "s_sleep 2")
    k("s_add_u32 s38, s38, 1", "s_cmp_gt_u32 s38, 4000", f"s_cbranch_scc0 {lp}")
    k.lab(lo)

def signal(k, sidx_reg):
    l = k.newlab("nosig"); l2 = k.newlab("nosig2")
    k("s_cmp_lg_u32 s29, 0", f"s_cbranch_scc1 {l}")
    k(f"s_lshl_b32 s38, s{sidx_reg}, 7", "v_mov_b32 v24, s38", "v_mov_b32 v23, 1")
    k("v_cmp_eq_u32 vcc, 0, v1", "s_and_saveexec_b64 s[36:37], vcc", f"s_cbranch_execz {l2}")
    k("buffer_atomic_add v23, v24, s[92:95], 0 offen sc1")
    k.lab(l2)
    k("s_mov_b64 exec, s[36:37]")
    k.lab(l)

def fsignal(k, sidx_reg, word_reg):
    l = k.newlab("nosig"); l2 = k.newlab("nosig2")
    k("s_cmp_lg_u32 s29, 0", f"s_cbranch_scc1 {l}")
    k(f"s_lshl_b32 s38, s{sidx_reg}, 7", f"s_lshl_b32 s39, s{word_reg}, 2", "s_add_u32 s38, s38, s39", "v_mov_b32 v24, s38", "v_mov_b32 v23, 1")
    k("v_cmp_eq_u32 vcc, 0, v1", "s_and_saveexec_b64 s[36:37], vcc", f"s_cbranch_execz {l2}")
    k("buffer_store_dword v23, v24, s[92:95], 0 offen")
    k.lab(l2)
    k("s_mov_b64 exec, s[36:37]")
    k.lab(l)

def fpoll_addr(idx_emit, n):
    def f(k):
        idx_emit(k)
        k("s_lshl_b32 s38, s38, 7", f"v_and_b32 v24, {n-1}, v1", "v_lshlrev_b32 v24, 2, v24", "v_add_u32 v24, s38, v24")
    return f

AS = 16384; WB = 65536; WSL = 24576
class WDesc:
    def __init__(s_, kind, r):
        s_.kind = kind; s_.r = r
        s_.name, s_.tile, s_.per, s_.kb, s_.sh = {'q': ('WQ', 163840, 4096, 16384, 4), 'g': ('WGU', 245760, 6144, 24576, 4),
                                          'w': ('WO', 768*160, 5120, 20480, 5), 'd': ('WD', 1536*160, 5120, 20480, 5)}[kind]
    def setup(s_, k):
        srd(k, 76, s_.name)
        k(f"s_lshr_b32 s82, s2, {s_.sh}", f"s_mul_i32 s82, s82, {s_.tile}", f"s_mul_i32 s80, s28, {s_.per}", "s_add_u32 s82, s82, s80")
        k("v_lshlrev_b32 v8, 4, v1", "v_add_u32 v8, s82, v8", "v_add_u32 v9, 4096, v8")
    def wl(s_, kt):
        sl = (kt + s_.r) % 4; n = s_.per // 1024
        Ls = [f"s_add_u32 m0, s80, {WB + sl*WSL}", f"s_mov_b32 s81, {kt*s_.kb}"]
        Ls += [f"buffer_load_dwordx4 v8, s[76:79], s81 offen offset:{j*1024} sc1 lds" for j in range(4)]
        if n > 4:
            Ls += [f"s_add_u32 m0, s80, {WB + sl*WSL + 4096}", "s_nop 0"]
            Ls += [f"buffer_load_dwordx4 v9, s[76:79], s81 offen offset:{j*1024} sc1 lds" for j in range(n - 4)]
        return Ls

def loader_phase(k, NK, wd, alist, nepi, nxt):
    NST = 4
    ops = []
    def iss(L, st):
        for t in L:
            k(t)
            if t.startswith("buffer_load"): ops.append(st)
    wd.setup(k)
    k("s_barrier")
    ai = -1
    def issue(upto):
        nonlocal ai
        while ai < min(upto, NK - 1):
            ai += 1
            iss(alist(ai), ai)
            if ai >= NST: iss(wd.wl(ai), ai)
    issue(1)
    for kt in range(NK):
        last = max(i for i, s in enumerate(ops) if s == kt)
        k(f"s_waitcnt vmcnt({len(ops)-1-last})", "s_barrier")
        issue(kt + NST - 1)
    if nxt:
        nxt.setup(k)
        for kt in range(3): k(*nxt.wl(kt))
    k("s_barrier")
    if nxt: k(*nxt.wl(3))
    for _ in range(nepi): k("s_barrier")

def act_dma_voffs(k):
    k("s_lshl_b32 s32, s26, 7", "s_lshl_b32 s33, s28, 5", "s_add_u32 s32, s32, s33")
    k("v_lshrrev_b32 v25, 3, v1", "v_add_u32 v25, s32, v25", "v_mul_u32_u24 v25, 1280, v25")
    k("v_and_b32 v26, 7, v1", "v_lshrrev_b32 v27, 4, v1", "v_xor_b32 v26, v26, v27", "v_lshlrev_b32 v26, 4, v26")
    k("v_xor_b32 v27, 64, v26")
    for j in range(4):
        k(f"v_add_u32 v{2+j}, v25, v{26 + (j&1)}")
        if j: k(f"v_add_u32 v{2+j}, {j*(8*1280-1024)}, v{2+j}")

def cnt_single(idx_sreg, base):
    def f(k): k(f"s_add_u32 s38, s{idx_sreg}, {base}", "s_lshl_b32 s38, s38, 7", "v_mov_b32 v24, s38")
    return f

def ph_qkv(k, L, xsrc, statsrc, wd, nxt, st0=None):
    NK = 10; NST = 4; R = wd.r
    lload = k.newlab("loader"); lend = k.newlab("end")
    xcd_map16(k)
    srd(k, 4, xsrc); srd(k, 16, f'QKV{L}'); srd(k, 20, statsrc); srd(k, 12, 'CS')
    k("s_cmp_ge_u32 s29, 4", f"s_cbranch_scc1 {lload}")
    k("s_and_b32 s30, s29, 1", "s_lshr_b32 s31, s29, 1")
    k("v_and_b32 v25, 31, v1", "s_lshl_b32 s32, s26, 7", "s_lshl_b32 s33, s31, 6", "s_add_u32 s32, s32, s33", "v_add_u32 v28, s32, v25")
    ALT = (L == 0 and not PREPK)
    k(f"v_lshlrev_b32 v29, {3 if ALT else 6}, v28")
    k("v_lshrrev_b32 v30, 5, v1", "v_lshlrev_b32 v30, 4, v30", "s_lshl_b32 s32, s27, 9", "s_lshl_b32 s33, s30, 8", "s_add_u32 s32, s32, s33", "v_add_u32 v30, s32, v30")
    k("v_and_b32 v25, 31, v1", "s_lshl_b32 s32, s31, 6", "v_add_u32 v26, s32, v25", "v_lshlrev_b32 v26, 7, v26")
    k("v_lshrrev_b32 v25, 1, v25", "v_and_b32 v25, 7, v25", "v_lshrrev_b32 v27, 5, v1", "v_xor_b32 v25, v25, v27")
    for s in range(4):
        k(f"v_xor_b32 v27, {2*s}, v25", f"v_lshl_add_u32 v{10+s}, v27, 4, v26", f"v_add_u32 v{10+s}, {R*AS}, v{10+s}")
    k("v_lshrrev_b32 v25, 5, v1", "v_lshlrev_b32 v25, 3, v25", "v_bfe_u32 v26, v1, 2, 2", "v_add_u32 v25, v25, v26", "v_lshlrev_b32 v25, 8, v25")
    k("v_bfe_u32 v27, v1, 4, 1", "v_lshl_add_u32 v25, v27, 5, v25", "v_and_b32 v27, 3, v1", "v_lshl_add_u32 v25, v27, 3, v25", f"v_add_u32 v25, {WB + R*WSL}, v25")
    k("s_lshl_b32 s32, s30, 1")
    for ft in range(2):
        k(f"s_add_u32 s33, s32, {ft}", "v_xor_b32 v27, s33, v26", f"v_lshl_add_u32 v{14+ft}, v27, 6, v25")
    for i in range(64, 128): k(f"v_mov_b32 v{i}, 0")
    if L == 1: poll(k, fpoll_addr(lambda k: k('s_add_u32 s38, s26, 296'), 16), 1)
    k("s_barrier")
    for ft in range(2):
        for g in range(4): k(f"buffer_load_dwordx4 v[{128+16*ft+4*g}:{131+16*ft+4*g}], v30, s[12:15], 0 offen offset:{ft*128+g*32} sc1")
    if st0 is not None: stamp(k, st0)
    for tt in range(2):
        if ALT: k(f"buffer_load_dwordx2 v[{160+16*tt}:{161+16*tt}], v29, s[20:23], 0 offen offset:{tt*256}" + SC); continue
        for i in range(4): k(f"buffer_load_dwordx4 v[{160+16*tt+4*i}:{163+16*tt+4*i}], v29, s[20:23], 0 offen offset:{tt*2048+16*i}" + SC)
    def reads(s):
        fb = 32 + 16 * (s & 1); Ls = []
        for tt in range(2): Ls.append(f"ds_read_b128 v[{fb+4*tt}:{fb+4*tt+3}], v{10+s} offset:{tt*4096}")
        for ft in range(2):
            for r in range(2):
                Ls.append(f"ds_read_b64_tr_b16 v[{fb+8+4*ft+2*r}:{fb+8+4*ft+2*r+1}], v{14+ft} offset:{(16*s+4*r)*256}")
        return Ls
    def mfmas(s):
        fb = 32 + 16 * (s & 1); Ls = []
        for ft in range(2):
            for tt in range(2):
                a = 64 + (ft*2+tt)*16
                Ls.append(f"v_mfma_f32_32x32x16_bf16 v[{a}:{a+15}], v[{fb+8+4*ft}:{fb+8+4*ft+3}], v[{fb+4*tt}:{fb+4*tt+3}], v[{a}:{a+15}]")
        return Ls
    k("s_barrier")
    if st0 is not None: stamp(k, st0+1)
    k(*reads(0))
    for kt in range(NK):
        for s in range(4):
            k("s_waitcnt lgkmcnt(0)")
            M = mfmas(s)
            if s < 3:
                interleave(k, M, reads(s+1), [3, 3, 0, 0] if PAT else [2, 2, 2, 0])
            elif kt + 1 < NK:
                k(M[0], "s_barrier")
                wrap = (kt + 1 + R) % NST == 0
                for r in range(10, 14): k(f"v_add_u32 v{r}, {(-3*AS if wrap else AS) & 0xffffffff:#x}, v{r}")
                for r in range(14, 16): k(f"v_add_u32 v{r}, {(-3*WSL if wrap else WSL) & 0xffffffff:#x}, v{r}")
                interleave(k, M[1:], reads(0), [6, 0, 0] if PAT else [2, 2, 2])
            else:
                k(*M)
        if kt == 3:
            k("s_waitcnt vmcnt(0)")
            for tt in range(2):
                if ALT:
                    k(f"v_mul_f32 v16, 0x3acccccd, v{160+16*tt}", f"v_mul_f32 v17, 0x3acccccd, v{161+16*tt}")
                    gen.finish_stats(k, 16, 17, 192+4*tt, 194+4*tt)
                else: merge_stats(k, 160+16*tt, 16, 192+4*tt, 194+4*tt)
                k(f"v_mov_b32 v{193+4*tt}, v{192+4*tt}", f"v_mov_b32 v{195+4*tt}, v{194+4*tt}")
        if kt == 5:
            k("s_mul_i32 s32, s29, 12288", "v_and_b32 v25, 31, v1", "v_mul_u32_u24 v25, 40, v25", "v_add_u32 v25, s32, v25", "v_cmp_gt_u32 vcc, 32, v1")
            for ft in range(2):
                for g in range(4):
                    def off(jg): return 7680 if jg == 15 else (jg // 5) * 2560 + (jg % 5) * 8
                    j0 = 8*ft + 2*g
                    k(f"v_mov_b32 v26, {off(j0+1)}", f"v_mov_b32 v27, {off(j0)}", "s_nop 0", "v_cndmask_b32 v26, v26, v27, vcc", f"v_add_u32 v{200+ft*4+g}, v25, v26")
            k("v_lshlrev_b32 v28, 4, v1", "v_add_u32 v208, s32, v28")
            k("s_lshl_b32 s32, s27, 1", "s_add_u32 s32, s32, s30", "s_mul_i32 s32, s32, 81920", "s_lshl_b32 s33, s26, 1", "s_add_u32 s33, s33, s31", "s_mul_i32 s33, s33, 2560", "s_add_u32 s39, s32, s33")
    if st0 is not None: stamp(k, st0+2)
    k("s_barrier")
    k("s_nop 4")
    for tt in range(2):
        for ft in range(2):
            a = 64 + (ft*2+tt)*16; vm = 192 + 4*tt; vr = 194 + 4*tt
            for r in range(0, 16, 2):
                k(f"v_pk_fma_f32 v[{a+r}:{a+r+1}], v[{vm}:{vm+1}], v[{128+ft*16+r}:{129+ft*16+r}], v[{a+r}:{a+r+1}] neg_lo:[1,0,0] neg_hi:[1,0,0]")
                k(f"v_pk_mul_f32 v[{a+r}:{a+r+1}], v[{a+r}:{a+r+1}], v[{vr}:{vr+1}]")
            for g in range(4):
                d = 32 + 2*((ft*4+g) % 8)
                k(f"v_cvt_pk_bf16_f32 v{d}, v{a+4*g}, v{a+4*g+1}", f"v_cvt_pk_bf16_f32 v{d+1}, v{a+4*g+2}, v{a+4*g+3}")
                k(f"ds_write_b64 v{200+ft*4+g}, v[{d}:{d+1}] offset:{tt*1280}")
    k("s_waitcnt lgkmcnt(0)")
    for wh in range(3):
        for n in range(3): k(f"ds_read_b128 v[{64+4*(wh*3+n)}:{67+4*(wh*3+n)}], v208 offset:{wh*2560+n*1024}")
    k("v_cmp_gt_u32 vcc, 32, v1")
    for n in range(2):
        for wh in range(3):
            i = wh*3+n
            k(f"s_add_u32 s33, s39, {wh*32*81920}", "s_waitcnt lgkmcnt(0)", f"buffer_store_dwordx4 v[{64+4*i}:{67+4*i}], v28, s[16:19], s33 offen offset:{n*1024}" + SC)
    k("s_and_saveexec_b64 s[36:37], vcc")
    for wh in range(3):
        i = wh*3+2
        k(f"s_add_u32 s33, s39, {wh*32*81920}", f"buffer_store_dwordx4 v[{64+4*i}:{67+4*i}], v28, s[16:19], s33 offen offset:2048" + SC)
    k("s_mov_b64 exec, s[36:37]")
    k("s_waitcnt vmcnt(0)", "s_barrier")
    if st0 is not None: stamp(k, st0+3)
    k("s_lshl_b32 s32, s26, 4", "s_add_u32 s32, s32, s27", f"s_add_u32 s32, s32, {L*320}")
    signal(k, 32)
    k(f"s_branch {lend}")
    k.lab(lload)
    act_dma_voffs(k)
    k("s_lshl_b32 s34, s28, 12")
    def al(kt):
        st = (kt + R) % NST
        return [f"s_add_u32 m0, s34, {st*AS}", f"s_mov_b32 s35, {kt*128}"] + [f"buffer_load_dwordx4 v{2+j}, s[4:7], s35 offen offset:{j*1024} sc1 lds" for j in range(4)]
    loader_phase(k, NK, wd, al, 1, nxt)
    k.lab(lend)

def ph_attn(k, L, st0=None):
    VB = 20480
    srd(k, 4, f'QKV{L}'); srd(k, 16, f'O{L}')
    k("s_and_b32 s26, s2, 7", "s_lshr_b32 s27, s2, 3")
    k("s_lshr_b32 s32, s29, 2", "s_add_u32 s32, s32, 1", "s_lshl_b32 s32, s32, 5", "s_add_u32 s32, s32, s27", "s_mul_i32 s32, s32, 81920")
    k("s_mul_i32 s33, s26, 10240", "s_add_u32 s32, s32, s33", "s_sub_u32 s32, s32, 10240", "s_mul_i32 s33, s28, 5120", "s_add_u32 s32, s32, s33")
    lneg = k.newlab("neg")
    k("s_cmp_lg_u32 s26, 0", f"s_cbranch_scc1 {lneg}", "s_cmp_ge_u32 s28, 2", f"s_cbranch_scc1 {lneg}", "s_mov_b32 s32, 0x7ff00000")
    k.lab(lneg)
    k("v_lshlrev_b32 v2, 4, v1", "v_add_u32 v2, s32, v2", "v_add_u32 v3, 4096, v2")
    k("s_mul_i32 s34, s29, 5120")
    k("v_and_b32 v20, 31, v1", "s_lshl_b32 s32, s26, 8", "s_lshl_b32 s35, s29, 5", "s_add_u32 s32, s32, s35", "v_add_u32 v4, s32, v20")
    k("v_lshrrev_b32 v6, 5, v1")
    k("s_mul_i32 s33, s27, 81920", "s_mul_i32 s32, s26, 10240", "s_add_u32 s33, s33, s32", "s_lshl_b32 s32, s29, 11", "s_add_u32 s33, s33, s32", "v_lshlrev_b32 v7, 4, v1", "v_add_u32 v7, s33, v7")
    k("s_add_u32 s39, s32, 40960")
    k("v_add_u32 v5, s35, v20", "v_mul_u32_u24 v5, 40, v5", "v_lshl_add_u32 v5, v6, 4, v5", "v_add_u32 v5, 40960, v5")
    k("v_mov_b32 v14, 0", "v_mov_b32 v15, 0")
    k("v_add_u32 v16, s35, v20", "v_mul_u32_u24 v16, 40, v16", "v_lshl_add_u32 v16, v6, 4, v16")
    k("v_lshlrev_b32 v17, 2, v6", "v_bfe_u32 v18, v1, 2, 2", "v_add_u32 v17, v17, v18", "v_add_u32 v17, s35, v17", "v_mul_u32_u24 v17, 40, v17")
    k("v_bfe_u32 v18, v1, 4, 1", "v_lshl_add_u32 v17, v18, 5, v17", "v_and_b32 v18, 3, v1", "v_lshl_add_u32 v17, v18, 3, v17", f"v_add_u32 v17, {VB}, v17")
    k("v_lshlrev_b32 v18, 2, v6", "v_sub_u32 v18, v20, v18")
    def addr(k):
        k("v_and_b32 v24, 3, v1", "s_lshl_b32 s38, s26, 1", "s_sub_u32 s38, s38, 2", "v_add_u32 v24, s38, v24", "v_max_i32 v24, 0, v24")
        k("s_lshr_b32 s38, s27, 1", f"s_add_u32 s38, s38, {L*320}", "v_lshl_add_u32 v24, v24, 4, s38", "v_lshlrev_b32 v24, 7, v24")
    poll(k, addr, 1)
    k("s_barrier")
    if st0 is not None: stamp(k, st0)
    k("s_mov_b32 m0, s34", "s_nop 0")
    for j in range(4): k(f"buffer_load_dwordx4 v2, s[4:7], 0 offen offset:{j*1024} sc1 lds")
    k("s_add_u32 m0, s34, 4096", "s_nop 0", "buffer_load_dwordx4 v3, s[4:7], 0 offen sc1 lds")
    lnq = k.newlab("noq")
    k("s_cmp_ge_u32 s29, 5", f"s_cbranch_scc1 {lnq}")
    k("s_mov_b32 m0, s39", "s_nop 0", "buffer_load_dwordx4 v7, s[4:7], 0 offen sc1 lds", "buffer_load_dwordx4 v7, s[4:7], 0 offen offset:1024 sc1 lds")
    k.lab(lnq)
    k("v_cmp_gt_u32 vcc, 32, v1")
    k("s_waitcnt vmcnt(0)")
    k("s_barrier")
    k("ds_read_b64 v[8:9], v5", "ds_read_b64 v[10:11], v5 offset:8", "ds_read_b64 v[12:13], v5 offset:32")
    if st0 is not None: stamp(k, st0+1)
    S = 64; KF = 24
    def kread(i):
        b = KF + 8*(i & 1)
        for p, o in enumerate((0, 8, 32, 40)):
            k(f"ds_read_b64 v[{b+2*p}:{b+2*p+1}], v16 offset:{i*1280+o}")
    kread(0)
    for i in range(9):
        if i < 8: kread(i+1); k("s_waitcnt lgkmcnt(4)")
        else: k("s_waitcnt lgkmcnt(0)")
        if i == 0: k("v_cndmask_b32 v12, 0, v12, vcc", "v_cndmask_b32 v13, 0, v13, vcc", "s_nop 1")
        b = KF + 8*(i & 1); a = S + 16*i
        k(f"v_mfma_f32_32x32x16_bf16 v[{a}:{a+15}], v[{b}:{b+3}], v[8:11], 0")
        k(f"v_mfma_f32_32x32x16_bf16 v[{a}:{a+15}], v[{b+4}:{b+7}], v[12:15], v[{a}:{a+15}]")
    k("s_nop 7", "s_nop 7")
    k("v_mov_b32 v43, 0xce6e6b28")
    for g in range(4):
        for r in range(4):
            c = 8*g + r
            k(f"v_cmp_le_i32 vcc, {c}, v18", "s_nop 1")
            k(f"v_cndmask_b32 v{S+128+4*g+r}, v43, v{S+128+4*g+r}, vcc", f"v_cndmask_b32 v{S+4*g+r}, v{S+4*g+r}, v43, vcc")
    lq = k.newlab("q0")
    k("s_cmp_lg_u32 s26, 0", f"s_cbranch_scc1 {lq}")
    for i in range(8):
        ls = k.newlab("sk")
        k(f"s_add_u32 s32, s29, {i}", "s_cmp_ge_u32 s32, 8", f"s_cbranch_scc1 {ls}")
        for r in range(16): k(f"v_mov_b32 v{S+16*i+r}, v43")
        k.lab(ls)
    k.lab(lq)
    k(f"v_max3_f32 v44, v{S}, v{S+1}, v{S+2}", f"v_max3_f32 v45, v{S+3}, v{S+4}, v{S+5}")
    for n, r in enumerate(range(S+6, S+144, 2)): k(f"v_max3_f32 v{44+(n&1)}, v{44+(n&1)}, v{r}, v{r+1}")
    k("v_max_f32 v44, v44, v45")
    k("v_mov_b32 v45, v44", "s_nop 1", "v_permlane32_swap_b32 v44, v45", "v_max_f32 v44, v44, v45")
    cc = struct.unpack('<I', struct.pack('<f', 1.4426950408889634 * struct.unpack('<f', struct.pack('<I', 0x3e64f92e))[0]))[0]
    k(f"v_mov_b32 v40, {cc:#x}", f"v_mov_b32 v41, {cc:#x}", "v_mul_f32 v44, v44, v40", "v_sub_f32 v44, 0, v44", "v_mov_b32 v45, v44", "v_mov_b32 v46, 0", "v_mov_b32 v47, 0")
    for i in range(9):
        for q in range(8):
            r = S + 16*i + 2*q
            k(f"v_pk_fma_f32 v[{r}:{r+1}], v[{r}:{r+1}], v[40:41], v[44:45]")
            k(f"v_exp_f32 v{r}, v{r}", f"v_exp_f32 v{r+1}, v{r+1}")
            if (i, q) != (0, 0):
                pr = r - 2 if q else S + 16*(i-1) + 14; pq = (S + 16*i + q - 1) if q else (S + 16*(i-1) + 7)
                k(f"v_pk_add_f32 v[46:47], v[46:47], v[{pr}:{pr+1}]", f"v_cvt_pk_bf16_f32 v{pq}, v{pr}, v{pr+1}")
    k("s_nop 0", f"v_pk_add_f32 v[46:47], v[46:47], v[{S+142}:{S+143}]", f"v_cvt_pk_bf16_f32 v{S+128+7}, v{S+142}, v{S+143}")
    k("v_add_f32 v46, v46, v47", "v_mov_b32 v47, v46", "s_nop 1", "v_permlane32_swap_b32 v46, v47", "v_add_f32 v46, v46, v47")
    k("v_rcp_f32 v46, v46", "s_nop 0", "v_mov_b32 v47, v46")
    OA = 208; VF = 24
    def vread(i):
        b = VF + 8*(i & 1)
        for m in range(2):
            for r in range(2):
                k(f"ds_read_b64_tr_b16 v[{b+4*m+2*r}:{b+4*m+2*r+1}], v17 offset:{(32*i+16*m+8*r)*40}")
    vread(0)
    for i in range(9):
        if i < 8: vread(i+1); k("s_waitcnt lgkmcnt(4)")
        else: k("s_waitcnt lgkmcnt(0)")
        b = VF + 8*(i & 1); p = S + 16*i
        for m in range(2):
            c = "0" if (i == 0 and m == 0) else f"v[{OA}:{OA+15}]"
            k(f"v_mfma_f32_32x32x16_bf16 v[{OA}:{OA+15}], v[{b+4*m}:{b+4*m+3}], v[{p+4*m}:{p+4*m+3}], {c}")
    if st0 is not None: stamp(k, st0+2)
    k("s_mul_i32 s32, s29, 1536", "s_add_u32 s32, s32, 51328", "v_mul_u32_u24 v5, 48, v20", "v_lshl_add_u32 v5, v6, 3, v5", "v_add_u32 v5, s32, v5")
    k("v_lshlrev_b32 v7, 4, v1", "v_add_u32 v2, s32, v7")
    k("s_mul_i32 s33, s27, 98304", "s_lshl_b32 s32, s26, 8", "s_add_u32 s32, s32, s35", "s_mul_i32 s32, s32, 48", "s_add_u32 s33, s33, s32")
    k("v_cmp_gt_u32 vcc, 32, v1")
    k("s_nop 7", "s_nop 4")
    for g in range(3):
        k(f"v_pk_mul_f32 v[{OA+4*g}:{OA+4*g+1}], v[{OA+4*g}:{OA+4*g+1}], v[46:47]", f"v_pk_mul_f32 v[{OA+4*g+2}:{OA+4*g+3}], v[{OA+4*g+2}:{OA+4*g+3}], v[46:47]")
        k(f"v_cvt_pk_bf16_f32 v{40+2*g}, v{OA+4*g}, v{OA+4*g+1}", f"v_cvt_pk_bf16_f32 v{41+2*g}, v{OA+4*g+2}, v{OA+4*g+3}")
    k("v_cndmask_b32 v44, 0, v44, vcc", "v_cndmask_b32 v45, 0, v45, vcc")
    for g in range(3): k(f"ds_write_b64 v5, v[{40+2*g}:{41+2*g}] offset:{16*g}")
    k("s_waitcnt lgkmcnt(0)", "ds_read_b128 v[48:51], v2", "ds_read_b128 v[52:55], v2 offset:1024")
    k("s_waitcnt lgkmcnt(1)", "buffer_store_dwordx4 v[48:51], v7, s[16:19], s33 offen")
    k("s_and_saveexec_b64 s[36:37], vcc", "s_waitcnt lgkmcnt(0)", "buffer_store_dwordx4 v[52:55], v7, s[16:19], s33 offen offset:1024")
    k("s_mov_b64 exec, s[36:37]")
    k("s_waitcnt vmcnt(0)", "s_barrier")
    if st0 is not None: stamp(k, st0+3)
    k(f"s_add_u32 s32, s26, {L*320+256}")
    fsignal(k, 32, 27)

def ph_glu(k, L, wd, nxt, st0=None):
    NK = 10; NST = 4; R = wd.r
    lload = k.newlab("loader"); lend = k.newlab("end")
    xcd_map16(k)
    srd(k, 4, f'XA{L}'); srd(k, 16, f'H{L}'); srd(k, 20, f'STA{L}'); srd(k, 68, 'CS')
    k("s_cmp_ge_u32 s29, 4", f"s_cbranch_scc1 {lload}")
    FB = 32; AC = 88; STV = 184; CSV = 188
    k("v_and_b32 v25, 31, v1", "s_lshl_b32 s32, s26, 7", "s_lshl_b32 s33, s29, 5", "s_add_u32 s32, s32, s33", "v_add_u32 v28, s32, v25", "v_lshlrev_b32 v29, 6, v28")
    k("v_lshrrev_b32 v30, 5, v1", "v_lshlrev_b32 v30, 4, v30", "s_mul_i32 s32, s27, 384", "s_add_u32 s32, s32, 8192", "v_add_u32 v30, s32, v30")
    k("s_lshl_b32 s32, s29, 5", "v_add_u32 v26, s32, v25", "v_lshlrev_b32 v26, 7, v26")
    k("v_lshrrev_b32 v25, 1, v25", "v_and_b32 v25, 7, v25", "v_lshrrev_b32 v27, 5, v1", "v_xor_b32 v25, v25, v27")
    for s in range(4):
        k(f"v_xor_b32 v27, {2*s}, v25", f"v_lshl_add_u32 v{10+s}, v27, 4, v26", f"v_add_u32 v{10+s}, {R*AS}, v{10+s}")
    k("v_lshrrev_b32 v25, 5, v1", "v_lshlrev_b32 v25, 3, v25", "v_bfe_u32 v26, v1, 2, 2", "v_add_u32 v25, v25, v26", "v_mul_u32_u24 v25, 192, v25")
    k("v_bfe_u32 v27, v1, 4, 1", "v_lshl_add_u32 v25, v27, 5, v25", "v_and_b32 v27, 3, v1", "v_lshl_add_u32 v25, v27, 3, v25", f"v_add_u32 v14, {WB + R*WSL}, v25")
    for i in range(AC, AC+96): k(f"v_mov_b32 v{i}, 0")
    def cs_load(t, dst):
        mtx, ft = divmod(t, 3)
        for g in range(4): k(f"buffer_load_dwordx4 v[{dst+4*g}:{dst+4*g+3}], v{30+mtx}, s[68:71], 0 offen offset:{ft*128+g*32} sc1")
    k("v_add_u32 v31, 6144, v30")
    poll(k, fpoll_addr(lambda k: k(f's_add_u32 s38, s26, {L*320+264}'), 16), 1)
    k("s_barrier")
    cs_load(0, CSV); cs_load(3, CSV+16); cs_load(1, CSV+32)
    if st0 is not None: stamp(k, st0)
    for i in range(4): k(f"buffer_load_dwordx4 v[{CSV+48+4*i}:{CSV+51+4*i}], v29, s[20:23], 0 offen offset:{16*i}" + SC)
    def reads(s):
        fb = FB + 28 * (s & 1); Ls = [f"ds_read_b128 v[{fb}:{fb+3}], v{10+s}"]
        for t in range(6):
            mtx, ft = divmod(t, 3)
            for r in range(2):
                Ls.append(f"ds_read_b64_tr_b16 v[{fb+4+4*t+2*r}:{fb+5+4*t+2*r}], v14 offset:{mtx*12288 + (16*s+4*r)*192 + ft*64}")
        return Ls
    def mfmas(s):
        fb = FB + 28 * (s & 1)
        return [f"v_mfma_f32_32x32x16_bf16 v[{AC+16*t}:{AC+16*t+15}], v[{fb+4+4*t}:{fb+7+4*t}], v[{fb}:{fb+3}], v[{AC+16*t}:{AC+16*t+15}]" for t in range(6)]
    k("s_barrier")
    if st0 is not None: stamp(k, st0+1)
    k(*reads(0))
    for kt in range(NK):
        for s in range(4):
            k("s_waitcnt lgkmcnt(0)")
            M = mfmas(s)
            if s < 3:
                interleave(k, M, reads(s+1), [5, 4, 4, 0, 0, 0] if PAT else [3, 3, 3, 2, 2, 0])
            elif kt + 1 < NK:
                k(M[0], "s_barrier")
                wrap = (kt + 1 + R) % NST == 0
                for r in range(10, 14): k(f"v_add_u32 v{r}, {(-3*AS if wrap else AS) & 0xffffffff:#x}, v{r}")
                k(f"v_add_u32 v14, {(-3*WSL if wrap else WSL) & 0xffffffff:#x}, v14")
                interleave(k, M[1:], reads(0), [5, 4, 4, 0, 0] if PAT else [3, 3, 3, 2, 2])
            else:
                k(*M)
        if kt == 3:
            k("s_waitcnt vmcnt(0)")
            merge_stats(k, CSV+48, 16, STV, STV+2)
            k(f"v_mov_b32 v{STV+1}, v{STV}", f"v_mov_b32 v{STV+3}, v{STV+2}")
            cs_load(4, CSV+48)
    if st0 is not None: stamp(k, st0+2)
    cs_load(2, FB)
    k("s_barrier")
    if st0 is not None and FINE: stamp(k, 12)
    cs_load(5, FB+28)
    k("s_mul_i32 s32, s29, 6656")
    k("v_and_b32 v25, 31, v1", "v_mul_u32_u24 v25, 208, v25", "v_lshrrev_b32 v26, 5, v1", "v_lshl_add_u32 v25, v26, 3, v25", "v_add_u32 v25, s32, v25")
    k("s_lshl_b32 s33, s26, 7", "s_lshl_b32 s38, s29, 5", "s_add_u32 s33, s33, s38", "s_mul_i32 s38, s27, 192", "s_mov_b32 s39, 43691")
    k("v_mov_b32 v16, 0xbfb8aa3b", "v_mov_b32 v17, 0xbfb8aa3b", "v_mov_b32 v18, 1.0", "v_mov_b32 v19, 1.0")
    csreg = {0: CSV, 3: CSV+16, 1: CSV+32, 4: CSV+48, 2: FB, 5: FB+28}
    for ft in range(3):
        if ft == 0: k("s_waitcnt vmcnt(8)")
        if ft == 2: k("s_waitcnt vmcnt(0)")
        ag = AC + 16*ft; au = AC + 16*(3+ft); cg = csreg[ft]; cu = csreg[3+ft]
        for r in range(0, 16, 2):
            k(f"v_pk_fma_f32 v[{ag+r}:{ag+r+1}], v[{STV}:{STV+1}], v[{cg+r}:{cg+r+1}], v[{ag+r}:{ag+r+1}] neg_lo:[1,0,0] neg_hi:[1,0,0]")
            k(f"v_pk_fma_f32 v[{au+r}:{au+r+1}], v[{STV}:{STV+1}], v[{cu+r}:{cu+r+1}], v[{au+r}:{au+r+1}] neg_lo:[1,0,0] neg_hi:[1,0,0]")
            k(f"v_pk_mul_f32 v[{ag+r}:{ag+r+1}], v[{ag+r}:{ag+r+1}], v[{STV+2}:{STV+3}]")
            k(f"v_pk_mul_f32 v[{au+r}:{au+r+1}], v[{au+r}:{au+r+1}], v[{STV+2}:{STV+3}]")
            k(f"v_cvt_pk_bf16_f32 v20, v{ag+r}, v{ag+r+1}", f"v_cvt_pk_bf16_f32 v21, v{au+r}, v{au+r+1}")
            k(f"v_lshlrev_b32 v{ag+r}, 16, v20", f"v_and_b32 v{ag+r+1}, 0xffff0000, v20", f"v_lshlrev_b32 v{au+r}, 16, v21", f"v_and_b32 v{au+r+1}, 0xffff0000, v21")
            k(f"v_pk_mul_f32 v[{ag+r}:{ag+r+1}], v[{ag+r}:{ag+r+1}], v[16:17]")
            k(f"v_exp_f32 v{ag+r}, v{ag+r}", f"v_exp_f32 v{ag+r+1}, v{ag+r+1}", "s_nop 0")
            k(f"v_pk_add_f32 v[{ag+r}:{ag+r+1}], v[{ag+r}:{ag+r+1}], v[18:19]")
            k(f"v_rcp_f32 v{ag+r}, v{ag+r}", f"v_rcp_f32 v{ag+r+1}, v{ag+r+1}", "s_nop 0")
            k(f"v_cvt_pk_bf16_f32 v20, v{ag+r}, v{ag+r+1}")
            k(f"v_lshlrev_b32 v{ag+r}, 16, v20", f"v_and_b32 v{ag+r+1}, 0xffff0000, v20")
            k(f"v_pk_mul_f32 v[{ag+r}:{ag+r+1}], v[{ag+r}:{ag+r+1}], v[{au+r}:{au+r+1}]")
        for g in range(4):
            d = 2 + 2*(g & 3)
            k(f"v_cvt_pk_bf16_f32 v{d}, v{ag+4*g}, v{ag+4*g+1}", f"v_cvt_pk_bf16_f32 v{d+1}, v{ag+4*g+2}, v{ag+4*g+3}")
            k(f"ds_write_b64 v25, v[{d}:{d+1}] offset:{ft*64 + g*16}")
    for n in range(6):
        k(f"v_add_u32 v26, {64*n}, v1", "v_mul_lo_u32 v27, v26, s39", "v_lshrrev_b32 v27, 19, v27", "v_mul_u32_u24 v28, 12, v27", "v_sub_u32 v28, v26, v28",
          "v_mul_u32_u24 v26, 208, v27", "v_lshl_add_u32 v26, v28, 4, v26", f"v_add_u32 v{FB+n}, s32, v26",
          "v_add_u32 v27, s33, v27", "v_mul_u32_u24 v27, 3072, v27", "v_lshl_add_u32 v27, v28, 4, v27", f"v_add_u32 v{FB+8+n}, s38, v27")
    if st0 is not None and FINE: stamp(k, 9)
    k("s_waitcnt lgkmcnt(0)")
    for n in range(6): k(f"ds_read_b128 v[{AC+4*n}:{AC+4*n+3}], v{FB+n}")
    for n in range(6): k(f"s_waitcnt lgkmcnt({5-n})", f"buffer_store_dwordx4 v[{AC+4*n}:{AC+4*n+3}], v{FB+8+n}, s[16:19], 0 offen")
    if st0 is not None and FINE: stamp(k, 10)
    k("s_waitcnt vmcnt(0)")
    if st0 is not None and FINE: stamp(k, 11)
    k("s_barrier")
    if st0 is not None: stamp(k, st0+3)
    k(f"s_add_u32 s32, s26, {L*320+280}")
    fsignal(k, 32, 27)
    k(f"s_branch {lend}")
    k.lab(lload)
    act_dma_voffs(k)
    k("s_lshl_b32 s34, s28, 12")
    def al(kt):
        st = (kt + R) % NST
        return [f"s_add_u32 m0, s34, {st*AS}", f"s_mov_b32 s35, {kt*128}"] + [f"buffer_load_dwordx4 v{2+j}, s[4:7], s35 offen offset:{j*1024} sc1 lds" for j in range(4)]
    loader_phase(k, NK, wd, al, 1, nxt)
    k.lab(lend)

def ph_out(k, L, kind, wd, nxt, st0=None):
    R = wd.r
    if kind == 'w':
        asrc, KK, wsrc, rsrc, dst, stdst = f'O{L}', 768, 'WO', ('x' if L == 0 else 'XB'), f'XA{L}', f'STA{L}'
    else:
        asrc, KK, wsrc, rsrc, dst, stdst = f'H{L}', 1536, 'WD', f'XA{L}', ('XB' if L == 0 else 'out'), ('STB' if L == 0 else None)
    NK = KK // 128; NST = 4; AP = KK * 2
    lload = k.newlab("loader"); lend = k.newlab("end")
    k("s_and_b32 s24, s2, 7", "s_lshr_b32 s25, s2, 3", "s_lshl_b32 s26, s24, 2", "s_and_b32 s27, s25, 3", "s_add_u32 s26, s26, s27", "s_lshr_b32 s27, s25, 2")
    srd(k, 4, asrc); srd(k, 12, rsrc); srd(k, 16, dst)
    if stdst: srd(k, 20, stdst)
    k("s_cmp_ge_u32 s29, 4", f"s_cbranch_scc1 {lload}")
    FB = 32; AC = 104; RS = 184
    k("v_and_b32 v25, 15, v1", "v_lshrrev_b32 v26, 4, v1", "s_lshl_b32 s32, s29, 2", "v_add_u32 v26, s32, v26", "v_xor_b32 v26, v26, v25", "v_lshlrev_b32 v26, 4, v26", "v_lshl_add_u32 v10, v25, 8, v26", f"v_add_u32 v10, {R*AS}, v10")
    k("v_lshrrev_b32 v26, 4, v1", "v_lshlrev_b32 v26, 3, v26", "v_bfe_u32 v27, v1, 2, 2", "v_add_u32 v26, v26, v27", "s_lshl_b32 s32, s29, 5", "v_add_u32 v26, s32, v26", "v_mul_u32_u24 v26, 160, v26")
    k("v_and_b32 v27, 3, v1", "v_lshl_add_u32 v26, v27, 3, v26", f"v_add_u32 v11, {WB + R*WSL}, v26")
    k("s_lshl_b32 s32, s26, 6", "s_lshl_b32 s33, s29, 4", "s_add_u32 s32, s32, s33", "v_add_u32 v28, s32, v25", "v_mul_u32_u24 v29, 1280, v28")
    k("v_lshrrev_b32 v26, 4, v1", "v_lshl_add_u32 v29, v26, 3, v29", "s_mul_i32 s32, s27, 160", "v_add_u32 v29, s32, v29")
    for i in range(AC, AC+80): k(f"v_mov_b32 v{i}, 0")
    k("s_mul_i32 s32, s29, 15360", "s_nop 0", "v_mul_u32_u24 v30, 160, v25", "v_lshrrev_b32 v26, 4, v1", "v_lshl_add_u32 v30, v26, 3, v30", "v_add_u32 v30, s32, v30")
    k("v_lshlrev_b32 v31, 4, v1", "v_add_u32 v31, s32, v31")
    k("s_lshl_b32 s32, s26, 6", "s_lshl_b32 s33, s29, 4", "s_add_u32 s32, s32, s33", "s_mul_i32 s33, s27, 160", "s_mov_b32 s38, 52429")
    for n in range(3):
        k(f"v_add_u32 v26, {64*n}, v1", "v_mul_lo_u32 v27, v26, s38", "v_lshrrev_b32 v27, 19, v27", "v_mul_u32_u24 v24, 10, v27", "v_sub_u32 v24, v26, v24",
          "v_add_u32 v27, s32, v27", "v_mul_u32_u24 v27, 1280, v27", "v_lshl_add_u32 v27, v24, 4, v27", f"v_add_u32 v{12+n}, s33, v27")
    if kind == 'w':
        poll(k, fpoll_addr(lambda k: k("s_lshr_b32 s38, s26, 2", f"s_add_u32 s38, s38, {L*320+256}"), 32), 1)
    else:
        poll(k, fpoll_addr(lambda k: k("s_lshr_b32 s38, s26, 1", f"s_add_u32 s38, s38, {L*320+280}"), 16), 1)
    k("s_barrier")
    if st0 is not None: stamp(k, st0)
    for ft in range(5): k(f"buffer_load_dwordx2 v[{RS+2*ft}:{RS+2*ft+1}], v29, s[12:15], 0 offen offset:{ft*32}" + SC)
    def reads(p):
        fb = FB + 36 * p; Ls = []
        for tt in range(4): Ls.append(f"ds_read_b128 v[{fb+4*tt}:{fb+4*tt+3}], v10 offset:{tt*4096}")
        for ft in range(5):
            for r in range(2): Ls.append(f"ds_read_b64_tr_b16 v[{fb+16+4*ft+2*r}:{fb+17+4*ft+2*r}], v11 offset:{4*r*160 + ft*32}")
        return Ls
    def mfmas(p):
        fb = FB + 36 * p; Ls = []
        for ft in range(5):
            for tt in range(4):
                a = AC + (ft*4+tt)*4
                Ls.append(f"v_mfma_f32_16x16x32_bf16 v[{a}:{a+3}], v[{fb+16+4*ft}:{fb+19+4*ft}], v[{fb+4*tt}:{fb+4*tt+3}], v[{a}:{a+3}]")
        return Ls
    k("s_barrier")
    if st0 is not None: stamp(k, st0+1)
    k(*reads(0))
    for kt in range(NK):
        k("s_waitcnt lgkmcnt(0)")
        M = mfmas(kt & 1)
        if kt + 1 < NK:
            k(M[0], "s_barrier")
            wrap = (kt + 1 + R) % NST == 0
            k(f"v_add_u32 v10, {(-3*AS if wrap else AS) & 0xffffffff:#x}, v10", f"v_add_u32 v11, {(-3*WSL if wrap else WSL) & 0xffffffff:#x}, v11")
            interleave(k, M[1:], reads((kt+1) & 1), [1]*14 + [0]*5)
        else:
            k(*M)
    if st0 is not None: stamp(k, st0+2)
    k("s_barrier")
    k("v_lshlrev_b32 v25, 4, v1", "s_mul_i32 s32, s29, 15360", "v_add_u32 v27, s32, v25")
    k("s_nop 7")
    for tt in range(4):
        lw = k.newlab("rw")
        k(f"s_cmp_eq_u32 s29, {tt}", f"s_cbranch_scc1 {lw}")
        k(f"s_sub_u32 s32, s29, {tt+1}", "s_and_b32 s32, s32, 3", "s_mul_i32 s32, s32, 5120", f"s_add_u32 s32, s32, {tt*15360}", "v_add_u32 v26, s32, v25")
        for ft in range(5):
            a_ = AC + (ft*4+tt)*4
            k(f"ds_write_b128 v26, v[{a_}:{a_+3}] offset:{ft*1024}")
        k.lab(lw)
    k("s_waitcnt lgkmcnt(0)", "s_barrier")
    le = k.newlab("e"); labs = [k.newlab("own") for _ in range(4)]
    for tt in range(4): k(f"s_cmp_eq_u32 s29, {tt}", f"s_cbranch_scc1 {labs[tt]}")
    for tt in range(4):
        k.lab(labs[tt])
        for ft in range(5):
            for r in range(4): k(f"v_mov_b32 v{FB+4*ft+r}, v{AC+(ft*4+tt)*4+r}")
        k(f"s_branch {le}")
    k.lab(le)
    for n in range(15): k(f"ds_read_b128 v[{AC+4*n}:{AC+4*n+3}], v27 offset:{n*1024}")
    k("s_waitcnt lgkmcnt(0) vmcnt(0)")
    for sidx in range(3):
        for ft in range(5):
            for r in range(0, 4, 2):
                k(f"v_pk_add_f32 v[{FB+4*ft+r}:{FB+4*ft+r+1}], v[{FB+4*ft+r}:{FB+4*ft+r+1}], v[{AC+4*(sidx*5+ft)+r}:{AC+4*(sidx*5+ft)+r+1}]")
    for ft in range(5):
        for p in range(2):
            a = FB + 4*ft + 2*p; x = RS + 2*ft + p
            k(f"v_cvt_pk_bf16_f32 v20, v{a}, v{a+1}", f"v_lshlrev_b32 v{a}, 16, v20", f"v_and_b32 v{a+1}, 0xffff0000, v20")
            k(f"v_lshlrev_b32 v21, 16, v{x}", f"v_and_b32 v22, 0xffff0000, v{x}", f"v_add_f32 v{a}, v{a}, v21", f"v_add_f32 v{a+1}, v{a+1}, v22")
            k(f"v_cvt_pk_bf16_f32 v{x}, v{a}, v{a+1}")
            if stdst: k(f"v_lshlrev_b32 v{a}, 16, v{x}", f"v_and_b32 v{a+1}, 0xffff0000, v{x}")
        k(f"ds_write_b64 v30, v[{RS+2*ft}:{RS+2*ft+1}] offset:{ft*32}")
    k("s_waitcnt lgkmcnt(0)")
    for n in range(3): k(f"ds_read_b128 v[{AC+4*n}:{AC+4*n+3}], v31 offset:{n*1024}")
    k("v_cmp_gt_u32 vcc, 32, v1")
    for n in range(3):
        if n == 2: k("s_and_saveexec_b64 s[36:37], vcc")
        k(f"s_waitcnt lgkmcnt({2-n})", f"buffer_store_dwordx4 v[{AC+4*n}:{AC+4*n+3}], v{12+n}, s[16:19], 0 offen")
    k("s_mov_b64 exec, s[36:37]")
    if stdst:
        def xsum(v, t):
            k(f"v_mov_b32 v{t}, v{v}", "s_nop 1", f"v_permlane16_swap_b32 v{v}, v{t}", f"v_add_f32 v{v}, v{v}, v{t}")
            k(f"v_mov_b32 v{t}, v{v}", "s_nop 1", f"v_permlane32_swap_b32 v{v}, v{t}", f"v_add_f32 v{v}, v{v}, v{t}")
        k(f"v_add_f32 v20, v{FB}, v{FB+1}")
        for i in range(2, 20): k(f"v_add_f32 v20, v20, v{FB+i}")
        xsum(20, 22)
        k("v_mul_f32 v23, 0x3c4ccccd, v20", "v_mov_b32 v21, 0")
        for i in range(20): k(f"v_sub_f32 v22, v{FB+i}, v23", "v_fmac_f32 v21, v22, v22")
        xsum(21, 22)
        k("v_lshlrev_b32 v28, 6, v28", "s_lshl_b32 s32, s27, 3", "v_add_u32 v28, s32, v28")
        k("v_cmp_gt_u32 vcc, 16, v1", "s_and_saveexec_b64 s[36:37], vcc")
        k("buffer_store_dwordx2 v[20:21], v28, s[20:23], 0 offen")
        k("s_mov_b64 exec, s[36:37]")
    k("s_waitcnt vmcnt(0)", "s_barrier")
    if st0 is not None: stamp(k, st0+3)
    if stdst:
        k("s_lshr_b32 s32, s26, 1", f"s_add_u32 s32, s32, {L*320 + (264 if kind == 'w' else 296)}")
        k("s_and_b32 s33, s26, 1", "s_lshl_b32 s33, s33, 3", "s_add_u32 s33, s33, s27")
        fsignal(k, 32, 33)
    k(f"s_branch {lend}")
    k.lab(lload)
    k("s_lshl_b32 s32, s26, 6", "s_lshl_b32 s33, s28, 4", "s_add_u32 s32, s32, s33", "v_lshrrev_b32 v25, 4, v1", "v_and_b32 v26, 15, v1", f"s_mov_b32 s33, {AP}")
    for jj in range(4):
        if kind == 'w':
            k(f"v_add_u32 v27, {4*jj}, v25", f"v_xor_b32 v{12+jj}, v26, v27", "v_add_u32 v27, s32, v27", f"v_mul_u32_u24 v{16+jj}, 48, v27")
        else:
            k(f"v_add_u32 v27, {4*jj}, v25", "v_xor_b32 v28, v26, v27", "v_add_u32 v27, s32, v27", "v_mul_lo_u32 v27, v27, s33", "v_lshl_add_u32 v27, v28, 4, v27", f"v_subrev_u32 v{2+jj}, {jj*1024}, v27")
    k("s_mov_b32 s39, 98304")
    k("s_lshl_b32 s34, s28, 12")
    def al(kt):
        st = (kt + R) % NST
        if kind == 'w':
            Ls = []
            for j in range(4):
                Ls += [f"s_add_u32 m0, s34, {st*AS + j*1024}"]
                Ls += [f"v_add_u32 v25, {16*kt}, v{12+j}", "v_mul_u32_u24 v26, 171, v25", "v_lshrrev_b32 v26, 9, v26", "v_mul_u32_u24 v27, 3, v26", "v_sub_u32 v27, v25, v27",
                       "v_mul_lo_u32 v26, v26, s39", "v_lshl_add_u32 v26, v27, 4, v26", f"v_add_u32 v{2+j}, v26, v{16+j}",
                       f"buffer_load_dwordx4 v{2+j}, s[4:7], 0 offen sc1 lds"]
            return Ls
        return [f"s_add_u32 m0, s34, {st*AS}", f"s_mov_b32 s35, {kt*256}"] + [f"buffer_load_dwordx4 v{2+j}, s[4:7], s35 offen offset:{j*1024} sc1 lds" for j in range(4)]
    loader_phase(k, NK, wd, al, 2, nxt)
    k.lab(lend)

def stamps_out2(k, n, wg):
    assert n <= 14
    if RT:
        lab = k.newlab("nost")
        k("s_waitcnt lgkmcnt(0)", "s_cmp_lg_u32 s29, 0", f"s_cbranch_scc1 {lab}")
        srd(k, 72, 'DBG')
        k("s_lshl_b32 s38, s2, 6", "v_mov_b32 v1, s38")
        for i in range(n):
            k(f"v_mov_b32 v2, s{40+2*i}", f"buffer_store_dword v2, v1, s[72:75], 0 offen offset:{4*i}")
        k.lab(lab)
        return
    lab = k.newlab("nost")
    k("s_waitcnt lgkmcnt(0)")
    k(f"s_cmp_lg_u32 s2, {wg}", f"s_cbranch_scc1 {lab}")
    k("s_cmp_lg_u32 s29, 0", f"s_cbranch_scc1 {lab}")
    k("s_load_dwordx2 s[72:73], s[0:1], 64", "s_waitcnt lgkmcnt(0)")
    k("s_and_b32 s73, s73, 0xffff", "s_mov_b32 s74, 256", "s_mov_b32 s75, 0x00020000")
    k("v_mov_b32 v1, 0")
    for i in range(n):
        k(f"s_sub_u32 s{41+2*i}, s{40+2*i}, s40")
        k(f"v_mov_b32 v2, s{41+2*i}")
        k(f"buffer_store_dword v2, v1, s[72:75], 0 offen offset:{4*i}")
    k.lab(lab)

def ph_prep(k):
    done = k.newlab("pdone"); lcs = k.newlab("cs"); lwq = k.newlab("wq"); lgu = k.newlab("gu"); lod = k.newlab("od")
    k("s_load_dwordx2 s[40:41], s[0:1], 8", "s_load_dwordx2 s[42:43], s[0:1], 32", "s_load_dwordx2 s[44:45], s[0:1], 40", "s_load_dwordx2 s[46:47], s[0:1], 16", "s_load_dwordx2 s[48:49], s[0:1], 48")
    k("s_lshl_b32 s36, s2, 1", "s_lshr_b32 s37, s29, 2", "s_add_u32 s36, s36, s37", "v_and_b32 v0, 255, v0", "s_mov_b32 s83, 0")
    k("s_waitcnt lgkmcnt(0)")
    def insrd(sreg, p, name):
        k(f"s_mov_b32 s{sreg}, s{p}", f"s_and_b32 s{sreg+1}, s{p+1}, 0xffff", f"s_mov_b32 s{sreg+2}, {INSZ[name]}", f"s_mov_b32 s{sreg+3}, 0x00020000")
    srd(k, 4, 'x'); insrd(8, 40, 'wqkv'); insrd(12, 42, 'wg'); insrd(16, 44, 'wu'); srd(k, 20, 'STX'); srd(k, 68, 'CS')
    insrd(52, 46, 'wo'); insrd(56, 48, 'wd'); srd(k, 60, 'WQ'); srd(k, 64, 'WGU'); srd(k, 72, 'WO'); srd(k, 76, 'WD')
    k("s_mov_b32 s44, 0")
    k("v_and_b32 v12, 63, v0", "s_lshl_b32 s37, s2, 3", "s_add_u32 s37, s37, s29", "s_mul_i32 s38, s37, 1280", "v_lshlrev_b32 v2, 4, v12", "v_mov_b32 v3, 0x7ffffff0")
    k("v_cmp_gt_u32 vcc, 16, v12", "v_add_u32 v4, 1024, v2", "s_nop 0", "v_cndmask_b32 v4, v3, v4, vcc")
    k("buffer_load_dwordx4 v[100:103], v2, s[4:7], s38 offen", "buffer_load_dwordx4 v[104:107], v4, s[4:7], s38 offen")
    k("s_lshl_b32 s39, s37, 10", "v_mov_b32 v4, 0", "v_mov_b32 v5, 0", "v_mov_b32 v6, 0", "v_mov_b32 v7, 0", "s_min_u32 s39, s39, 0x7ff00000")
    k("buffer_store_dwordx4 v[4:7], v2, s[92:95], s39 offen sc1")
    k("s_waitcnt vmcnt(1)")
    for i in range(8):
        k(f"v_lshlrev_b32 v{108+2*i}, 16, v{100+i}", f"v_and_b32 v{109+2*i}, 0xffff0000, v{100+i}")
    def wsum(v):
        for sh in (1, 2, 4, 8):
            k("s_nop 1", f"v_add_f32_dpp v{v}, v{v}, v{v} row_shr:{sh} row_mask:0xf bank_mask:0xf bound_ctrl:0")
        k("s_nop 1", f"v_readlane_b32 s40, v{v}, 15", f"v_readlane_b32 s41, v{v}, 31", f"v_readlane_b32 s42, v{v}, 47", f"v_readlane_b32 s43, v{v}, 63", "s_nop 1")
        k(f"v_mov_b32 v{v}, s40", f"v_add_f32 v{v}, s41, v{v}", f"v_add_f32 v{v}, s42, v{v}", f"v_add_f32 v{v}, s43, v{v}")
    k("v_add_f32 v8, v108, v109")
    for i in range(2, 16): k(f"v_add_f32 v8, v8, v{108+i}")
    wsum(8)
    k("v_mul_f32 v10, 0x3acccccd, v8", "v_mov_b32 v9, 0", "v_mov_b32 v11, 0")
    for i in range(8): k(f"v_sub_f32 v13, v{108+i}, v10", "v_fmac_f32 v9, v13, v13")
    for i in range(8, 16): k(f"v_sub_f32 v13, v{108+i}, v10", "v_fmac_f32 v11, v13, v13")
    k("v_cndmask_b32 v11, 0, v11, vcc", "v_add_f32 v9, v9, v11")
    wsum(9)
    k("s_lshl_b32 s38, s37, 3", "v_mov_b32 v2, s38", "s_mov_b64 s[40:41], exec", "s_mov_b64 exec, 1", "buffer_store_dwordx2 v[8:9], v2, s[20:23], 0 offen sc1", "s_mov_b64 exec, s[40:41]")
    k("s_add_u32 s36, s36, 32")
    k("s_cmp_ge_u32 s36, 502", f"s_cbranch_scc1 {done}")
    k("s_cmp_ge_u32 s36, 430", f"s_cbranch_scc1 {lod}")
    k("s_cmp_ge_u32 s36, 270", f"s_cbranch_scc1 {lgu}")
    k("s_cmp_ge_u32 s36, 110", f"s_cbranch_scc1 {lwq}")
    k.lab(lcs)
    k("s_sub_u32 s36, s36, 32")
    k("s_mov_b32 s37, 3840", "s_mov_b32 s38, 0", "s_mov_b64 s[40:41], s[8:9]", "s_mov_b32 s42, s10", "s_mov_b32 s39, s36")
    l1 = k.newlab("m")
    k("s_cmp_lt_u32 s36, 30", f"s_cbranch_scc1 {l1}")
    k("s_mov_b32 s37, 3072", "s_mov_b32 s38, 2048", "s_mov_b64 s[40:41], s[12:13]", "s_mov_b32 s42, s14", "s_sub_u32 s39, s36, 30")
    k("s_cmp_lt_u32 s36, 54", f"s_cbranch_scc1 {l1}")
    k("s_mov_b32 s38, 3584", "s_mov_b64 s[40:41], s[16:17]", "s_sub_u32 s39, s36, 54")
    k.lab(l1)
    k("s_mov_b32 s43, 0x00020000")
    k("v_lshrrev_b32 v1, 4, v0", "v_mul_u32_u24 v1, 40, v1", "v_mul_lo_u32 v1, v1, s37", "v_and_b32 v2, 15, v0", "v_lshl_add_u32 v1, v2, 3, v1")
    k("s_lshl_b32 s44, s39, 7", "v_add_u32 v1, s44, v1", "s_mov_b32 s45, 0")
    for r in range(40):
        k(f"buffer_load_dwordx2 v[{16+2*r}:{17+2*r}], v1, s[40:43], s45 offen", "s_add_u32 s45, s45, s37")
    for a_ in range(4): k(f"v_mov_b32 v{4+a_}, 0")
    k("s_waitcnt vmcnt(0)")
    for r in range(40):
        k(f"v_lshlrev_b32 v8, 16, v{16+2*r}", f"v_and_b32 v9, 0xffff0000, v{16+2*r}", f"v_lshlrev_b32 v10, 16, v{17+2*r}", f"v_and_b32 v11, 0xffff0000, v{17+2*r}",
          "v_add_f32 v4, v4, v8", "v_add_f32 v5, v5, v9", "v_add_f32 v6, v6, v10", "v_add_f32 v7, v7, v11")
    k("s_lshr_b32 s44, s29, 2", "s_lshl_b32 s44, s44, 12", "s_add_u32 s44, s44, 1024", "v_lshlrev_b32 v2, 4, v0", "v_add_u32 v2, s44, v2", "ds_write_b128 v2, v[4:7]")
    k("s_mov_b32 s83, 1")
    k(f"s_branch {done}")
    k.lab(lwq)
    k("s_sub_u32 s36, s36, 110", "s_mul_hi_u32 s37, s36, 0x1999999a", "s_mul_i32 s38, s37, 10", "s_sub_u32 s38, s36, s38")
    k("v_lshrrev_b32 v1, 5, v0", "v_and_b32 v2, 31, v0", "v_lshrrev_b32 v3, 1, v2", "v_and_b32 v4, 3, v1", "v_lshlrev_b32 v4, 2, v4", "v_xor_b32 v3, v3, v4")
    k("v_and_b32 v4, 1, v2", "v_lshl_add_u32 v3, v3, 1, v4", "v_lshrrev_b32 v4, 4, v3", "v_and_b32 v3, 15, v3")
    k("v_mul_u32_u24 v5, 52, v3", "v_lshrrev_b32 v5, 8, v5", "v_mul_u32_u24 v6, 5, v5", "v_sub_u32 v6, v3, v6")
    k("s_lshl_b32 s39, s37, 1", "v_add_u32 v4, s39, v4", "v_mul_u32_u24 v4, 40, v4", "v_mul_u32_u24 v5, 1280, v5", "v_add_u32 v4, v4, v5", "v_lshl_add_u32 v4, v6, 3, v4")
    k("s_lshl_b32 s39, s38, 6", "v_add_u32 v1, s39, v1", "v_mul_u32_u24 v1, 3840, v1", "v_add_u32 v1, v1, v4")
    k("v_cmp_eq_u32 vcc, 15, v3", "v_mov_b32 v5, 0x7ffffff0", "s_nop 0", "v_cndmask_b32 v1, v1, v5, vcc")
    for i in range(8): k(f"s_mov_b32 s39, {i*8*3840}", f"buffer_load_dwordx2 v[{16+2*i}:{17+2*i}], v1, s[8:11], s39 offen")
    k("s_lshr_b32 s40, s29, 2", "s_lshl_b32 s40, s40, 14", "s_add_u32 s40, s40, 16384", "v_lshlrev_b32 v2, 3, v0", "v_add_u32 v2, s40, v2")
    for i in range(8): k(f"s_waitcnt vmcnt({7-i})", f"ds_write_b64 v2, v[{16+2*i}:{17+2*i}] offset:{i*2048}")
    k("v_and_b32 v12, 63, v0", "v_lshrrev_b32 v3, 5, v12", "v_lshlrev_b32 v3, 11, v3", "v_and_b32 v4, 31, v12", "v_lshl_add_u32 v3, v4, 4, v3", "s_lshl_b32 s41, s28, 9", "v_add_u32 v3, s41, v3")
    k("v_add_u32 v4, s40, v3", "s_lshl_b32 s39, s36, 14", "s_waitcnt lgkmcnt(0)")
    for i in range(4): k(f"ds_read_b128 v[{32+4*i}:{35+4*i}], v4 offset:{i*4096}")
    for i in range(4): k(f"s_waitcnt lgkmcnt({3-i})", f"s_add_u32 s41, s39, {i*4096}", f"buffer_store_dwordx4 v[{32+4*i}:{35+4*i}], v3, s[60:63], s41 offen sc1")
    k(f"s_branch {done}")
    k.lab(lgu)
    k("s_sub_u32 s36, s36, 270", "s_mul_hi_u32 s37, s36, 0x1999999a", "s_mul_i32 s38, s37, 10", "s_sub_u32 s38, s36, s38")
    k("s_mov_b32 s40, 43691", "s_mul_i32 s41, s37, 192", "s_mul_i32 s42, s38, 196608", "s_add_u32 s41, s41, s42")
    for j in range(3):
        k(f"v_add_u32 v1, {256*j}, v0", "v_mul_lo_u32 v2, v1, s40", "v_lshrrev_b32 v2, 19, v2", "v_mul_u32_u24 v3, 12, v2", "v_sub_u32 v3, v1, v3",
          "v_mul_u32_u24 v2, 3072, v2", "v_lshl_add_u32 v2, v3, 4, v2")
        k(f"buffer_load_dwordx4 v[{16+4*j}:{19+4*j}], v2, s[12:15], s41 offen", f"buffer_load_dwordx4 v[{32+4*j}:{35+4*j}], v2, s[16:19], s41 offen")
    k("s_mul_i32 s39, s36, 24576", "v_lshlrev_b32 v2, 4, v0", "s_waitcnt vmcnt(0)")
    for j in range(3):
        k(f"s_add_u32 s40, s39, {j*4096}", f"buffer_store_dwordx4 v[{16+4*j}:{19+4*j}], v2, s[64:67], s40 offen sc1")
        k(f"s_add_u32 s40, s39, {12288+j*4096}", f"buffer_store_dwordx4 v[{32+4*j}:{35+4*j}], v2, s[64:67], s40 offen sc1")
    k(f"s_branch {done}")
    k.lab(lod)
    k("s_sub_u32 s36, s36, 430")
    k("s_mul_hi_u32 s37, s36, 0x55555556", "s_mul_i32 s38, s37, 3", "s_sub_u32 s38, s36, s38")
    k("s_mov_b64 s[40:41], s[52:53]", "s_mov_b32 s42, s54", "s_mov_b64 s[44:45], s[72:73]", "s_mov_b32 s46, s74", "s_mov_b32 s39, s36", "s_mov_b32 s51, 1")
    l3 = k.newlab("isd")
    k("s_cmp_lt_u32 s36, 24", f"s_cbranch_scc1 {l3}")
    k("s_sub_u32 s39, s36, 24", "s_mul_hi_u32 s37, s39, 0x2aaaaaab", "s_mul_i32 s38, s37, 6", "s_sub_u32 s38, s39, s38")
    k("s_mov_b64 s[40:41], s[56:57]", "s_mov_b32 s42, s58", "s_mov_b64 s[44:45], s[76:77]", "s_mov_b32 s46, s78", "s_mov_b32 s51, 0")
    k.lab(l3)
    k("s_mov_b32 s43, 0x00020000", "s_mov_b32 s47, 0x00020000")
    k("s_mov_b32 s48, 52429", "s_mul_i32 s49, s37, 160", "s_lshl_b32 s50, s38, 8", "v_mov_b32 v8, 0x7ffffff0")
    for j in range(10):
        l4 = k.newlab("nt")
        k(f"v_add_u32 v1, {256*j}, v0", "v_mul_lo_u32 v2, v1, s48", "v_lshrrev_b32 v2, 19, v2", "v_mul_u32_u24 v3, 10, v2", "v_sub_u32 v3, v1, v3", "v_add_u32 v2, s50, v2")
        k("s_mov_b64 vcc, 0", "s_cmp_eq_u32 s51, 0", f"s_cbranch_scc1 {l4}")
        k("v_mul_u32_u24 v4, 2731, v2", "v_lshrrev_b32 v4, 16, v4", "v_mul_u32_u24 v5, 24, v4", "v_sub_u32 v5, v2, v5", "v_mul_u32_u24 v4, 20, v4", "v_add_u32 v2, v4, v5", "v_cmp_le_u32 vcc, 20, v5")
        k.lab(l4)
        k("v_mul_u32_u24 v2, 1280, v2", "v_lshl_add_u32 v2, v3, 4, v2", "s_nop 1", "v_cndmask_b32 v2, v2, v8, vcc")
        k(f"buffer_load_dwordx4 v[{16+4*j}:{19+4*j}], v2, s[40:43], s49 offen")
    k("s_mul_i32 s39, s39, 40960", "v_lshlrev_b32 v2, 4, v0", "s_waitcnt vmcnt(0)")
    for j in range(10):
        k(f"s_add_u32 s48, s39, {j*4096}", f"buffer_store_dwordx4 v[{16+4*j}:{19+4*j}], v2, s[44:47], s48 offen sc1")
    k.lab(done)
    k("s_lshl_b32 s36, s29, 6", "v_mbcnt_lo_u32_b32 v1, -1, 0", "v_mbcnt_hi_u32_b32 v1, -1, v1", "v_add_u32 v0, s36, v1")
    k("s_waitcnt lgkmcnt(0)", "s_barrier")
    lnc = k.newlab("nocs")
    k("s_cmp_eq_u32 s83, 0", f"s_cbranch_scc1 {lnc}", "s_cmp_lg_u32 s28, 0", f"s_cbranch_scc1 {lnc}")
    k("v_lshlrev_b32 v2, 2, v1", "v_add_u32 v2, s44, v2")
    for g in range(16): k(f"ds_read_b32 v{16+g}, v2 offset:{g*256}")
    k("s_waitcnt lgkmcnt(0)")
    for g in range(1, 16): k(f"v_add_f32 v16, v16, v{16+g}")
    k("s_lshl_b32 s44, s39, 6", "v_add_u32 v3, s44, v1", "v_add_u32 v2, s38, v3")
    l2 = k.newlab("nq")
    k("s_cmp_lg_u32 s38, 0", f"s_cbranch_scc1 {l2}")
    k("s_mov_b32 s44, 52429", "v_mul_lo_u32 v4, v3, s44", "v_lshrrev_b32 v4, 20, v4")
    k("v_mul_u32_u24 v5, 20, v4", "v_sub_u32 v5, v3, v5", "v_lshrrev_b32 v6, 5, v4", "v_and_b32 v4, 31, v4")
    k("v_mul_u32_u24 v6, 20, v6", "v_add_u32 v5, v5, v6", "v_lshl_add_u32 v2, v4, 6, v5")
    k.lab(l2)
    k("v_lshlrev_b32 v2, 2, v2", "buffer_store_dword v16, v2, s[68:71], 0 offen sc1")
    k.lab(lnc)
    k("s_waitcnt vmcnt(0)", "s_barrier")
    k("s_memrealtime s[100:101]", "s_waitcnt lgkmcnt(0)", "v_mov_b32 v254, s100")
    lns = k.newlab("noslot")
    k("s_cmp_lg_u32 s29, 0", f"s_cbranch_scc1 {lns}")
    k("v_mov_b32 v22, 0", "s_mov_b64 s[36:37], exec", "s_mov_b64 exec, 1", "ds_write_b32 v22, v253", "s_waitcnt lgkmcnt(0)", "s_mov_b64 exec, s[36:37]")
    k.lab(lns)
    k("s_barrier", "v_mov_b32 v22, 0", "ds_read_b32 v23, v22", "s_waitcnt lgkmcnt(0)", "v_readfirstlane_b32 s2, v23", "s_nop 3", "s_and_b32 s2, s2, 31", "s_lshl_b32 s2, s2, 3",
      "s_getreg_b32 s24, hwreg(HW_REG_XCC_ID)", "s_and_b32 s24, s24, 7", "s_add_u32 s2, s2, s24")
    l5 = k.newlab("gb"); lp = k.newlab("gpoll"); lo = k.newlab("gok"); ln = k.newlab("notlast")
    k("s_cmp_lg_u32 s29, 0", f"s_cbranch_scc1 {l5}")
    k("s_and_b32 s38, s2, 7", "s_lshl_b32 s38, s38, 2", "s_add_u32 s38, s38, 64", "v_mov_b32 v24, s38", "v_mov_b32 v23, 1")
    k("buffer_atomic_add v23, v24, s[96:99], 0 offen sc0 sc1" if False else "s_nop 0")
    k("s_mov_b64 s[36:37], exec", "s_mov_b64 exec, 1", "buffer_atomic_add v23, v24, s[96:99], 0 offen sc0 sc1", "s_waitcnt vmcnt(0)", "s_mov_b64 exec, s[36:37]")
    k("v_readfirstlane_b32 s38, v23", "s_nop 3", "s_cmp_lg_u32 s38, 31", f"s_cbranch_scc1 {ln}")
    k("v_mov_b32 v24, 96", "v_mov_b32 v23, 1", "s_mov_b64 exec, 1", "buffer_atomic_add v23, v24, s[96:99], 0 offen sc0 sc1", "s_waitcnt vmcnt(0)", "s_mov_b64 exec, s[36:37]")
    k("v_readfirstlane_b32 s38, v23", "s_nop 3", "s_cmp_lg_u32 s38, 7", f"s_cbranch_scc1 {ln}")
    k("v_mov_b32 v24, 128", "v_mov_b32 v23, 1", "s_mov_b64 exec, 1", "buffer_store_dword v23, v24, s[96:99], 0 offen sc1", "s_mov_b64 exec, s[36:37]")
    k.lab(ln)
    k("v_mov_b32 v24, 128", "s_mov_b32 s38, 0")
    k.lab(lp)
    k("buffer_load_dword v23, v24, s[96:99], 0 offen sc1", "s_waitcnt vmcnt(0)", "v_cmp_gt_u32 vcc, 1, v23", "s_nop 4", f"s_cbranch_vccz {lo}",
      "s_add_u32 s38, s38, 1", "s_cmp_gt_u32 s38, 8000", f"s_cbranch_scc1 {lo}", "s_sleep 6", f"s_branch {lp}")
    k.lab(lo)
    k.lab(l5)
    k("s_barrier")

def gen_mega(name, nph=10, stamps=None):
    k = K(name, 256, 512, 163840, sgpr=102)
    done = k.newlab("done")
    k("s_load_dwordx2 s[84:85], s[0:1], 72", "s_load_dwordx2 s[86:87], s[0:1], 0", "s_load_dwordx2 s[88:89], s[0:1], 56", "s_load_dwordx2 s[96:97], s[0:1], 64")
    k("s_cmp_ge_u32 s2, 256", f"s_cbranch_scc1 {done}")
    k("v_and_b32 v1, 63, v0", "v_lshrrev_b32 v25, 6, v0", "s_nop 0", "v_readfirstlane_b32 s29, v25", "s_nop 3", "s_and_b32 s28, s29, 3")
    k("s_waitcnt lgkmcnt(0)")
    srd(k, 92, "CNT")
    k("s_and_b32 s97, s97, 0xffff", "s_mov_b32 s98, 256", "s_mov_b32 s99, 0x00020000")
    lns = k.newlab("noslot")
    k("s_getreg_b32 s24, hwreg(HW_REG_XCC_ID)", "s_and_b32 s24, s24, 7", "v_mov_b32 v253, 1")
    k("s_cmp_lg_u32 s29, 0", f"s_cbranch_scc1 {lns}")
    k("s_lshl_b32 s38, s24, 2", "v_mov_b32 v24, s38")
    k("s_mov_b64 s[36:37], exec", "s_mov_b64 exec, 1")
    k("buffer_atomic_add v253, v24, s[96:99], 0 offen sc0 sc1")
    k("s_mov_b64 exec, s[36:37]")
    k.lab(lns)
    if stamps is not None: k("s_memrealtime s[100:101]", "s_waitcnt lgkmcnt(0)", "v_mov_b32 v255, s100")
    if PREPK:
        lns2 = k.newlab("noslot")
        k("s_cmp_lg_u32 s29, 0", f"s_cbranch_scc1 {lns2}")
        k("v_mov_b32 v22, 0", "s_mov_b64 s[36:37], exec", "s_mov_b64 exec, 1", "s_waitcnt vmcnt(0)", "ds_write_b32 v22, v253", "s_waitcnt lgkmcnt(0)", "s_mov_b64 exec, s[36:37]")
        k.lab(lns2)
        k("s_barrier", "v_mov_b32 v22, 0", "ds_read_b32 v23, v22", "s_waitcnt lgkmcnt(0)", "v_readfirstlane_b32 s2, v23", "s_nop 3", "s_and_b32 s2, s2, 31", "s_lshl_b32 s2, s2, 3", "s_add_u32 s2, s2, s24", "s_barrier")
        k("v_mov_b32 v254, 0")
    else:
        ph_prep(k)
    if stamps is not None: stamp(k, 0); k("v_readfirstlane_b32 s66, v255", "v_readfirstlane_b32 s64, v254")
    seq = [(L, kind) for L in range(2) for kind in 'qawgd']
    wds = {}; r = 0
    for (L, kind) in seq:
        if kind == 'a': continue
        wds[(L, kind)] = WDesc(kind, r); r = (r + {'q': 10, 'g': 10, 'w': 6, 'd': 12}[kind]) % 4
    gl = [x for x in seq if x[1] != 'a']
    l0 = k.newlab("w0")
    k("s_cmp_lt_u32 s29, 4", f"s_cbranch_scc1 {l0}")
    wds[gl[0]].setup(k)
    for kt in range(4): k(*wds[gl[0]].wl(kt))
    k.lab(l0)
    for ph, (L, kind) in enumerate(seq):
        st0 = (1 + 4*stamps.index(ph)) if (stamps is not None and ph in stamps) else None
        if kind == 'a':
            ph_attn(k, L, st0); continue
        wd = wds[(L, kind)]; gi = gl.index((L, kind)); nxt = wds[gl[gi+1]] if gi + 1 < len(gl) else None
        if kind == 'q': ph_qkv(k, L, 'x' if L == 0 else 'XB', 'STX' if L == 0 else 'STB', wd, nxt, st0)
        elif kind == 'g': ph_glu(k, L, wd, nxt, st0)
        else: ph_out(k, L, kind, wd, nxt, st0)
    if stamps is not None: stamps_out2(k, 14, 17)
    k.lab(done)
    k("s_endpgm")
    return k

def gen_prep2(name):
    k = gen.gen_prep(name)
    i = k.L.index("    buffer_store_dwordx2 v[4:5], v1, s[20:23], 0 offen")
    extra = ["s_load_dwordx2 s[64:65], s[0:1], 72", "s_waitcnt lgkmcnt(0)", f"s_add_u32 s64, s64, {WS['CNT']:#x}", "s_addc_u32 s65, s65, 0", "s_and_b32 s65, s65, 0xffff",
             f"s_mov_b32 s66, {SZ['CNT']}", "s_mov_b32 s67, 0x00020000", "v_lshlrev_b32 v1, 1, v1", "v_mov_b32 v4, 0", "v_mov_b32 v5, 0", "v_mov_b32 v6, 0", "v_mov_b32 v7, 0", "s_nop 1",
             "buffer_store_dwordx4 v[4:7], v1, s[64:67], 0 offen"]
    k.L[i+1:i+1] = ["    " + e for e in extra]
    return k

if __name__ == "__main__":
    pre = [gen_prep2("prep_kernel")] if PREPK else []
    out = os.environ.get("OUT", "interleave_layers__sliding_block__glu_gated_glu__prompt.s")
    if len(sys.argv) > 1:
        st = [int(x) for x in sys.argv[1].split(",")]
        m = gen_mega("mega_kernel", 10, st)
        build(pre + [m], pre + [m], "mb.s")
    else:
        m = gen_mega("mega_kernel")
        build(pre + [m], pre + [m], out)
```

```python
import json, sys, struct
sys.path.insert(0, 'dev')
import gen
from gen import K, KA, INSZ, interleave, merge_stats, rne_bf16, stamp, build, ptr_loads, ptr_srds

MB = 0x100000
WS = dict(QKV0=0, QKV1=8*MB, O0=16*MB, O1=19*MB+0x80000, XA0=23*MB, XA1=25*MB+0x80000, XB=28*MB+0x40000, H0=31*MB, H1=38*MB,
          STX=45*MB, STA0=45*MB+0x40000, STA1=45*MB+0x80000, STB=45*MB+0xC0000, CS=46*MB, CNT=46*MB+0x40000,
          WQ=47*MB, WGU=50*MB, WO=54*MB, WD=55*MB)
SZ = dict(QKV0=2048*1920*2, QKV1=2048*1920*2, O0=32*2048*48, O1=32*2048*48, XA0=2048*1280, XA1=2048*1280, XB=2048*1280, H0=2048*3072, H1=2048*3072,
          STX=2048*64, STA0=2048*64, STA1=2048*64, STB=2048*64, CS=5120*4, CNT=640*128,
          WQ=16*640*256, WGU=16*640*384, WO=8*768*160, WD=8*1536*160)
import os
if int(os.environ.get("SHARE", "2")):
    off = 0
    SZ['QKV0'] = SZ['QKV1'] = 6*32*81920
    for nm in ['CNT', 'CS', 'STX', 'STA0', 'XA0', 'O0', 'H0', 'QKV0', 'WQ', 'WGU', 'WO', 'WD']:
        WS[nm] = off; off += (SZ[nm] + 4095) // 4096 * 4096
    WS['QKV1'] = WS['QKV0']; WS['O1'] = WS['O0']; WS['XA1'] = WS['XA0']; WS['H1'] = WS['H0']; WS['STA1'] = WS['STA0']
    if int(os.environ.get("SHARE", "2")) > 1: WS['XB'] = WS['XA0']; WS['STB'] = WS['STA0']
    else: WS['XB'] = off; WS['STB'] = off + 3*MB
gen.WS.clear(); gen.WS.update(WS); gen.SZ.clear(); gen.SZ.update(SZ)
SC = " sc1"
QOFF = [(0, 1, 2), (3, 4, 5)]
import os
TOUCH = int(os.environ.get('TOUCH','1')); PAT = int(os.environ.get('PAT','1')); PREPK = int(os.environ.get('PREPK','1')); RT = int(os.environ.get('RT','0')); FINE = int(os.environ.get("FINE", "0")); XAL = 1; DUP = int(os.environ.get("DUP", "0"))
_K_call = K.__call__
def _call(self, *ts):
    for t in ts:
        _K_call(self, t)
        if DUP and t.startswith("buffer_store") and t.endswith(" sc1"):
            _K_call(self, t[:-4])
K.__call__ = _call

if RT:
    def stamp(k, i): k(f"s_memrealtime s[{40+2*i}:{41+2*i}]")
WS['DBG'] = 60*MB; SZ['DBG'] = 256*64
gen.WS['DBG'] = 60*MB; gen.SZ['DBG'] = 256*64
def srd(k, sreg, name):
    if name in WS:
        k(f"s_add_u32 s{sreg}, s84, {WS[name]:#x}", f"s_addc_u32 s{sreg+1}, s85, 0", f"s_mov_b32 s{sreg+2}, {SZ[name]}")
    else:
        p = {'x': 86, 'out': 88}[name]
        k(f"s_mov_b32 s{sreg}, s{p}", f"s_mov_b32 s{sreg+1}, s{p+1}", f"s_mov_b32 s{sreg+2}, {INSZ[name]}")
    k(f"s_and_b32 s{sreg+1}, s{sreg+1}, 0xffff", f"s_mov_b32 s{sreg+3}, 0x00020000")

def xcd_map16(k):
    if XAL:
        k("s_and_b32 s24, s2, 7", "s_lshr_b32 s25, s2, 3", "s_lshl_b32 s26, s24, 1", "s_and_b32 s27, s25, 1", "s_add_u32 s26, s26, s27", "s_lshr_b32 s27, s25, 1")
        return
    k("s_and_b32 s24, s2, 7", "s_lshr_b32 s25, s2, 3")
    k("s_lshr_b32 s26, s24, 1", "s_lshl_b32 s26, s26, 2", "s_and_b32 s27, s25, 3", "s_add_u32 s26, s26, s27")
    k("s_and_b32 s27, s24, 1", "s_lshl_b32 s27, s27, 3", "s_lshr_b32 s25, s25, 2", "s_add_u32 s27, s27, s25")

def poll(k, emit_addr, target):
    lp = k.newlab("poll"); lo = k.newlab("pok")
    k("s_cmp_lg_u32 s29, 3", f"s_cbranch_scc1 {lo}")
    emit_addr(k)
    k("s_mov_b32 s38, 0")
    k("buffer_load_dword v21, v24, s[92:95], 0 offen sc1", "s_sleep 3", "buffer_load_dword v22, v24, s[92:95], 0 offen sc1", "s_sleep 3")
    k.lab(lp)
    for r in (23, 21, 22):
        nx = {23: 21, 21: 22, 22: 23}[r]
        k(f"buffer_load_dword v{r}, v24, s[92:95], 0 offen sc1", "s_waitcnt vmcnt(2)", f"v_cmp_gt_u32 vcc, {target}, v{nx}", "s_nop 4", f"s_cbranch_vccz {lo}", "s_sleep 2")
    k("s_add_u32 s38, s38, 1", "s_cmp_gt_u32 s38, 4000", f"s_cbranch_scc0 {lp}")
    k.lab(lo)

def signal(k, sidx_reg):
    l = k.newlab("nosig"); l2 = k.newlab("nosig2")
    k("s_cmp_lg_u32 s29, 0", f"s_cbranch_scc1 {l}")
    k(f"s_lshl_b32 s38, s{sidx_reg}, 7", "v_mov_b32 v24, s38", "v_mov_b32 v23, 1")
    k("v_cmp_eq_u32 vcc, 0, v1", "s_and_saveexec_b64 s[36:37], vcc", f"s_cbranch_execz {l2}")
    k("buffer_atomic_add v23, v24, s[92:95], 0 offen sc1")
    k.lab(l2)
    k("s_mov_b64 exec, s[36:37]")
    k.lab(l)

def fsignal(k, sidx_reg, word_reg):
    l = k.newlab("nosig"); l2 = k.newlab("nosig2")
    k("s_cmp_lg_u32 s29, 0", f"s_cbranch_scc1 {l}")
    k(f"s_lshl_b32 s38, s{sidx_reg}, 7", f"s_lshl_b32 s39, s{word_reg}, 2", "s_add_u32 s38, s38, s39", "v_mov_b32 v24, s38", "v_mov_b32 v23, 1")
    k("v_cmp_eq_u32 vcc, 0, v1", "s_and_saveexec_b64 s[36:37], vcc", f"s_cbranch_execz {l2}")
    k("buffer_store_dword v23, v24, s[92:95], 0 offen")
    k.lab(l2)
    k("s_mov_b64 exec, s[36:37]")
    k.lab(l)

def fpoll_addr(idx_emit, n):
    def f(k):
        idx_emit(k)
        k("s_lshl_b32 s38, s38, 7", f"v_and_b32 v24, {n-1}, v1", "v_lshlrev_b32 v24, 2, v24", "v_add_u32 v24, s38, v24")
    return f

AS = 16384; WB = 65536; WSL = 24576
class WDesc:
    def __init__(s_, kind, r):
        s_.kind = kind; s_.r = r
        s_.name, s_.tile, s_.per, s_.kb, s_.sh = {'q': ('WQ', 163840, 4096, 16384, 4), 'g': ('WGU', 245760, 6144, 24576, 4),
                                          'w': ('WO', 768*160, 5120, 20480, 5), 'd': ('WD', 1536*160, 5120, 20480, 5)}[kind]
    def setup(s_, k):
        srd(k, 76, s_.name)
        k(f"s_lshr_b32 s82, s2, {s_.sh}", f"s_mul_i32 s82, s82, {s_.tile}", f"s_mul_i32 s80, s28, {s_.per}", "s_add_u32 s82, s82, s80")
        k("v_lshlrev_b32 v8, 4, v1", "v_add_u32 v8, s82, v8", "v_add_u32 v9, 4096, v8")
    def wl(s_, kt):
        sl = (kt + s_.r) % 4; n = s_.per // 1024
        Ls = [f"s_add_u32 m0, s80, {WB + sl*WSL}", f"s_mov_b32 s81, {kt*s_.kb}"]
        Ls += [f"buffer_load_dwordx4 v8, s[76:79], s81 offen offset:{j*1024} sc1 lds" for j in range(4)]
        if n > 4:
            Ls += [f"s_add_u32 m0, s80, {WB + sl*WSL + 4096}", "s_nop 0"]
            Ls += [f"buffer_load_dwordx4 v9, s[76:79], s81 offen offset:{j*1024} sc1 lds" for j in range(n - 4)]
        return Ls

def loader_phase(k, NK, wd, alist, nepi, nxt):
    NST = 4
    ops = []
    def iss(L, st):
        for t in L:
            k(t)
            if t.startswith("buffer_load"): ops.append(st)
    wd.setup(k)
    k("s_barrier")
    ai = -1
    def issue(upto):
        nonlocal ai
        while ai < min(upto, NK - 1):
            ai += 1
            iss(alist(ai), ai)
            if ai >= NST: iss(wd.wl(ai), ai)
    issue(1)
    for kt in range(NK):
        last = max(i for i, s in enumerate(ops) if s == kt)
        k(f"s_waitcnt vmcnt({len(ops)-1-last})", "s_barrier")
        issue(kt + NST - 1)
    if nxt:
        nxt.setup(k)
        for kt in range(3): k(*nxt.wl(kt))
    k("s_barrier")
    if nxt: k(*nxt.wl(3))
    for _ in range(nepi): k("s_barrier")

def act_dma_voffs(k):
    k("s_lshl_b32 s32, s26, 7", "s_lshl_b32 s33, s28, 5", "s_add_u32 s32, s32, s33")
    k("v_lshrrev_b32 v25, 3, v1", "v_add_u32 v25, s32, v25", "v_mul_u32_u24 v25, 1280, v25")
    k("v_and_b32 v26, 7, v1", "v_lshrrev_b32 v27, 4, v1", "v_xor_b32 v26, v26, v27", "v_lshlrev_b32 v26, 4, v26")
    k("v_xor_b32 v27, 64, v26")
    for j in range(4):
        k(f"v_add_u32 v{2+j}, v25, v{26 + (j&1)}")
        if j: k(f"v_add_u32 v{2+j}, {j*(8*1280-1024)}, v{2+j}")

def cnt_single(idx_sreg, base):
    def f(k): k(f"s_add_u32 s38, s{idx_sreg}, {base}", "s_lshl_b32 s38, s38, 7", "v_mov_b32 v24, s38")
    return f

def ph_qkv(k, L, xsrc, statsrc, wd, nxt, st0=None):
    NK = 10; NST = 4; R = wd.r
    lload = k.newlab("loader"); lend = k.newlab("end")
    xcd_map16(k)
    srd(k, 4, xsrc); srd(k, 16, f'QKV{L}'); srd(k, 20, statsrc); srd(k, 12, 'CS')
    k("s_cmp_ge_u32 s29, 4", f"s_cbranch_scc1 {lload}")
    k("s_and_b32 s30, s29, 1", "s_lshr_b32 s31, s29, 1")
    k("v_and_b32 v25, 31, v1", "s_lshl_b32 s32, s26, 7", "s_lshl_b32 s33, s31, 6", "s_add_u32 s32, s32, s33", "v_add_u32 v28, s32, v25")
    ALT = (L == 0 and not PREPK)
    k(f"v_lshlrev_b32 v29, {3 if ALT else 6}, v28")
    k("v_lshrrev_b32 v30, 5, v1", "v_lshlrev_b32 v30, 4, v30", "s_lshl_b32 s32, s27, 9", "s_lshl_b32 s33, s30, 8", "s_add_u32 s32, s32, s33", "v_add_u32 v30, s32, v30")
    k("v_and_b32 v25, 31, v1", "s_lshl_b32 s32, s31, 6", "v_add_u32 v26, s32, v25", "v_lshlrev_b32 v26, 7, v26")
    k("v_lshrrev_b32 v25, 1, v25", "v_and_b32 v25, 7, v25", "v_lshrrev_b32 v27, 5, v1", "v_xor_b32 v25, v25, v27")
    for s in range(4):
        k(f"v_xor_b32 v27, {2*s}, v25", f"v_lshl_add_u32 v{10+s}, v27, 4, v26", f"v_add_u32 v{10+s}, {R*AS}, v{10+s}")
    k("v_lshrrev_b32 v25, 5, v1", "v_lshlrev_b32 v25, 3, v25", "v_bfe_u32 v26, v1, 2, 2", "v_add_u32 v25, v25, v26", "v_lshlrev_b32 v25, 8, v25")
    k("v_bfe_u32 v27, v1, 4, 1", "v_lshl_add_u32 v25, v27, 5, v25", "v_and_b32 v27, 3, v1", "v_lshl_add_u32 v25, v27, 3, v25", f"v_add_u32 v25, {WB + R*WSL}, v25")
    k("s_lshl_b32 s32, s30, 1")
    for ft in range(2):
        k(f"s_add_u32 s33, s32, {ft}", "v_xor_b32 v27, s33, v26", f"v_lshl_add_u32 v{14+ft}, v27, 6, v25")
    for i in range(64, 128): k(f"v_mov_b32 v{i}, 0")
    if L == 1: poll(k, fpoll_addr(lambda k: k('s_add_u32 s38, s26, 296'), 16), 1)
    k("s_barrier")
    for ft in range(2):
        for g in range(4): k(f"buffer_load_dwordx4 v[{128+16*ft+4*g}:{131+16*ft+4*g}], v30, s[12:15], 0 offen offset:{ft*128+g*32} sc1")
    if st0 is not None: stamp(k, st0)
    for tt in range(2):
        if ALT: k(f"buffer_load_dwordx2 v[{160+16*tt}:{161+16*tt}], v29, s[20:23], 0 offen offset:{tt*256}" + SC); continue
        for i in range(4): k(f"buffer_load_dwordx4 v[{160+16*tt+4*i}:{163+16*tt+4*i}], v29, s[20:23], 0 offen offset:{tt*2048+16*i}" + SC)
    def reads(s):
        fb = 32 + 16 * (s & 1); Ls = []
        for tt in range(2): Ls.append(f"ds_read_b128 v[{fb+4*tt}:{fb+4*tt+3}], v{10+s} offset:{tt*4096}")
        for ft in range(2):
            for r in range(2):
                Ls.append(f"ds_read_b64_tr_b16 v[{fb+8+4*ft+2*r}:{fb+8+4*ft+2*r+1}], v{14+ft} offset:{(16*s+4*r)*256}")
        return Ls
    def mfmas(s):
        fb = 32 + 16 * (s & 1); Ls = []
        for ft in range(2):
            for tt in range(2):
                a = 64 + (ft*2+tt)*16
                Ls.append(f"v_mfma_f32_32x32x16_bf16 v[{a}:{a+15}], v[{fb+8+4*ft}:{fb+8+4*ft+3}], v[{fb+4*tt}:{fb+4*tt+3}], v[{a}:{a+15}]")
        return Ls
    k("s_barrier")
    if st0 is not None: stamp(k, st0+1)
    k(*reads(0))
    for kt in range(NK):
        for s in range(4):
            k("s_waitcnt lgkmcnt(0)")
            M = mfmas(s)
            if s < 3:
                interleave(k, M, reads(s+1), [3, 3, 0, 0] if PAT else [2, 2, 2, 0])
            elif kt + 1 < NK:
                k(M[0], "s_barrier")
                wrap = (kt + 1 + R) % NST == 0
                for r in range(10, 14): k(f"v_add_u32 v{r}, {(-3*AS if wrap else AS) & 0xffffffff:#x}, v{r}")
                for r in range(14, 16): k(f"v_add_u32 v{r}, {(-3*WSL if wrap else WSL) & 0xffffffff:#x}, v{r}")
                interleave(k, M[1:], reads(0), [6, 0, 0] if PAT else [2, 2, 2])
            else:
                k(*M)
        if kt == 3:
            k("s_waitcnt vmcnt(0)")
            for tt in range(2):
                if ALT:
                    k(f"v_mul_f32 v16, 0x3acccccd, v{160+16*tt}", f"v_mul_f32 v17, 0x3acccccd, v{161+16*tt}")
                    gen.finish_stats(k, 16, 17, 192+4*tt, 194+4*tt)
                else: merge_stats(k, 160+16*tt, 16, 192+4*tt, 194+4*tt)
                k(f"v_mov_b32 v{193+4*tt}, v{192+4*tt}", f"v_mov_b32 v{195+4*tt}, v{194+4*tt}")
        if kt == 5:
            k("s_mul_i32 s32, s29, 12288", "v_and_b32 v25, 31, v1", "v_mul_u32_u24 v25, 40, v25", "v_add_u32 v25, s32, v25", "v_cmp_gt_u32 vcc, 32, v1")
            for ft in range(2):
                for g in range(4):
                    def off(jg): return 7680 if jg == 15 else (jg // 5) * 2560 + (jg % 5) * 8
                    j0 = 8*ft + 2*g
                    k(f"v_mov_b32 v26, {off(j0+1)}", f"v_mov_b32 v27, {off(j0)}", "s_nop 0", "v_cndmask_b32 v26, v26, v27, vcc", f"v_add_u32 v{200+ft*4+g}, v25, v26")
            k("v_lshlrev_b32 v28, 4, v1", "v_add_u32 v208, s32, v28")
            k("s_lshl_b32 s32, s27, 1", "s_add_u32 s32, s32, s30", "s_mul_i32 s32, s32, 81920", "s_lshl_b32 s33, s26, 1", "s_add_u32 s33, s33, s31", "s_mul_i32 s33, s33, 2560", "s_add_u32 s39, s32, s33")
    if st0 is not None: stamp(k, st0+2)
    k("s_barrier")
    k("s_nop 4")
    for tt in range(2):
        for ft in range(2):
            a = 64 + (ft*2+tt)*16; vm = 192 + 4*tt; vr = 194 + 4*tt
            for r in range(0, 16, 2):
                k(f"v_pk_fma_f32 v[{a+r}:{a+r+1}], v[{vm}:{vm+1}], v[{128+ft*16+r}:{129+ft*16+r}], v[{a+r}:{a+r+1}] neg_lo:[1,0,0] neg_hi:[1,0,0]")
                k(f"v_pk_mul_f32 v[{a+r}:{a+r+1}], v[{a+r}:{a+r+1}], v[{vr}:{vr+1}]")
            for g in range(4):
                d = 32 + 2*((ft*4+g) % 8)
                k(f"v_cvt_pk_bf16_f32 v{d}, v{a+4*g}, v{a+4*g+1}", f"v_cvt_pk_bf16_f32 v{d+1}, v{a+4*g+2}, v{a+4*g+3}")
                k(f"ds_write_b64 v{200+ft*4+g}, v[{d}:{d+1}] offset:{tt*1280}")
    k("s_waitcnt lgkmcnt(0)")
    for wh in range(3):
        for n in range(3): k(f"ds_read_b128 v[{64+4*(wh*3+n)}:{67+4*(wh*3+n)}], v208 offset:{wh*2560+n*1024}")
    k("v_cmp_gt_u32 vcc, 32, v1")
    for n in range(2):
        for wh in range(3):
            i = wh*3+n
            k(f"s_add_u32 s33, s39, {QOFF[L][wh]*32*81920}", "s_waitcnt lgkmcnt(0)", f"buffer_store_dwordx4 v[{64+4*i}:{67+4*i}], v28, s[16:19], s33 offen offset:{n*1024}" + SC)
    k("s_and_saveexec_b64 s[36:37], vcc")
    for wh in range(3):
        i = wh*3+2
        k(f"s_add_u32 s33, s39, {QOFF[L][wh]*32*81920}", f"buffer_store_dwordx4 v[{64+4*i}:{67+4*i}], v28, s[16:19], s33 offen offset:2048" + SC)
    k("s_mov_b64 exec, s[36:37]")
    k("s_waitcnt vmcnt(0)", "s_barrier")
    if st0 is not None: stamp(k, st0+3)
    k("s_lshl_b32 s32, s26, 4", "s_add_u32 s32, s32, s27", f"s_add_u32 s32, s32, {L*320}")
    signal(k, 32)
    k(f"s_branch {lend}")
    k.lab(lload)
    act_dma_voffs(k)
    k("s_lshl_b32 s34, s28, 12")
    def al(kt):
        st = (kt + R) % NST
        return [f"s_add_u32 m0, s34, {st*AS}", f"s_mov_b32 s35, {kt*128}"] + [f"buffer_load_dwordx4 v{2+j}, s[4:7], s35 offen offset:{j*1024} sc1 lds" for j in range(4)]
    loader_phase(k, NK, wd, al, 1, nxt)
    k.lab(lend)

def ph_attn(k, L, st0=None):
    VB = 20480
    srd(k, 4, f'QKV{L}'); srd(k, 16, f'O{L}')
    k("s_and_b32 s26, s2, 7", "s_lshr_b32 s27, s2, 3")
    k("s_lshr_b32 s32, s29, 2", f"s_add_u32 s32, s32, {QOFF[L][1]}", "s_lshl_b32 s32, s32, 5", "s_add_u32 s32, s32, s27", "s_mul_i32 s32, s32, 81920")
    k("s_mul_i32 s33, s26, 10240", "s_add_u32 s32, s32, s33", "s_sub_u32 s32, s32, 10240", "s_mul_i32 s33, s28, 5120", "s_add_u32 s32, s32, s33")
    lneg = k.newlab("neg")
    k("s_cmp_lg_u32 s26, 0", f"s_cbranch_scc1 {lneg}", "s_cmp_ge_u32 s28, 2", f"s_cbranch_scc1 {lneg}", "s_mov_b32 s32, 0x7ff00000")
    k.lab(lneg)
    k("v_lshlrev_b32 v2, 4, v1", "v_add_u32 v2, s32, v2", "v_add_u32 v3, 4096, v2")
    k("s_mul_i32 s34, s29, 5120")
    k("v_and_b32 v20, 31, v1", "s_lshl_b32 s32, s26, 8", "s_lshl_b32 s35, s29, 5", "s_add_u32 s32, s32, s35", "v_add_u32 v4, s32, v20")
    k("v_lshrrev_b32 v6, 5, v1")
    k(f"s_add_u32 s33, s27, {QOFF[L][0]*32}", "s_mul_i32 s33, s33, 81920", "s_mul_i32 s32, s26, 10240", "s_add_u32 s33, s33, s32", "s_lshl_b32 s32, s29, 11", "s_add_u32 s33, s33, s32", "v_lshlrev_b32 v7, 4, v1", "v_add_u32 v7, s33, v7")
    k("s_add_u32 s39, s32, 40960")
    k("v_add_u32 v5, s35, v20", "v_mul_u32_u24 v5, 40, v5", "v_lshl_add_u32 v5, v6, 4, v5", "v_add_u32 v5, 40960, v5")
    k("v_mov_b32 v14, 0", "v_mov_b32 v15, 0")
    k("v_add_u32 v16, s35, v20", "v_mul_u32_u24 v16, 40, v16", "v_lshl_add_u32 v16, v6, 4, v16")
    k("v_lshlrev_b32 v17, 2, v6", "v_bfe_u32 v18, v1, 2, 2", "v_add_u32 v17, v17, v18", "v_add_u32 v17, s35, v17", "v_mul_u32_u24 v17, 40, v17")
    k("v_bfe_u32 v18, v1, 4, 1", "v_lshl_add_u32 v17, v18, 5, v17", "v_and_b32 v18, 3, v1", "v_lshl_add_u32 v17, v18, 3, v17", f"v_add_u32 v17, {VB}, v17")
    k("v_lshlrev_b32 v18, 2, v6", "v_sub_u32 v18, v20, v18")
    def addr(k):
        k("v_and_b32 v24, 3, v1", "s_lshl_b32 s38, s26, 1", "s_sub_u32 s38, s38, 2", "v_add_u32 v24, s38, v24", "v_max_i32 v24, 0, v24")
        k("s_lshr_b32 s38, s27, 1", f"s_add_u32 s38, s38, {L*320}", "v_lshl_add_u32 v24, v24, 4, s38", "v_lshlrev_b32 v24, 7, v24")
    poll(k, addr, 1)
    k("s_barrier")
    if st0 is not None: stamp(k, st0)
    k("s_mov_b32 m0, s34", "s_nop 0")
    for j in range(4): k(f"buffer_load_dwordx4 v2, s[4:7], 0 offen offset:{j*1024} sc1 lds")
    k("s_add_u32 m0, s34, 4096", "s_nop 0", "buffer_load_dwordx4 v3, s[4:7], 0 offen sc1 lds")
    lnq = k.newlab("noq")
    k("s_cmp_ge_u32 s29, 5", f"s_cbranch_scc1 {lnq}")
    k("s_mov_b32 m0, s39", "s_nop 0", "buffer_load_dwordx4 v7, s[4:7], 0 offen sc1 lds", "buffer_load_dwordx4 v7, s[4:7], 0 offen offset:1024 sc1 lds")
    k.lab(lnq)
    k("v_cmp_gt_u32 vcc, 32, v1")
    k("s_waitcnt vmcnt(0)")
    k("s_barrier")
    k("ds_read_b64 v[8:9], v5", "ds_read_b64 v[10:11], v5 offset:8", "ds_read_b64 v[12:13], v5 offset:32")
    if st0 is not None: stamp(k, st0+1)
    S = 64; KF = 24
    def kread(i):
        b = KF + 8*(i & 1)
        for p, o in enumerate((0, 8, 32, 40)):
            k(f"ds_read_b64 v[{b+2*p}:{b+2*p+1}], v16 offset:{i*1280+o}")
    kread(0)
    for i in range(9):
        if i < 8: kread(i+1); k("s_waitcnt lgkmcnt(4)")
        else: k("s_waitcnt lgkmcnt(0)")
        if i == 0: k("v_cndmask_b32 v12, 0, v12, vcc", "v_cndmask_b32 v13, 0, v13, vcc", "s_nop 1")
        b = KF + 8*(i & 1); a = S + 16*i
        k(f"v_mfma_f32_32x32x16_bf16 v[{a}:{a+15}], v[{b}:{b+3}], v[8:11], 0")
        k(f"v_mfma_f32_32x32x16_bf16 v[{a}:{a+15}], v[{b+4}:{b+7}], v[12:15], v[{a}:{a+15}]")
    k("s_nop 7", "s_nop 7")
    k("v_mov_b32 v43, 0xce6e6b28")
    for g in range(4):
        for r in range(4):
            c = 8*g + r
            k(f"v_cmp_le_i32 vcc, {c}, v18", "s_nop 1")
            k(f"v_cndmask_b32 v{S+128+4*g+r}, v43, v{S+128+4*g+r}, vcc", f"v_cndmask_b32 v{S+4*g+r}, v{S+4*g+r}, v43, vcc")
    lq = k.newlab("q0")
    k("s_cmp_lg_u32 s26, 0", f"s_cbranch_scc1 {lq}")
    for i in range(8):
        ls = k.newlab("sk")
        k(f"s_add_u32 s32, s29, {i}", "s_cmp_ge_u32 s32, 8", f"s_cbranch_scc1 {ls}")
        for r in range(16): k(f"v_mov_b32 v{S+16*i+r}, v43")
        k.lab(ls)
    k.lab(lq)
    k(f"v_max3_f32 v44, v{S}, v{S+1}, v{S+2}", f"v_max3_f32 v45, v{S+3}, v{S+4}, v{S+5}")
    for n, r in enumerate(range(S+6, S+144, 2)): k(f"v_max3_f32 v{44+(n&1)}, v{44+(n&1)}, v{r}, v{r+1}")
    k("v_max_f32 v44, v44, v45")
    k("v_mov_b32 v45, v44", "s_nop 1", "v_permlane32_swap_b32 v44, v45", "v_max_f32 v44, v44, v45")
    cc = struct.unpack('<I', struct.pack('<f', 1.4426950408889634 * struct.unpack('<f', struct.pack('<I', 0x3e64f92e))[0]))[0]
    k(f"v_mov_b32 v40, {cc:#x}", f"v_mov_b32 v41, {cc:#x}", "v_mul_f32 v44, v44, v40", "v_sub_f32 v44, 0, v44", "v_mov_b32 v45, v44", "v_mov_b32 v46, 0", "v_mov_b32 v47, 0")
    for i in range(9):
        for q in range(8):
            r = S + 16*i + 2*q
            k(f"v_pk_fma_f32 v[{r}:{r+1}], v[{r}:{r+1}], v[40:41], v[44:45]")
            k(f"v_exp_f32 v{r}, v{r}", f"v_exp_f32 v{r+1}, v{r+1}")
            if (i, q) != (0, 0):
                pr = r - 2 if q else S + 16*(i-1) + 14; pq = (S + 16*i + q - 1) if q else (S + 16*(i-1) + 7)
                k(f"v_pk_add_f32 v[46:47], v[46:47], v[{pr}:{pr+1}]", f"v_cvt_pk_bf16_f32 v{pq}, v{pr}, v{pr+1}")
    k("s_nop 0", f"v_pk_add_f32 v[46:47], v[46:47], v[{S+142}:{S+143}]", f"v_cvt_pk_bf16_f32 v{S+128+7}, v{S+142}, v{S+143}")
    k("v_add_f32 v46, v46, v47", "v_mov_b32 v47, v46", "s_nop 1", "v_permlane32_swap_b32 v46, v47", "v_add_f32 v46, v46, v47")
    k("v_rcp_f32 v46, v46", "s_nop 0", "v_mov_b32 v47, v46")
    OA = 208; VF = 24
    def vread(i):
        b = VF + 8*(i & 1)
        for m in range(2):
            for r in range(2):
                k(f"ds_read_b64_tr_b16 v[{b+4*m+2*r}:{b+4*m+2*r+1}], v17 offset:{(32*i+16*m+8*r)*40}")
    vread(0)
    for i in range(9):
        if i < 8: vread(i+1); k("s_waitcnt lgkmcnt(4)")
        else: k("s_waitcnt lgkmcnt(0)")
        b = VF + 8*(i & 1); p = S + 16*i
        for m in range(2):
            c = "0" if (i == 0 and m == 0) else f"v[{OA}:{OA+15}]"
            k(f"v_mfma_f32_32x32x16_bf16 v[{OA}:{OA+15}], v[{b+4*m}:{b+4*m+3}], v[{p+4*m}:{p+4*m+3}], {c}")
    if st0 is not None: stamp(k, st0+2)
    k("s_mul_i32 s32, s29, 1536", "s_add_u32 s32, s32, 51328", "v_mul_u32_u24 v5, 48, v20", "v_lshl_add_u32 v5, v6, 3, v5", "v_add_u32 v5, s32, v5")
    k("v_lshlrev_b32 v7, 4, v1", "v_add_u32 v2, s32, v7")
    k("s_mul_i32 s33, s27, 98304", "s_lshl_b32 s32, s26, 8", "s_add_u32 s32, s32, s35", "s_mul_i32 s32, s32, 48", "s_add_u32 s33, s33, s32")
    k("v_cmp_gt_u32 vcc, 32, v1")
    k("s_nop 7", "s_nop 4")
    for g in range(3):
        k(f"v_pk_mul_f32 v[{OA+4*g}:{OA+4*g+1}], v[{OA+4*g}:{OA+4*g+1}], v[46:47]", f"v_pk_mul_f32 v[{OA+4*g+2}:{OA+4*g+3}], v[{OA+4*g+2}:{OA+4*g+3}], v[46:47]")
        k(f"v_cvt_pk_bf16_f32 v{40+2*g}, v{OA+4*g}, v{OA+4*g+1}", f"v_cvt_pk_bf16_f32 v{41+2*g}, v{OA+4*g+2}, v{OA+4*g+3}")
    k("v_cndmask_b32 v44, 0, v44, vcc", "v_cndmask_b32 v45, 0, v45, vcc")
    for g in range(3): k(f"ds_write_b64 v5, v[{40+2*g}:{41+2*g}] offset:{16*g}")
    k("s_waitcnt lgkmcnt(0)", "ds_read_b128 v[48:51], v2", "ds_read_b128 v[52:55], v2 offset:1024")
    k("s_waitcnt lgkmcnt(1)", "buffer_store_dwordx4 v[48:51], v7, s[16:19], s33 offen")
    k("s_and_saveexec_b64 s[36:37], vcc", "s_waitcnt lgkmcnt(0)", "buffer_store_dwordx4 v[52:55], v7, s[16:19], s33 offen offset:1024")
    k("s_mov_b64 exec, s[36:37]")
    k("s_waitcnt vmcnt(0)", "s_barrier")
    if st0 is not None: stamp(k, st0+3)
    k(f"s_add_u32 s32, s26, {L*320+256}")
    fsignal(k, 32, 27)

def ph_glu(k, L, wd, nxt, st0=None):
    NK = 10; NST = 4; R = wd.r
    lload = k.newlab("loader"); lend = k.newlab("end")
    xcd_map16(k)
    srd(k, 4, f'XA{L}'); srd(k, 16, f'H{L}'); srd(k, 20, f'STA{L}'); srd(k, 68, 'CS')
    k("s_cmp_ge_u32 s29, 4", f"s_cbranch_scc1 {lload}")
    FB = 32; AC = 88; STV = 184; CSV = 188
    k("v_and_b32 v25, 31, v1", "s_lshl_b32 s32, s26, 7", "s_lshl_b32 s33, s29, 5", "s_add_u32 s32, s32, s33", "v_add_u32 v28, s32, v25", "v_lshlrev_b32 v29, 6, v28")
    k("v_lshrrev_b32 v30, 5, v1", "v_lshlrev_b32 v30, 4, v30", "s_mul_i32 s32, s27, 384", "s_add_u32 s32, s32, 8192", "v_add_u32 v30, s32, v30")
    k("s_lshl_b32 s32, s29, 5", "v_add_u32 v26, s32, v25", "v_lshlrev_b32 v26, 7, v26")
    k("v_lshrrev_b32 v25, 1, v25", "v_and_b32 v25, 7, v25", "v_lshrrev_b32 v27, 5, v1", "v_xor_b32 v25, v25, v27")
    for s in range(4):
        k(f"v_xor_b32 v27, {2*s}, v25", f"v_lshl_add_u32 v{10+s}, v27, 4, v26", f"v_add_u32 v{10+s}, {R*AS}, v{10+s}")
    k("v_lshrrev_b32 v25, 5, v1", "v_lshlrev_b32 v25, 3, v25", "v_bfe_u32 v26, v1, 2, 2", "v_add_u32 v25, v25, v26", "v_mul_u32_u24 v25, 192, v25")
    k("v_bfe_u32 v27, v1, 4, 1", "v_lshl_add_u32 v25, v27, 5, v25", "v_and_b32 v27, 3, v1", "v_lshl_add_u32 v25, v27, 3, v25", f"v_add_u32 v14, {WB + R*WSL}, v25")
    for i in range(AC, AC+96): k(f"v_mov_b32 v{i}, 0")
    def cs_load(t, dst):
        mtx, ft = divmod(t, 3)
        for g in range(4): k(f"buffer_load_dwordx4 v[{dst+4*g}:{dst+4*g+3}], v{30+mtx}, s[68:71], 0 offen offset:{ft*128+g*32} sc1")
    k("v_add_u32 v31, 6144, v30")
    if TOUCH == 1 and L == 0:
        k("v_mul_u32_u24 v26, 3072, v28", "s_mul_i32 s32, s27, 192", "v_add_u32 v26, s32, v26", "v_lshrrev_b32 v27, 5, v1", "v_lshl_add_u32 v26, v27, 7, v26")
        k("buffer_load_dword v252, v26, s[16:19], 0 offen", "buffer_load_dword v253, v26, s[16:19], 0 offen offset:60")
    poll(k, fpoll_addr(lambda k: k(f's_add_u32 s38, s26, {L*320+264}'), 16), 1)
    k("s_barrier")
    cs_load(0, CSV); cs_load(3, CSV+16); cs_load(1, CSV+32)
    if st0 is not None: stamp(k, st0)
    for i in range(4): k(f"buffer_load_dwordx4 v[{CSV+48+4*i}:{CSV+51+4*i}], v29, s[20:23], 0 offen offset:{16*i}" + SC)
    def reads(s):
        fb = FB + 28 * (s & 1); Ls = [f"ds_read_b128 v[{fb}:{fb+3}], v{10+s}"]
        for t in range(6):
            mtx, ft = divmod(t, 3)
            for r in range(2):
                Ls.append(f"ds_read_b64_tr_b16 v[{fb+4+4*t+2*r}:{fb+5+4*t+2*r}], v14 offset:{mtx*12288 + (16*s+4*r)*192 + ft*64}")
        return Ls
    def mfmas(s):
        fb = FB + 28 * (s & 1)
        return [f"v_mfma_f32_32x32x16_bf16 v[{AC+16*t}:{AC+16*t+15}], v[{fb+4+4*t}:{fb+7+4*t}], v[{fb}:{fb+3}], v[{AC+16*t}:{AC+16*t+15}]" for t in range(6)]
    k("s_barrier")
    if st0 is not None: stamp(k, st0+1)
    k(*reads(0))
    for kt in range(NK):
        for s in range(4):
            k("s_waitcnt lgkmcnt(0)")
            M = mfmas(s)
            if s < 3:
                interleave(k, M, reads(s+1), [5, 4, 4, 0, 0, 0] if PAT else [3, 3, 3, 2, 2, 0])
            elif kt + 1 < NK:
                k(M[0], "s_barrier")
                wrap = (kt + 1 + R) % NST == 0
                for r in range(10, 14): k(f"v_add_u32 v{r}, {(-3*AS if wrap else AS) & 0xffffffff:#x}, v{r}")
                k(f"v_add_u32 v14, {(-3*WSL if wrap else WSL) & 0xffffffff:#x}, v14")
                interleave(k, M[1:], reads(0), [5, 4, 4, 0, 0] if PAT else [3, 3, 3, 2, 2])
            else:
                k(*M)
        if kt == 3:
            k("s_waitcnt vmcnt(0)")
            merge_stats(k, CSV+48, 16, STV, STV+2)
            k(f"v_mov_b32 v{STV+1}, v{STV}", f"v_mov_b32 v{STV+3}, v{STV+2}")
            cs_load(4, CSV+48)
    if st0 is not None: stamp(k, st0+2)
    cs_load(2, FB)
    k("s_barrier")
    if st0 is not None and FINE: stamp(k, 12)
    cs_load(5, FB+28)
    k("s_mul_i32 s32, s29, 6656")
    k("v_and_b32 v25, 31, v1", "v_mul_u32_u24 v25, 208, v25", "v_lshrrev_b32 v26, 5, v1", "v_lshl_add_u32 v25, v26, 3, v25", "v_add_u32 v25, s32, v25")
    k("s_lshl_b32 s33, s26, 7", "s_lshl_b32 s38, s29, 5", "s_add_u32 s33, s33, s38", "s_mul_i32 s38, s27, 192", "s_mov_b32 s39, 43691")
    k("v_mov_b32 v16, 0xbfb8aa3b", "v_mov_b32 v17, 0xbfb8aa3b", "v_mov_b32 v18, 1.0", "v_mov_b32 v19, 1.0")
    csreg = {0: CSV, 3: CSV+16, 1: CSV+32, 4: CSV+48, 2: FB, 5: FB+28}
    for ft in range(3):
        if ft == 0: k("s_waitcnt vmcnt(8)")
        if ft == 2: k("s_waitcnt vmcnt(0)")
        ag = AC + 16*ft; au = AC + 16*(3+ft); cg = csreg[ft]; cu = csreg[3+ft]
        for r in range(0, 16, 2):
            k(f"v_pk_fma_f32 v[{ag+r}:{ag+r+1}], v[{STV}:{STV+1}], v[{cg+r}:{cg+r+1}], v[{ag+r}:{ag+r+1}] neg_lo:[1,0,0] neg_hi:[1,0,0]")
            k(f"v_pk_fma_f32 v[{au+r}:{au+r+1}], v[{STV}:{STV+1}], v[{cu+r}:{cu+r+1}], v[{au+r}:{au+r+1}] neg_lo:[1,0,0] neg_hi:[1,0,0]")
            k(f"v_pk_mul_f32 v[{ag+r}:{ag+r+1}], v[{ag+r}:{ag+r+1}], v[{STV+2}:{STV+3}]")
            k(f"v_pk_mul_f32 v[{au+r}:{au+r+1}], v[{au+r}:{au+r+1}], v[{STV+2}:{STV+3}]")
            k(f"v_cvt_pk_bf16_f32 v20, v{ag+r}, v{ag+r+1}", f"v_cvt_pk_bf16_f32 v21, v{au+r}, v{au+r+1}")
            k(f"v_lshlrev_b32 v{ag+r}, 16, v20", f"v_and_b32 v{ag+r+1}, 0xffff0000, v20", f"v_lshlrev_b32 v{au+r}, 16, v21", f"v_and_b32 v{au+r+1}, 0xffff0000, v21")
            k(f"v_pk_mul_f32 v[{ag+r}:{ag+r+1}], v[{ag+r}:{ag+r+1}], v[16:17]")
            k(f"v_exp_f32 v{ag+r}, v{ag+r}", f"v_exp_f32 v{ag+r+1}, v{ag+r+1}", "s_nop 0")
            k(f"v_pk_add_f32 v[{ag+r}:{ag+r+1}], v[{ag+r}:{ag+r+1}], v[18:19]")
            k(f"v_rcp_f32 v{ag+r}, v{ag+r}", f"v_rcp_f32 v{ag+r+1}, v{ag+r+1}", "s_nop 0")
            k(f"v_cvt_pk_bf16_f32 v20, v{ag+r}, v{ag+r+1}")
            k(f"v_lshlrev_b32 v{ag+r}, 16, v20", f"v_and_b32 v{ag+r+1}, 0xffff0000, v20")
            k(f"v_pk_mul_f32 v[{ag+r}:{ag+r+1}], v[{ag+r}:{ag+r+1}], v[{au+r}:{au+r+1}]")
        for g in range(4):
            d = 2 + 2*(g & 3)
            k(f"v_cvt_pk_bf16_f32 v{d}, v{ag+4*g}, v{ag+4*g+1}", f"v_cvt_pk_bf16_f32 v{d+1}, v{ag+4*g+2}, v{ag+4*g+3}")
            k(f"ds_write_b64 v25, v[{d}:{d+1}] offset:{ft*64 + g*16}")
    for n in range(6):
        k(f"v_add_u32 v26, {64*n}, v1", "v_mul_lo_u32 v27, v26, s39", "v_lshrrev_b32 v27, 19, v27", "v_mul_u32_u24 v28, 12, v27", "v_sub_u32 v28, v26, v28",
          "v_mul_u32_u24 v26, 208, v27", "v_lshl_add_u32 v26, v28, 4, v26", f"v_add_u32 v{FB+n}, s32, v26",
          "v_add_u32 v27, s33, v27", "v_mul_u32_u24 v27, 3072, v27", "v_lshl_add_u32 v27, v28, 4, v27", f"v_add_u32 v{FB+8+n}, s38, v27")
    if st0 is not None and FINE: stamp(k, 9)
    k("s_waitcnt lgkmcnt(0)")
    for n in range(6): k(f"ds_read_b128 v[{AC+4*n}:{AC+4*n+3}], v{FB+n}")
    for n in range(6): k(f"s_waitcnt lgkmcnt({5-n})", f"buffer_store_dwordx4 v[{AC+4*n}:{AC+4*n+3}], v{FB+8+n}, s[16:19], 0 offen")
    if st0 is not None and FINE: stamp(k, 10)
    k("s_waitcnt vmcnt(0)")
    if st0 is not None and FINE: stamp(k, 11)
    k("s_barrier")
    if st0 is not None: stamp(k, st0+3)
    k(f"s_add_u32 s32, s26, {L*320+280}")
    fsignal(k, 32, 27)
    k(f"s_branch {lend}")
    k.lab(lload)
    act_dma_voffs(k)
    k("s_lshl_b32 s34, s28, 12")
    def al(kt):
        st = (kt + R) % NST
        return [f"s_add_u32 m0, s34, {st*AS}", f"s_mov_b32 s35, {kt*128}"] + [f"buffer_load_dwordx4 v{2+j}, s[4:7], s35 offen offset:{j*1024} sc1 lds" for j in range(4)]
    loader_phase(k, NK, wd, al, 1, nxt)
    k.lab(lend)

def ph_out(k, L, kind, wd, nxt, st0=None):
    R = wd.r
    if kind == 'w':
        asrc, KK, wsrc, rsrc, dst, stdst = f'O{L}', 768, 'WO', ('x' if L == 0 else 'XB'), f'XA{L}', f'STA{L}'
    else:
        asrc, KK, wsrc, rsrc, dst, stdst = f'H{L}', 1536, 'WD', f'XA{L}', ('XB' if L == 0 else 'out'), ('STB' if L == 0 else None)
    NK = KK // 128; NST = 4; AP = KK * 2
    lload = k.newlab("loader"); lend = k.newlab("end")
    k("s_and_b32 s24, s2, 7", "s_lshr_b32 s25, s2, 3", "s_lshl_b32 s26, s24, 2", "s_and_b32 s27, s25, 3", "s_add_u32 s26, s26, s27", "s_lshr_b32 s27, s25, 2")
    srd(k, 4, asrc); srd(k, 12, rsrc); srd(k, 16, dst)
    if stdst: srd(k, 20, stdst)
    k("s_cmp_ge_u32 s29, 4", f"s_cbranch_scc1 {lload}")
    FB = 32; AC = 104; RS = 184
    k("v_and_b32 v25, 15, v1", "v_lshrrev_b32 v26, 4, v1", "s_lshl_b32 s32, s29, 2", "v_add_u32 v26, s32, v26", "v_xor_b32 v26, v26, v25", "v_lshlrev_b32 v26, 4, v26", "v_lshl_add_u32 v10, v25, 8, v26", f"v_add_u32 v10, {R*AS}, v10")
    k("v_lshrrev_b32 v26, 4, v1", "v_lshlrev_b32 v26, 3, v26", "v_bfe_u32 v27, v1, 2, 2", "v_add_u32 v26, v26, v27", "s_lshl_b32 s32, s29, 5", "v_add_u32 v26, s32, v26", "v_mul_u32_u24 v26, 160, v26")
    k("v_and_b32 v27, 3, v1", "v_lshl_add_u32 v26, v27, 3, v26", f"v_add_u32 v11, {WB + R*WSL}, v26")
    k("s_lshl_b32 s32, s26, 6", "s_lshl_b32 s33, s29, 4", "s_add_u32 s32, s32, s33", "v_add_u32 v28, s32, v25", "v_mul_u32_u24 v29, 1280, v28")
    k("v_lshrrev_b32 v26, 4, v1", "v_lshl_add_u32 v29, v26, 3, v29", "s_mul_i32 s32, s27, 160", "v_add_u32 v29, s32, v29")
    for i in range(AC, AC+80): k(f"v_mov_b32 v{i}, 0")
    k("s_mul_i32 s32, s29, 15360", "s_nop 0", "v_mul_u32_u24 v30, 160, v25", "v_lshrrev_b32 v26, 4, v1", "v_lshl_add_u32 v30, v26, 3, v30", "v_add_u32 v30, s32, v30")
    k("v_lshlrev_b32 v31, 4, v1", "v_add_u32 v31, s32, v31")
    k("s_lshl_b32 s32, s26, 6", "s_lshl_b32 s33, s29, 4", "s_add_u32 s32, s32, s33", "s_mul_i32 s33, s27, 160", "s_mov_b32 s38, 52429")
    for n in range(3):
        k(f"v_add_u32 v26, {64*n}, v1", "v_mul_lo_u32 v27, v26, s38", "v_lshrrev_b32 v27, 19, v27", "v_mul_u32_u24 v24, 10, v27", "v_sub_u32 v24, v26, v24",
          "v_add_u32 v27, s32, v27", "v_mul_u32_u24 v27, 1280, v27", "v_lshl_add_u32 v27, v24, 4, v27", f"v_add_u32 v{12+n}, s33, v27")
    if TOUCH == 1 and ((kind == 'w' and L == 0) or (kind == 'd' and L == 1)):
        for n in range(3): k(f"buffer_load_dword v{200+n}, v{12+n}, s[16:19], 0 offen")
    if kind == 'w':
        poll(k, fpoll_addr(lambda k: k("s_lshr_b32 s38, s26, 2", f"s_add_u32 s38, s38, {L*320+256}"), 32), 1)
    else:
        poll(k, fpoll_addr(lambda k: k("s_lshr_b32 s38, s26, 1", f"s_add_u32 s38, s38, {L*320+280}"), 16), 1)
    k("s_barrier")
    if st0 is not None: stamp(k, st0)
    for ft in range(5): k(f"buffer_load_dwordx2 v[{RS+2*ft}:{RS+2*ft+1}], v29, s[12:15], 0 offen offset:{ft*32}" + SC)
    def reads(p):
        fb = FB + 36 * p; Ls = []
        for tt in range(4): Ls.append(f"ds_read_b128 v[{fb+4*tt}:{fb+4*tt+3}], v10 offset:{tt*4096}")
        for ft in range(5):
            for r in range(2): Ls.append(f"ds_read_b64_tr_b16 v[{fb+16+4*ft+2*r}:{fb+17+4*ft+2*r}], v11 offset:{4*r*160 + ft*32}")
        return Ls
    def mfmas(p):
        fb = FB + 36 * p; Ls = []
        for ft in range(5):
            for tt in range(4):
                a = AC + (ft*4+tt)*4
                Ls.append(f"v_mfma_f32_16x16x32_bf16 v[{a}:{a+3}], v[{fb+16+4*ft}:{fb+19+4*ft}], v[{fb+4*tt}:{fb+4*tt+3}], v[{a}:{a+3}]")
        return Ls
    k("s_barrier")
    if st0 is not None: stamp(k, st0+1)
    k(*reads(0))
    for kt in range(NK):
        k("s_waitcnt lgkmcnt(0)")
        M = mfmas(kt & 1)
        if kt + 1 < NK:
            k(M[0], "s_barrier")
            wrap = (kt + 1 + R) % NST == 0
            k(f"v_add_u32 v10, {(-3*AS if wrap else AS) & 0xffffffff:#x}, v10", f"v_add_u32 v11, {(-3*WSL if wrap else WSL) & 0xffffffff:#x}, v11")
            interleave(k, M[1:], reads((kt+1) & 1), [1]*14 + [0]*5)
        else:
            k(*M)
    if st0 is not None: stamp(k, st0+2)
    k("s_barrier")
    k("v_lshlrev_b32 v25, 4, v1", "s_mul_i32 s32, s29, 15360", "v_add_u32 v27, s32, v25")
    k("s_nop 7")
    for tt in range(4):
        lw = k.newlab("rw")
        k(f"s_cmp_eq_u32 s29, {tt}", f"s_cbranch_scc1 {lw}")
        k(f"s_sub_u32 s32, s29, {tt+1}", "s_and_b32 s32, s32, 3", "s_mul_i32 s32, s32, 5120", f"s_add_u32 s32, s32, {tt*15360}", "v_add_u32 v26, s32, v25")
        for ft in range(5):
            a_ = AC + (ft*4+tt)*4
            k(f"ds_write_b128 v26, v[{a_}:{a_+3}] offset:{ft*1024}")
        k.lab(lw)
    k("s_waitcnt lgkmcnt(0)", "s_barrier")
    le = k.newlab("e"); labs = [k.newlab("own") for _ in range(4)]
    for tt in range(4): k(f"s_cmp_eq_u32 s29, {tt}", f"s_cbranch_scc1 {labs[tt]}")
    for tt in range(4):
        k.lab(labs[tt])
        for ft in range(5):
            for r in range(4): k(f"v_mov_b32 v{FB+4*ft+r}, v{AC+(ft*4+tt)*4+r}")
        k(f"s_branch {le}")
    k.lab(le)
    for n in range(15): k(f"ds_read_b128 v[{AC+4*n}:{AC+4*n+3}], v27 offset:{n*1024}")
    k("s_waitcnt lgkmcnt(0) vmcnt(0)")
    for sidx in range(3):
        for ft in range(5):
            for r in range(0, 4, 2):
                k(f"v_pk_add_f32 v[{FB+4*ft+r}:{FB+4*ft+r+1}], v[{FB+4*ft+r}:{FB+4*ft+r+1}], v[{AC+4*(sidx*5+ft)+r}:{AC+4*(sidx*5+ft)+r+1}]")
    for ft in range(5):
        for p in range(2):
            a = FB + 4*ft + 2*p; x = RS + 2*ft + p
            k(f"v_cvt_pk_bf16_f32 v20, v{a}, v{a+1}", f"v_lshlrev_b32 v{a}, 16, v20", f"v_and_b32 v{a+1}, 0xffff0000, v20")
            k(f"v_lshlrev_b32 v21, 16, v{x}", f"v_and_b32 v22, 0xffff0000, v{x}", f"v_add_f32 v{a}, v{a}, v21", f"v_add_f32 v{a+1}, v{a+1}, v22")
            k(f"v_cvt_pk_bf16_f32 v{x}, v{a}, v{a+1}")
            if stdst: k(f"v_lshlrev_b32 v{a}, 16, v{x}", f"v_and_b32 v{a+1}, 0xffff0000, v{x}")
        k(f"ds_write_b64 v30, v[{RS+2*ft}:{RS+2*ft+1}] offset:{ft*32}")
    k("s_waitcnt lgkmcnt(0)")
    for n in range(3): k(f"ds_read_b128 v[{AC+4*n}:{AC+4*n+3}], v31 offset:{n*1024}")
    k("v_cmp_gt_u32 vcc, 32, v1")
    for n in range(3):
        if n == 2: k("s_and_saveexec_b64 s[36:37], vcc")
        k(f"s_waitcnt lgkmcnt({2-n})", f"buffer_store_dwordx4 v[{AC+4*n}:{AC+4*n+3}], v{12+n}, s[16:19], 0 offen")
    k("s_mov_b64 exec, s[36:37]")
    if stdst:
        def xsum(v, t):
            k(f"v_mov_b32 v{t}, v{v}", "s_nop 1", f"v_permlane16_swap_b32 v{v}, v{t}", f"v_add_f32 v{v}, v{v}, v{t}")
            k(f"v_mov_b32 v{t}, v{v}", "s_nop 1", f"v_permlane32_swap_b32 v{v}, v{t}", f"v_add_f32 v{v}, v{v}, v{t}")
        k(f"v_add_f32 v20, v{FB}, v{FB+1}")
        for i in range(2, 20): k(f"v_add_f32 v20, v20, v{FB+i}")
        xsum(20, 22)
        k("v_mul_f32 v23, 0x3c4ccccd, v20", "v_mov_b32 v21, 0")
        for i in range(20): k(f"v_sub_f32 v22, v{FB+i}, v23", "v_fmac_f32 v21, v22, v22")
        xsum(21, 22)
        k("v_lshlrev_b32 v28, 6, v28", "s_lshl_b32 s32, s27, 3", "v_add_u32 v28, s32, v28")
        k("v_cmp_gt_u32 vcc, 16, v1", "s_and_saveexec_b64 s[36:37], vcc")
        k("buffer_store_dwordx2 v[20:21], v28, s[20:23], 0 offen")
        k("s_mov_b64 exec, s[36:37]")
    k("s_waitcnt vmcnt(0)", "s_barrier")
    if st0 is not None: stamp(k, st0+3)
    if stdst:
        k("s_lshr_b32 s32, s26, 1", f"s_add_u32 s32, s32, {L*320 + (264 if kind == 'w' else 296)}")
        k("s_and_b32 s33, s26, 1", "s_lshl_b32 s33, s33, 3", "s_add_u32 s33, s33, s27")
        fsignal(k, 32, 33)
    k(f"s_branch {lend}")
    k.lab(lload)
    k("s_lshl_b32 s32, s26, 6", "s_lshl_b32 s33, s28, 4", "s_add_u32 s32, s32, s33", "v_lshrrev_b32 v25, 4, v1", "v_and_b32 v26, 15, v1", f"s_mov_b32 s33, {AP}")
    for jj in range(4):
        if kind == 'w':
            k(f"v_add_u32 v27, {4*jj}, v25", f"v_xor_b32 v{12+jj}, v26, v27", "v_add_u32 v27, s32, v27", f"v_mul_u32_u24 v{16+jj}, 48, v27")
        else:
            k(f"v_add_u32 v27, {4*jj}, v25", "v_xor_b32 v28, v26, v27", "v_add_u32 v27, s32, v27", "v_mul_lo_u32 v27, v27, s33", "v_lshl_add_u32 v27, v28, 4, v27", f"v_subrev_u32 v{2+jj}, {jj*1024}, v27")
    k("s_mov_b32 s39, 98304")
    k("s_lshl_b32 s34, s28, 12")
    def al(kt):
        st = (kt + R) % NST
        if kind == 'w':
            Ls = []
            for j in range(4):
                Ls += [f"s_add_u32 m0, s34, {st*AS + j*1024}"]
                Ls += [f"v_add_u32 v25, {16*kt}, v{12+j}", "v_mul_u32_u24 v26, 171, v25", "v_lshrrev_b32 v26, 9, v26", "v_mul_u32_u24 v27, 3, v26", "v_sub_u32 v27, v25, v27",
                       "v_mul_lo_u32 v26, v26, s39", "v_lshl_add_u32 v26, v27, 4, v26", f"v_add_u32 v{2+j}, v26, v{16+j}",
                       f"buffer_load_dwordx4 v{2+j}, s[4:7], 0 offen sc1 lds"]
            return Ls
        return [f"s_add_u32 m0, s34, {st*AS}", f"s_mov_b32 s35, {kt*256}"] + [f"buffer_load_dwordx4 v{2+j}, s[4:7], s35 offen offset:{j*1024} sc1 lds" for j in range(4)]
    loader_phase(k, NK, wd, al, 2, nxt)
    k.lab(lend)

def stamps_out2(k, n, wg):
    assert n <= 14
    if RT:
        lab = k.newlab("nost")
        k("s_waitcnt lgkmcnt(0)", "s_cmp_lg_u32 s29, 0", f"s_cbranch_scc1 {lab}")
        srd(k, 72, 'DBG')
        k("s_lshl_b32 s38, s2, 6", "v_mov_b32 v1, s38")
        for i in range(n):
            k(f"v_mov_b32 v2, s{40+2*i}", f"buffer_store_dword v2, v1, s[72:75], 0 offen offset:{4*i}")
        k.lab(lab)
        return
    lab = k.newlab("nost")
    k("s_waitcnt lgkmcnt(0)")
    k(f"s_cmp_lg_u32 s2, {wg}", f"s_cbranch_scc1 {lab}")
    k("s_cmp_lg_u32 s29, 0", f"s_cbranch_scc1 {lab}")
    k("s_load_dwordx2 s[72:73], s[0:1], 64", "s_waitcnt lgkmcnt(0)")
    k("s_and_b32 s73, s73, 0xffff", "s_mov_b32 s74, 256", "s_mov_b32 s75, 0x00020000")
    k("v_mov_b32 v1, 0")
    for i in range(n):
        k(f"s_sub_u32 s{41+2*i}, s{40+2*i}, s40")
        k(f"v_mov_b32 v2, s{41+2*i}")
        k(f"buffer_store_dword v2, v1, s[72:75], 0 offen offset:{4*i}")
    k.lab(lab)

def ph_prep(k):
    done = k.newlab("pdone"); lcs = k.newlab("cs"); lwq = k.newlab("wq"); lgu = k.newlab("gu"); lod = k.newlab("od")
    k("s_load_dwordx2 s[40:41], s[0:1], 8", "s_load_dwordx2 s[42:43], s[0:1], 32", "s_load_dwordx2 s[44:45], s[0:1], 40", "s_load_dwordx2 s[46:47], s[0:1], 16", "s_load_dwordx2 s[48:49], s[0:1], 48")
    k("s_lshl_b32 s36, s2, 1", "s_lshr_b32 s37, s29, 2", "s_add_u32 s36, s36, s37", "v_and_b32 v0, 255, v0", "s_mov_b32 s83, 0")
    k("s_waitcnt lgkmcnt(0)")
    def insrd(sreg, p, name):
        k(f"s_mov_b32 s{sreg}, s{p}", f"s_and_b32 s{sreg+1}, s{p+1}, 0xffff", f"s_mov_b32 s{sreg+2}, {INSZ[name]}", f"s_mov_b32 s{sreg+3}, 0x00020000")
    srd(k, 4, 'x'); insrd(8, 40, 'wqkv'); insrd(12, 42, 'wg'); insrd(16, 44, 'wu'); srd(k, 20, 'STX'); srd(k, 68, 'CS')
    insrd(52, 46, 'wo'); insrd(56, 48, 'wd'); srd(k, 60, 'WQ'); srd(k, 64, 'WGU'); srd(k, 72, 'WO'); srd(k, 76, 'WD')
    k("s_mov_b32 s44, 0")
    k("v_and_b32 v12, 63, v0", "s_lshl_b32 s37, s2, 3", "s_add_u32 s37, s37, s29", "s_mul_i32 s38, s37, 1280", "v_lshlrev_b32 v2, 4, v12", "v_mov_b32 v3, 0x7ffffff0")
    k("v_cmp_gt_u32 vcc, 16, v12", "v_add_u32 v4, 1024, v2", "s_nop 0", "v_cndmask_b32 v4, v3, v4, vcc")
    k("buffer_load_dwordx4 v[100:103], v2, s[4:7], s38 offen", "buffer_load_dwordx4 v[104:107], v4, s[4:7], s38 offen")
    k("s_lshl_b32 s39, s37, 10", "v_mov_b32 v4, 0", "v_mov_b32 v5, 0", "v_mov_b32 v6, 0", "v_mov_b32 v7, 0", "s_min_u32 s39, s39, 0x7ff00000")
    k("buffer_store_dwordx4 v[4:7], v2, s[92:95], s39 offen sc1")
    k("s_waitcnt vmcnt(1)")
    for i in range(8):
        k(f"v_lshlrev_b32 v{108+2*i}, 16, v{100+i}", f"v_and_b32 v{109+2*i}, 0xffff0000, v{100+i}")
    def wsum(v):
        for sh in (1, 2, 4, 8):
            k("s_nop 1", f"v_add_f32_dpp v{v}, v{v}, v{v} row_shr:{sh} row_mask:0xf bank_mask:0xf bound_ctrl:0")
        k("s_nop 1", f"v_readlane_b32 s40, v{v}, 15", f"v_readlane_b32 s41, v{v}, 31", f"v_readlane_b32 s42, v{v}, 47", f"v_readlane_b32 s43, v{v}, 63", "s_nop 1")
        k(f"v_mov_b32 v{v}, s40", f"v_add_f32 v{v}, s41, v{v}", f"v_add_f32 v{v}, s42, v{v}", f"v_add_f32 v{v}, s43, v{v}")
    k("v_add_f32 v8, v108, v109")
    for i in range(2, 16): k(f"v_add_f32 v8, v8, v{108+i}")
    wsum(8)
    k("v_mul_f32 v10, 0x3acccccd, v8", "v_mov_b32 v9, 0", "v_mov_b32 v11, 0")
    for i in range(8): k(f"v_sub_f32 v13, v{108+i}, v10", "v_fmac_f32 v9, v13, v13")
    for i in range(8, 16): k(f"v_sub_f32 v13, v{108+i}, v10", "v_fmac_f32 v11, v13, v13")
    k("v_cndmask_b32 v11, 0, v11, vcc", "v_add_f32 v9, v9, v11")
    wsum(9)
    k("s_lshl_b32 s38, s37, 3", "v_mov_b32 v2, s38", "s_mov_b64 s[40:41], exec", "s_mov_b64 exec, 1", "buffer_store_dwordx2 v[8:9], v2, s[20:23], 0 offen sc1", "s_mov_b64 exec, s[40:41]")
    k("s_add_u32 s36, s36, 32")
    k("s_cmp_ge_u32 s36, 502", f"s_cbranch_scc1 {done}")
    k("s_cmp_ge_u32 s36, 430", f"s_cbranch_scc1 {lod}")
    k("s_cmp_ge_u32 s36, 270", f"s_cbranch_scc1 {lgu}")
    k("s_cmp_ge_u32 s36, 110", f"s_cbranch_scc1 {lwq}")
    k.lab(lcs)
    k("s_sub_u32 s36, s36, 32")
    k("s_mov_b32 s37, 3840", "s_mov_b32 s38, 0", "s_mov_b64 s[40:41], s[8:9]", "s_mov_b32 s42, s10", "s_mov_b32 s39, s36")
    l1 = k.newlab("m")
    k("s_cmp_lt_u32 s36, 30", f"s_cbranch_scc1 {l1}")
    k("s_mov_b32 s37, 3072", "s_mov_b32 s38, 2048", "s_mov_b64 s[40:41], s[12:13]", "s_mov_b32 s42, s14", "s_sub_u32 s39, s36, 30")
    k("s_cmp_lt_u32 s36, 54", f"s_cbranch_scc1 {l1}")
    k("s_mov_b32 s38, 3584", "s_mov_b64 s[40:41], s[16:17]", "s_sub_u32 s39, s36, 54")
    k.lab(l1)
    k("s_mov_b32 s43, 0x00020000")
    k("v_lshrrev_b32 v1, 4, v0", "v_mul_u32_u24 v1, 40, v1", "v_mul_lo_u32 v1, v1, s37", "v_and_b32 v2, 15, v0", "v_lshl_add_u32 v1, v2, 3, v1")
    k("s_lshl_b32 s44, s39, 7", "v_add_u32 v1, s44, v1", "s_mov_b32 s45, 0")
    for r in range(40):
        k(f"buffer_load_dwordx2 v[{16+2*r}:{17+2*r}], v1, s[40:43], s45 offen", "s_add_u32 s45, s45, s37")
    for a_ in range(4): k(f"v_mov_b32 v{4+a_}, 0")
    k("s_waitcnt vmcnt(0)")
    for r in range(40):
        k(f"v_lshlrev_b32 v8, 16, v{16+2*r}", f"v_and_b32 v9, 0xffff0000, v{16+2*r}", f"v_lshlrev_b32 v10, 16, v{17+2*r}", f"v_and_b32 v11, 0xffff0000, v{17+2*r}",
          "v_add_f32 v4, v4, v8", "v_add_f32 v5, v5, v9", "v_add_f32 v6, v6, v10", "v_add_f32 v7, v7, v11")
    k("s_lshr_b32 s44, s29, 2", "s_lshl_b32 s44, s44, 12", "s_add_u32 s44, s44, 1024", "v_lshlrev_b32 v2, 4, v0", "v_add_u32 v2, s44, v2", "ds_write_b128 v2, v[4:7]")
    k("s_mov_b32 s83, 1")
    k(f"s_branch {done}")
    k.lab(lwq)
    k("s_sub_u32 s36, s36, 110", "s_mul_hi_u32 s37, s36, 0x1999999a", "s_mul_i32 s38, s37, 10", "s_sub_u32 s38, s36, s38")
    k("v_lshrrev_b32 v1, 5, v0", "v_and_b32 v2, 31, v0", "v_lshrrev_b32 v3, 1, v2", "v_and_b32 v4, 3, v1", "v_lshlrev_b32 v4, 2, v4", "v_xor_b32 v3, v3, v4")
    k("v_and_b32 v4, 1, v2", "v_lshl_add_u32 v3, v3, 1, v4", "v_lshrrev_b32 v4, 4, v3", "v_and_b32 v3, 15, v3")
    k("v_mul_u32_u24 v5, 52, v3", "v_lshrrev_b32 v5, 8, v5", "v_mul_u32_u24 v6, 5, v5", "v_sub_u32 v6, v3, v6")
    k("s_lshl_b32 s39, s37, 1", "v_add_u32 v4, s39, v4", "v_mul_u32_u24 v4, 40, v4", "v_mul_u32_u24 v5, 1280, v5", "v_add_u32 v4, v4, v5", "v_lshl_add_u32 v4, v6, 3, v4")
    k("s_lshl_b32 s39, s38, 6", "v_add_u32 v1, s39, v1", "v_mul_u32_u24 v1, 3840, v1", "v_add_u32 v1, v1, v4")
    k("v_cmp_eq_u32 vcc, 15, v3", "v_mov_b32 v5, 0x7ffffff0", "s_nop 0", "v_cndmask_b32 v1, v1, v5, vcc")
    for i in range(8): k(f"s_mov_b32 s39, {i*8*3840}", f"buffer_load_dwordx2 v[{16+2*i}:{17+2*i}], v1, s[8:11], s39 offen")
    k("s_lshr_b32 s40, s29, 2", "s_lshl_b32 s40, s40, 14", "s_add_u32 s40, s40, 16384", "v_lshlrev_b32 v2, 3, v0", "v_add_u32 v2, s40, v2")
    for i in range(8): k(f"s_waitcnt vmcnt({7-i})", f"ds_write_b64 v2, v[{16+2*i}:{17+2*i}] offset:{i*2048}")
    k("v_and_b32 v12, 63, v0", "v_lshrrev_b32 v3, 5, v12", "v_lshlrev_b32 v3, 11, v3", "v_and_b32 v4, 31, v12", "v_lshl_add_u32 v3, v4, 4, v3", "s_lshl_b32 s41, s28, 9", "v_add_u32 v3, s41, v3")
    k("v_add_u32 v4, s40, v3", "s_lshl_b32 s39, s36, 14", "s_waitcnt lgkmcnt(0)")
    for i in range(4): k(f"ds_read_b128 v[{32+4*i}:{35+4*i}], v4 offset:{i*4096}")
    for i in range(4): k(f"s_waitcnt lgkmcnt({3-i})", f"s_add_u32 s41, s39, {i*4096}", f"buffer_store_dwordx4 v[{32+4*i}:{35+4*i}], v3, s[60:63], s41 offen sc1")
    k(f"s_branch {done}")
    k.lab(lgu)
    k("s_sub_u32 s36, s36, 270", "s_mul_hi_u32 s37, s36, 0x1999999a", "s_mul_i32 s38, s37, 10", "s_sub_u32 s38, s36, s38")
    k("s_mov_b32 s40, 43691", "s_mul_i32 s41, s37, 192", "s_mul_i32 s42, s38, 196608", "s_add_u32 s41, s41, s42")
    for j in range(3):
        k(f"v_add_u32 v1, {256*j}, v0", "v_mul_lo_u32 v2, v1, s40", "v_lshrrev_b32 v2, 19, v2", "v_mul_u32_u24 v3, 12, v2", "v_sub_u32 v3, v1, v3",
          "v_mul_u32_u24 v2, 3072, v2", "v_lshl_add_u32 v2, v3, 4, v2")
        k(f"buffer_load_dwordx4 v[{16+4*j}:{19+4*j}], v2, s[12:15], s41 offen", f"buffer_load_dwordx4 v[{32+4*j}:{35+4*j}], v2, s[16:19], s41 offen")
    k("s_mul_i32 s39, s36, 24576", "v_lshlrev_b32 v2, 4, v0", "s_waitcnt vmcnt(0)")
    for j in range(3):
        k(f"s_add_u32 s40, s39, {j*4096}", f"buffer_store_dwordx4 v[{16+4*j}:{19+4*j}], v2, s[64:67], s40 offen sc1")
        k(f"s_add_u32 s40, s39, {12288+j*4096}", f"buffer_store_dwordx4 v[{32+4*j}:{35+4*j}], v2, s[64:67], s40 offen sc1")
    k(f"s_branch {done}")
    k.lab(lod)
    k("s_sub_u32 s36, s36, 430")
    k("s_mul_hi_u32 s37, s36, 0x55555556", "s_mul_i32 s38, s37, 3", "s_sub_u32 s38, s36, s38")
    k("s_mov_b64 s[40:41], s[52:53]", "s_mov_b32 s42, s54", "s_mov_b64 s[44:45], s[72:73]", "s_mov_b32 s46, s74", "s_mov_b32 s39, s36", "s_mov_b32 s51, 1")
    l3 = k.newlab("isd")
    k("s_cmp_lt_u32 s36, 24", f"s_cbranch_scc1 {l3}")
    k("s_sub_u32 s39, s36, 24", "s_mul_hi_u32 s37, s39, 0x2aaaaaab", "s_mul_i32 s38, s37, 6", "s_sub_u32 s38, s39, s38")
    k("s_mov_b64 s[40:41], s[56:57]", "s_mov_b32 s42, s58", "s_mov_b64 s[44:45], s[76:77]", "s_mov_b32 s46, s78", "s_mov_b32 s51, 0")
    k.lab(l3)
    k("s_mov_b32 s43, 0x00020000", "s_mov_b32 s47, 0x00020000")
    k("s_mov_b32 s48, 52429", "s_mul_i32 s49, s37, 160", "s_lshl_b32 s50, s38, 8", "v_mov_b32 v8, 0x7ffffff0")
    for j in range(10):
        l4 = k.newlab("nt")
        k(f"v_add_u32 v1, {256*j}, v0", "v_mul_lo_u32 v2, v1, s48", "v_lshrrev_b32 v2, 19, v2", "v_mul_u32_u24 v3, 10, v2", "v_sub_u32 v3, v1, v3", "v_add_u32 v2, s50, v2")
        k("s_mov_b64 vcc, 0", "s_cmp_eq_u32 s51, 0", f"s_cbranch_scc1 {l4}")
        k("v_mul_u32_u24 v4, 2731, v2", "v_lshrrev_b32 v4, 16, v4", "v_mul_u32_u24 v5, 24, v4", "v_sub_u32 v5, v2, v5", "v_mul_u32_u24 v4, 20, v4", "v_add_u32 v2, v4, v5", "v_cmp_le_u32 vcc, 20, v5")
        k.lab(l4)
        k("v_mul_u32_u24 v2, 1280, v2", "v_lshl_add_u32 v2, v3, 4, v2", "s_nop 1", "v_cndmask_b32 v2, v2, v8, vcc")
        k(f"buffer_load_dwordx4 v[{16+4*j}:{19+4*j}], v2, s[40:43], s49 offen")
    k("s_mul_i32 s39, s39, 40960", "v_lshlrev_b32 v2, 4, v0", "s_waitcnt vmcnt(0)")
    for j in range(10):
        k(f"s_add_u32 s48, s39, {j*4096}", f"buffer_store_dwordx4 v[{16+4*j}:{19+4*j}], v2, s[44:47], s48 offen sc1")
    k.lab(done)
    k("s_lshl_b32 s36, s29, 6", "v_mbcnt_lo_u32_b32 v1, -1, 0", "v_mbcnt_hi_u32_b32 v1, -1, v1", "v_add_u32 v0, s36, v1")
    k("s_waitcnt lgkmcnt(0)", "s_barrier")
    lnc = k.newlab("nocs")
    k("s_cmp_eq_u32 s83, 0", f"s_cbranch_scc1 {lnc}", "s_cmp_lg_u32 s28, 0", f"s_cbranch_scc1 {lnc}")
    k("v_lshlrev_b32 v2, 2, v1", "v_add_u32 v2, s44, v2")
    for g in range(16): k(f"ds_read_b32 v{16+g}, v2 offset:{g*256}")
    k("s_waitcnt lgkmcnt(0)")
    for g in range(1, 16): k(f"v_add_f32 v16, v16, v{16+g}")
    k("s_lshl_b32 s44, s39, 6", "v_add_u32 v3, s44, v1", "v_add_u32 v2, s38, v3")
    l2 = k.newlab("nq")
    k("s_cmp_lg_u32 s38, 0", f"s_cbranch_scc1 {l2}")
    k("s_mov_b32 s44, 52429", "v_mul_lo_u32 v4, v3, s44", "v_lshrrev_b32 v4, 20, v4")
    k("v_mul_u32_u24 v5, 20, v4", "v_sub_u32 v5, v3, v5", "v_lshrrev_b32 v6, 5, v4", "v_and_b32 v4, 31, v4")
    k("v_mul_u32_u24 v6, 20, v6", "v_add_u32 v5, v5, v6", "v_lshl_add_u32 v2, v4, 6, v5")
    k.lab(l2)
    k("v_lshlrev_b32 v2, 2, v2", "buffer_store_dword v16, v2, s[68:71], 0 offen sc1")
    k.lab(lnc)
    k("s_waitcnt vmcnt(0)", "s_barrier")
    k("s_memrealtime s[100:101]", "s_waitcnt lgkmcnt(0)", "v_mov_b32 v254, s100")
    lns = k.newlab("noslot")
    k("s_cmp_lg_u32 s29, 0", f"s_cbranch_scc1 {lns}")
    k("v_mov_b32 v22, 0", "s_mov_b64 s[36:37], exec", "s_mov_b64 exec, 1", "ds_write_b32 v22, v253", "s_waitcnt lgkmcnt(0)", "s_mov_b64 exec, s[36:37]")
    k.lab(lns)
    k("s_barrier", "v_mov_b32 v22, 0", "ds_read_b32 v23, v22", "s_waitcnt lgkmcnt(0)", "v_readfirstlane_b32 s2, v23", "s_nop 3", "s_and_b32 s2, s2, 31", "s_lshl_b32 s2, s2, 3",
      "s_getreg_b32 s24, hwreg(HW_REG_XCC_ID)", "s_and_b32 s24, s24, 7", "s_add_u32 s2, s2, s24")
    l5 = k.newlab("gb"); lp = k.newlab("gpoll"); lo = k.newlab("gok"); ln = k.newlab("notlast")
    k("s_cmp_lg_u32 s29, 0", f"s_cbranch_scc1 {l5}")
    k("s_and_b32 s38, s2, 7", "s_lshl_b32 s38, s38, 2", "s_add_u32 s38, s38, 64", "v_mov_b32 v24, s38", "v_mov_b32 v23, 1")
    k("buffer_atomic_add v23, v24, s[96:99], 0 offen sc0 sc1" if False else "s_nop 0")
    k("s_mov_b64 s[36:37], exec", "s_mov_b64 exec, 1", "buffer_atomic_add v23, v24, s[96:99], 0 offen sc0 sc1", "s_waitcnt vmcnt(0)", "s_mov_b64 exec, s[36:37]")
    k("v_readfirstlane_b32 s38, v23", "s_nop 3", "s_cmp_lg_u32 s38, 31", f"s_cbranch_scc1 {ln}")
    k("v_mov_b32 v24, 96", "v_mov_b32 v23, 1", "s_mov_b64 exec, 1", "buffer_atomic_add v23, v24, s[96:99], 0 offen sc0 sc1", "s_waitcnt vmcnt(0)", "s_mov_b64 exec, s[36:37]")
    k("v_readfirstlane_b32 s38, v23", "s_nop 3", "s_cmp_lg_u32 s38, 7", f"s_cbranch_scc1 {ln}")
    k("v_mov_b32 v24, 128", "v_mov_b32 v23, 1", "s_mov_b64 exec, 1", "buffer_store_dword v23, v24, s[96:99], 0 offen sc1", "s_mov_b64 exec, s[36:37]")
    k.lab(ln)
    k("v_mov_b32 v24, 128", "s_mov_b32 s38, 0")
    k.lab(lp)
    k("buffer_load_dword v23, v24, s[96:99], 0 offen sc1", "s_waitcnt vmcnt(0)", "v_cmp_gt_u32 vcc, 1, v23", "s_nop 4", f"s_cbranch_vccz {lo}",
      "s_add_u32 s38, s38, 1", "s_cmp_gt_u32 s38, 8000", f"s_cbranch_scc1 {lo}", "s_sleep 6", f"s_branch {lp}")
    k.lab(lo)
    k.lab(l5)
    k("s_barrier")

def gen_mega(name, nph=10, stamps=None):
    k = K(name, 256, 512, 163840, sgpr=102)
    done = k.newlab("done")
    k("s_load_dwordx2 s[84:85], s[0:1], 72", "s_load_dwordx2 s[86:87], s[0:1], 0", "s_load_dwordx2 s[88:89], s[0:1], 56", "s_load_dwordx2 s[96:97], s[0:1], 64")
    k("s_cmp_ge_u32 s2, 256", f"s_cbranch_scc1 {done}")
    k("v_and_b32 v1, 63, v0", "v_lshrrev_b32 v25, 6, v0", "s_nop 0", "v_readfirstlane_b32 s29, v25", "s_nop 3", "s_and_b32 s28, s29, 3")
    k("s_waitcnt lgkmcnt(0)")
    srd(k, 92, "CNT")
    k("s_and_b32 s97, s97, 0xffff", "s_mov_b32 s98, 256", "s_mov_b32 s99, 0x00020000")
    lns = k.newlab("noslot")
    k("s_getreg_b32 s24, hwreg(HW_REG_XCC_ID)", "s_and_b32 s24, s24, 7", "v_mov_b32 v253, 1")
    k("s_cmp_lg_u32 s29, 0", f"s_cbranch_scc1 {lns}")
    if PREPK: k("s_add_u32 s38, s24, 632", "s_lshl_b32 s38, s38, 7", "v_mov_b32 v24, s38")
    else: k("s_lshl_b32 s38, s24, 2", "v_mov_b32 v24, s38")
    k("s_mov_b64 s[36:37], exec", "s_mov_b64 exec, 1")
    k(f"buffer_atomic_add v253, v24, s[{'92:95' if PREPK else '96:99'}], 0 offen sc0 sc1")
    k("s_mov_b64 exec, s[36:37]")
    k.lab(lns)
    if stamps is not None: k("s_memrealtime s[100:101]", "s_waitcnt lgkmcnt(0)", "v_mov_b32 v255, s100")
    if PREPK:
        lns2 = k.newlab("noslot")
        k("s_cmp_lg_u32 s29, 0", f"s_cbranch_scc1 {lns2}")
        k("v_mov_b32 v22, 0", "s_mov_b64 s[36:37], exec", "s_mov_b64 exec, 1", "s_waitcnt vmcnt(0)", "ds_write_b32 v22, v253", "s_waitcnt lgkmcnt(0)", "s_mov_b64 exec, s[36:37]")
        k.lab(lns2)
        k("s_barrier", "v_mov_b32 v22, 0", "ds_read_b32 v23, v22", "s_waitcnt lgkmcnt(0)", "v_readfirstlane_b32 s2, v23", "s_nop 3", "s_and_b32 s2, s2, 31", "s_lshl_b32 s2, s2, 3", "s_add_u32 s2, s2, s24", "s_barrier")
        k("v_mov_b32 v254, 0")
    else:
        ph_prep(k)
    if stamps is not None: stamp(k, 0); k("v_readfirstlane_b32 s66, v255", "v_readfirstlane_b32 s64, v254")
    seq = [(L, kind) for L in range(2) for kind in 'qawgd']
    wds = {}; r = 0
    for (L, kind) in seq:
        if kind == 'a': continue
        wds[(L, kind)] = WDesc(kind, r); r = (r + {'q': 10, 'g': 10, 'w': 6, 'd': 12}[kind]) % 4
    gl = [x for x in seq if x[1] != 'a']
    l0 = k.newlab("w0")
    k("s_cmp_lt_u32 s29, 4", f"s_cbranch_scc1 {l0}")
    wds[gl[0]].setup(k)
    for kt in range(4): k(*wds[gl[0]].wl(kt))
    k.lab(l0)
    if TOUCH == 2:
        lt = k.newlab("tch")
        k("s_cmp_ge_u32 s29, 4", f"s_cbranch_scc1 {lt}")
        xcd_map16(k)
        srd(k, 16, 'H0')
        k("v_and_b32 v25, 31, v1", "s_lshl_b32 s32, s26, 7", "s_lshl_b32 s33, s29, 5", "s_add_u32 s32, s32, s33", "v_add_u32 v28, s32, v25")
        k("v_mul_u32_u24 v26, 3072, v28", "s_mul_i32 s32, s27, 192", "v_add_u32 v26, s32, v26", "v_lshrrev_b32 v27, 5, v1", "v_lshl_add_u32 v26, v27, 7, v26")
        k("buffer_load_dword v252, v26, s[16:19], 0 offen", "buffer_load_dword v253, v26, s[16:19], 0 offen offset:60")
        k("s_and_b32 s24, s2, 7", "s_lshr_b32 s25, s2, 3", "s_lshl_b32 s26, s24, 2", "s_and_b32 s27, s25, 3", "s_add_u32 s26, s26, s27", "s_lshr_b32 s27, s25, 2")
        srd(k, 12, 'XA0'); srd(k, 16, 'out')
        k("v_and_b32 v25, 15, v1", "s_lshl_b32 s32, s26, 6", "s_lshl_b32 s33, s29, 4", "s_add_u32 s32, s32, s33", "v_add_u32 v25, s32, v25", "v_mul_u32_u24 v25, 1280, v25")
        k("v_lshrrev_b32 v26, 4, v1", "v_mul_u32_u24 v26, 52, v26", "v_add_u32 v25, v25, v26", "s_mul_i32 s32, s27, 160", "v_add_u32 v25, s32, v25")
        k("buffer_load_dword v250, v25, s[12:15], 0 offen", "buffer_load_dword v251, v25, s[16:19], 0 offen")
        k.lab(lt)
    for ph, (L, kind) in enumerate(seq):
        st0 = (1 + 4*stamps.index(ph)) if (stamps is not None and ph in stamps) else None
        if kind == 'a':
            ph_attn(k, L, st0); continue
        wd = wds[(L, kind)]; gi = gl.index((L, kind)); nxt = wds[gl[gi+1]] if gi + 1 < len(gl) else None
        if kind == 'q': ph_qkv(k, L, 'x' if L == 0 else 'XB', 'STX' if L == 0 else 'STB', wd, nxt, st0)
        elif kind == 'g': ph_glu(k, L, wd, nxt, st0)
        else: ph_out(k, L, kind, wd, nxt, st0)
    if stamps is not None: stamps_out2(k, 14, 17)
    k.lab(done)
    k("s_endpgm")
    return k

def gen_prep2(name):
    k = gen.gen_prep(name)
    i = k.L.index("    buffer_store_dwordx2 v[4:5], v1, s[20:23], 0 offen")
    extra = ["s_load_dwordx2 s[64:65], s[0:1], 72", "s_waitcnt lgkmcnt(0)", f"s_add_u32 s64, s64, {WS['CNT']:#x}", "s_addc_u32 s65, s65, 0", "s_and_b32 s65, s65, 0xffff",
             f"s_mov_b32 s66, {SZ['CNT']}", "s_mov_b32 s67, 0x00020000", "v_lshlrev_b32 v1, 1, v1", "v_mov_b32 v4, 0", "v_mov_b32 v5, 0", "v_mov_b32 v6, 0", "v_mov_b32 v7, 0", "s_nop 1",
             "buffer_store_dwordx4 v[4:7], v1, s[64:67], 0 offen"]
    if int(os.environ.get("PTOUCH", "0")):
        extra += ["s_sub_u32 s64, s64, %#x" % WS['CNT'], "s_subb_u32 s65, s65, 0", "s_mov_b32 s66, 0x3000000", "s_lshr_b32 s36, s2, 3", "s_lshl_b32 s36, s36, 8", "v_add_u32 v1, s36, v0", "v_mul_u32_u24 v1, 24576, v1"]
        for j in range(6): extra += [f"s_mov_b32 s36, {j*4096}", f"buffer_load_dword v{8+j}, v1, s[64:67], s36 offen"]
    k.L[i+1:i+1] = ["    " + e for e in extra]
    k.L = [(l + " sc1") if ("buffer_store" in l) else l for l in k.L]
    return k

if __name__ == "__main__":
    pre = [gen_prep2("prep_kernel")] if PREPK else []
    out = os.environ.get("OUT", "interleave_layers__sliding_block__glu_gated_glu__prompt.s")
    if len(sys.argv) > 1:
        st = [int(x) for x in sys.argv[1].split(",")]
        m = gen_mega("mega_kernel", 10, st)
        build(pre + [m], pre + [m], "mb.s")
    else:
        m = gen_mega("mega_kernel")
        build(pre + [m], pre + [m], out)
```
